```python
import torch

def _softmax(x, axis=-1):
    return torch.softmax(x, dim=axis)
def _gelu(x):
    return torch.nn.functional.gelu(x, approximate="tanh")
def _silu(x):
    return torch.nn.functional.silu(x)
def _sigmoid(x):
    return torch.sigmoid(x)
def _layernorm(x, axis=-1, eps=1e-5):
    m = x.mean(dim=axis, keepdim=True)
    v = x.var(dim=axis, keepdim=True, unbiased=False)
    return (x - m) / torch.sqrt(v + eps)
def _scatter_add(tgt, idx, src, axis=0):
    return tgt.clone().index_add_(axis, idx, src)
def _segment_sum(src, seg, n):
    out = torch.zeros((n,) + src.shape[1:], dtype=src.dtype)
    return out.index_add_(0, seg, src)
def _pad(x, pw):
    flat = tuple(v for pair in reversed(pw) for v in pair)
    return torch.nn.functional.pad(x, flat)

kernel_name = 'concat_heads__compressed_kv_cla__linear_kernel_hedgehog__prompt'

def setup_inputs():

    _w = (lambda a: (lambda t: t.to(torch.bfloat16) if t.is_floating_point() else t)(torch.as_tensor(a)))
    def _A_setup():
        B, H, Sq, Sk, D, M = 1, 32, 2048, 2048, 128, 512
        Dc = 4 * D
        return {
            "x": _w((lambda *s: torch.randn(*s, dtype=torch.bfloat16) * 0.8)(B, Sq, M)),
            "c_kv": _w((lambda *s: torch.randn(*s, dtype=torch.bfloat16) * 0.4)(B, Sk, Dc)),
            "w_q": _w((lambda *s: torch.randn(*s, dtype=torch.bfloat16) * 6.4)(M, H, D) * (M ** -0.5)),
            "w_uk": _w((lambda *s: torch.randn(*s, dtype=torch.bfloat16) * 6.4)(Dc, H, D) * (Dc ** -0.5)),
            "w_uv": _w((lambda *s: torch.randn(*s, dtype=torch.bfloat16) * 0.4)(Dc, H, D) * (Dc ** -0.5)),
            "w_o": _w((lambda *s: torch.randn(*s, dtype=torch.bfloat16) * 0.4)(H, D, M) * ((H * D) ** -0.5)),
        }
    _A_in = _A_setup()

    def _B_setup():
        B, S, D, H = 1, 2048, 512, 32
        Dh = D // H
        return {
            "x": _w((lambda *s: torch.randn(*s, dtype=torch.bfloat16) * 0.4)(B, S, D)),
            "wqkv": _w((lambda *s: torch.randn(*s, dtype=torch.bfloat16) * 0.4)(D, 3 * D)),
            "w_phi": _w((lambda *s: torch.randn(*s, dtype=torch.bfloat16) * 0.4)(H, Dh, Dh) * (Dh ** -0.5)),
            "wo": _w((lambda *s: torch.randn(*s, dtype=torch.bfloat16) * 0.05)(D, D)),
        }
    _B_in = _B_setup()

    return {
        "A_x": _A_in["x"],
        "A_c_kv": _A_in["c_kv"],
        "A_w_q": _A_in["w_q"],
        "A_w_uk": _A_in["w_uk"],
        "A_w_uv": _A_in["w_uv"],
        "A_w_o": _A_in["w_o"],
        "B_x": _B_in["x"],
        "B_wqkv": _B_in["wqkv"],
        "B_w_phi": _B_in["w_phi"],
        "B_wo": _B_in["wo"],
    }

def reference(A_x, A_c_kv, A_w_q, A_w_uk, A_w_uv, A_w_o, B_x, B_wqkv, B_w_phi, B_wo):
    def _A_ref(x, c_kv, w_q, w_uk, w_uv, w_o):
        B, Sq, M = x.shape[0], x.shape[1], x.shape[2]
        Sk = c_kv.shape[1]
        H, D = w_q.shape[1], w_q.shape[2]
        q = torch.einsum("bqm,mhd->bhqd", x, w_q)
        k = torch.einsum("bkc,chd->bhkd", c_kv, w_uk)
        v = torch.einsum("bkc,chd->bhkd", c_kv, w_uv)
        scores = torch.einsum("bhqd,bhkd->bhqk", q, k) * (D ** -0.5)
        off = Sk - Sq
        qi = torch.arange(Sq)[:, None]
        kj = torch.arange(Sk)[None, :]
        cmask = kj <= (qi + off)
        scores = torch.where(cmask[None, None], scores, -1e9)
        p = _softmax(scores, axis=-1)
        ctx = torch.einsum("bhqk,bhkd->bhqd", p, v)
        return torch.einsum("bhqd,hdm->bqm", ctx, w_o)

    def _B_ref(x, wqkv, w_phi, wo):
        B, S, D = x.shape
        H = 32; Dh = D // H
        qkv = (lambda x, *d: x.permute(*d))((x @ wqkv).reshape(B, S, 3, H, Dh), 2, 0, 3, 1, 4)
        q, k, v = qkv[0], qkv[1], qkv[2]
        pq = torch.einsum("bhsd,hdf->bhsf", q, w_phi)
        pk = torch.einsum("bhsd,hdf->bhsf", k, w_phi)
        phi_q = torch.concatenate([_softmax(pq, axis=-1), _softmax(-pq, axis=-1)], axis=-1)
        phi_k = torch.concatenate([_softmax(pk, axis=-1), _softmax(-pk, axis=-1)], axis=-1)
        kv = torch.einsum("bhsf,bhsd->bhfd", phi_k, v)
        z  = torch.einsum("bhsf->bhf", phi_k)
        num = torch.einsum("bhqf,bhfd->bhqd", phi_q, kv)
        den = torch.einsum("bhqf,bhf->bhq", phi_q, z)[..., None] + 1e-6
        o = num / den
        return (lambda x, *d: x.permute(*d))(o, 0, 2, 1, 3).reshape(B, S, D) @ wo

    a = _A_ref(A_x, A_c_kv, A_w_q, A_w_uk, A_w_uv, A_w_o)
    b = _B_ref(B_x, B_wqkv, B_w_phi, B_wo)
    return torch.concatenate([a, b], axis=-1)
```

```python
import re

class Asm:
    def __init__(self):
        self.lines = []
        self._lab = 0
    def __call__(self, s):
        for ln in s.strip("\n").split("\n"):
            self.lines.append("    " + ln.strip())
    def label(self, name):
        self.lines.append(name + ":")
    def newlabel(self, base="L"):
        self._lab += 1
        return f"{base}_{self._lab}"
    def comment(self, s):
        self.lines.append("    ; " + s)
    def raw(self, s):
        self.lines.append(s)
    def text(self):
        return "\n".join(self.lines) + "\n"

def v(i, n=1):
    return f"v{i}" if n == 1 else f"v[{i}:{i+n-1}]"
def a(i, n=1):
    return f"a{i}" if n == 1 else f"a[{i}:{i+n-1}]"
def s(i, n=1):
    return f"s{i}" if n == 1 else f"s[{i}:{i+n-1}]"

_REG = re.compile(r"\b([vas])(?:(\d+)|\[(\d+):(\d+)\])")
def regs_of(op):
    out = []
    for m in _REG.finditer(op):
        k = m.group(1)
        if m.group(2) is not None:
            out.append((k, int(m.group(2))))
        else:
            out += [(k, i) for i in range(int(m.group(3)), int(m.group(4)) + 1)]
    if re.search(r"\bvcc\b", op): out.append(("s", "vcc"))
    if re.search(r"\bexec\b", op): out.append(("s", "exec"))
    if re.search(r"\bm0\b", op): out.append(("s", "m0"))
    return out

TRANS = ("v_exp_f32", "v_log_f32", "v_rcp_f32", "v_rsq_f32", "v_sqrt_f32", "v_sin_f32", "v_cos_f32", "v_rcp_iflag_f32")

class Ins:
    def __init__(self, text):
        self.text = text
        t = text.split(";")[0].strip()
        parts = t.split(None, 1)
        self.op = parts[0]
        ops = [o.strip() for o in parts[1].split(",")] if len(parts) > 1 else []
        self.ops = ops
        op = self.op
        self.kind = "other"
        self.w = []; self.r = []
        self.srcc = []; self.srcab = []
        self.passes = 0
        self.states = 1
        if op == "s_nop":
            self.states = int(ops[0], 0) + 1
            self.kind = "nop"
        elif op.startswith("v_mfma"):
            self.kind = "mfma"
            self.passes = 8 if "32x32x16" in op else (4 if "16x16x32" in op else (2 if "4x4x4" in op else None))
            assert self.passes, op
            self.w = regs_of(ops[0]); self.srcab = regs_of(ops[1]) + regs_of(ops[2]); self.srcc = regs_of(ops[3])
            self.r = self.srcab + self.srcc
        elif op.startswith("v_"):
            self.kind = "valu"
            if op.startswith("v_cmp"):
                self.w = regs_of(ops[0]); self.r = sum((regs_of(o) for o in ops[1:]), [])
                if op.startswith("v_cmpx"): self.w.append(("s", "exec"))
            elif op.startswith("v_permlane") and "swap" in op:
                self.w = regs_of(ops[0]) + regs_of(ops[1]); self.r = list(self.w)
            elif op.startswith("v_readfirstlane") or op.startswith("v_readlane"):
                self.w = regs_of(ops[0]); self.r = sum((regs_of(o) for o in ops[1:]), [])
            elif op.startswith(("v_add_co", "v_sub_co", "v_addc_co", "v_subb_co")):
                self.w = regs_of(ops[0]) + regs_of(ops[1]); self.r = sum((regs_of(o) for o in ops[2:]), [])
            else:
                self.w = regs_of(ops[0]); self.r = sum((regs_of(o) for o in ops[1:]), [])
                if op.startswith(("v_fmac", "v_dot2c", "v_pk_fmac")) or "dpp" in op or "row_" in t: self.r += self.w
                if op.startswith("v_cndmask") and len(ops) == 3: self.r.append(("s", "vcc"))
        elif op.startswith("ds_"):
            self.kind = "ds"
            if "read" in op or "bpermute" in op:
                self.w = regs_of(ops[0]); self.r = sum((regs_of(o) for o in ops[1:]), [])
            else:
                self.r = sum((regs_of(o) for o in ops), [])
        elif op.startswith(("buffer_", "global_")):
            self.kind = "vmem"
            lds = bool(re.search(r"\blds\b", t)) or "load_lds" in op
            self.lds = lds
            if "load" in op and not lds:
                self.w = regs_of(ops[0]); self.r = sum((regs_of(o) for o in ops[1:]), [])
            elif "atomic" in op and "sc0" in t:
                self.w = regs_of(ops[0]); self.r = sum((regs_of(o) for o in ops), [])
            else:
                self.r = sum((regs_of(o) for o in ops), [])
                if lds: self.r.append(("s", "m0"))
            self.store_wide = ("store" in op) and ("x4" in op or "x3" in op)
            if self.store_wide:
                self.sdata = regs_of(ops[0]) if op.startswith("buffer_") else regs_of(ops[1])
        elif op.startswith("s_"):
            self.kind = "salu"
            if op.startswith(("s_cmp", "s_cbranch", "s_branch", "s_barrier", "s_waitcnt", "s_setprio", "s_endpgm", "s_sleep")):
                self.r = sum((regs_of(o) for o in ops), [])
            else:
                self.w = regs_of(ops[0]) if ops else []; self.r = sum((regs_of(o) for o in ops[1:]), [])
                if "saveexec" in op: self.w.append(("s", "exec"))

def check_hazards(lines, verbose=True):
    ins = []
    for ln in lines:
        t = ln.split(";")[0].strip()
        if not t or t.endswith(":") or t.startswith("."): continue
        ins.append(Ins(t))
    probs = []
    n = len(ins)
    for j in range(n):
        c = ins[j]
        dist = 0
        for i in range(j - 1, max(-1, j - 24), -1):
            p = ins[i]
            need = 0
            pw = set(p.w); cr = set(c.r); cw = set(c.w)
            if p.kind == "valu":
                vw = {x for x in pw if x[0] in "va"}
                sw = {x for x in pw if x[0] == "s"}
                if c.kind == "mfma" and vw & cr: need = max(need, 2)
                if c.kind == "mfma" and ("s", "exec") in pw: need = max(need, 4)
                if c.kind == "valu":
                    if c.op.startswith("v_permlane") and vw & cr: need = max(need, 2)
                    if ("dpp" in c.op or "row_" in c.text) and vw & cr: need = max(need, 2)
                    if c.op.startswith(("v_readfirstlane", "v_readlane")) and vw & cr: need = max(need, 1)
                    if p.op.startswith(TRANS) and not c.op.startswith(TRANS) and vw & cr: need = max(need, 1)
                    if p.op.startswith(TRANS) and vw & cr: need = max(need, 1)
                    if sw & cr: need = max(need, 2)
                    if ("s", "exec") in pw and c.op.startswith(("v_readfirstlane", "v_readlane", "v_permlane")): need = max(need, 4)
                if c.kind == "vmem" and sw & cr: need = max(need, 5)
            if p.kind == "salu" and ("s", "m0") in pw and c.kind == "vmem" and getattr(c, "lds", False): need = max(need, 1)
            if p.kind == "mfma":
                tab_c = {2: 4, 4: 6, 8: 10}[p.passes]
                tab_ab = {2: 5, 4: 8, 8: 12}[p.passes]
                tab_war = {2: 1, 4: 3, 8: 7}[p.passes]
                if c.kind == "mfma":
                    if pw & set(c.srcab): need = max(need, tab_ab)
                    if pw & set(c.srcc):
                        if c.srcc == p.w and c.passes == p.passes: need = max(need, 2 if p.passes == 2 else 0)
                        else: need = max(need, tab_c)
                    elif pw & cw:
                        need = max(need, tab_c)
                elif c.kind in ("valu", "ds", "vmem"):
                    if pw & (cr | cw): need = max(need, tab_ab)
                    if c.kind == "valu" and set(p.srcc) & cw: need = max(need, tab_war)
                    if c.kind in ("ds", "vmem") and set(p.srcc) & cw: need = max(need, tab_war)
            if p.kind == "vmem" and getattr(p, "store_wide", False):
                if set(p.sdata) & cw: need = max(need, 2)
            if p.kind == "ds" and "write" in p.op and ("b128" in p.op or "b96" in p.op):
                pass
            if need > dist:
                probs.append(f"HAZARD need {need} have {dist}: [{p.text}] -> [{c.text}]")
            dist += p.states
            if p.op in ("s_branch", "s_endpgm", "s_setpc_b64"): break
    if verbose:
        for p in probs: print(p)
    return probs
```

```python
from gen_common import *

LOG2E = 0x3fb8aa3b

def crosshalf(A, reg, tmp, op):
    A(f"v_mov_b32 {v(tmp)}, {v(reg)}\ns_nop 1\nv_permlane32_swap_b32 {v(reg)}, {v(tmp)}\n{op} {v(reg)}, {v(reg)}, {v(tmp)}")

def softmax8(A, b, dst, t0, sL):
    m, t = t0, t0 + 1
    A(f"v_max3_f32 {v(m)}, {v(b)}, {v(b+1)}, {v(b+2)}\nv_max3_f32 {v(m)}, {v(m)}, {v(b+3)}, {v(b+4)}")
    A(f"v_max3_f32 {v(m)}, {v(m)}, {v(b+5)}, {v(b+6)}\nv_max_f32 {v(m)}, {v(m)}, {v(b+7)}")
    crosshalf(A, m, t, "v_max_f32")
    A(f"v_mul_f32 {v(m)}, s{sL}, {v(m)}")
    for i in range(8): A(f"v_fma_f32 {v(b+i)}, {v(b+i)}, s{sL}, -{v(m)}")
    for i in range(8): A(f"v_exp_f32 {v(b+i)}, {v(b+i)}")
    A(f"v_add_f32 {v(m)}, {v(b)}, {v(b+1)}\nv_add_f32 {v(t)}, {v(b+2)}, {v(b+3)}")
    A(f"v_add_f32 {v(m)}, {v(m)}, {v(b+4)}\nv_add_f32 {v(t)}, {v(t)}, {v(b+5)}")
    A(f"v_add_f32 {v(m)}, {v(m)}, {v(b+6)}\nv_add_f32 {v(t)}, {v(t)}, {v(b+7)}\nv_add_f32 {v(m)}, {v(m)}, {v(t)}")
    crosshalf(A, m, t, "v_add_f32")
    A(f"v_rcp_f32 {v(m)}, {v(m)}\ns_nop 0")
    for i in range(0, 8, 2): A(f"v_pk_mul_f32 {v(b+i,2)}, {v(b+i,2)}, {v(m,2)} op_sel_hi:[1,0]")
    for p in range(4): A(f"v_cvt_pk_bf16_f32 {v(dst+p)}, {v(b+2*p)}, {v(b+2*p+1)}")

class BR:
    BWV = 160
    XA = 162
    WA = 166
    XC = 168; WC = 172
    PHV = 173
    WP = 176
    T = 184
    WR = 208
    FR = 0
    ACC = 32
    D = 80
    PK = 96
    QF = 112; KF = 120; VF = 128

def slot(st): return ((st + 4) % 5) * 32768

def b_setup(A, R, s):
    L = R.LANE; T = BR.T
    A(f"s_mov_b32 s{s.RBB}, s{s.H}\ns_lshr_b32 s{s.HP}, s2, 5")
    A(f"s_lshl_b32 s{s.BXO}, s{s.RBB}, 16\ns_lshl_b32 s{s.T0}, s{s.W}, 14\ns_add_u32 s{s.BXO}, s{s.BXO}, s{s.T0}")
    A(f"s_mul_i32 s{s.BWO}, s{s.W}, {16*3072}\ns_lshl_b32 s{s.T0}, s{s.HP}, 7\ns_add_u32 s{s.BWO}, s{s.BWO}, s{s.T0}")
    A(f"v_bfe_u32 {v(T)}, {v(L)}, 4, 1\nv_lshlrev_b32 {v(T)}, 2, {v(T)}\nv_and_b32 {v(T+1)}, 7, {v(L)}\nv_xor_b32 {v(T)}, {v(T)}, {v(T+1)}\nv_lshlrev_b32 {v(T)}, 4, {v(T)}")
    A(f"v_lshrrev_b32 {v(T+1)}, 3, {v(L)}\nv_mul_u32_u24 {v(T+1)}, 3072, {v(T+1)}\nv_add_u32 {v(BR.BWV)}, {v(T)}, {v(T+1)}\nv_add_u32 {v(BR.BWV+1)}, {8*3072-1024}, {v(BR.BWV)}")
    A(f"s_lshr_b32 s{s.T0}, s{s.W}, 1\ns_lshl_b32 s{s.T0}, s{s.T0}, 12")
    A(f"v_and_b32 {v(T)}, 31, {v(L)}\nv_bfe_u32 {v(T+1)}, {v(L)}, 1, 3\nv_lshrrev_b32 {v(T+2)}, 5, {v(L)}\nv_xor_b32 {v(T+1)}, {v(T+1)}, {v(T+2)}")
    A(f"v_lshlrev_b32 {v(T+1)}, 4, {v(T+1)}\nv_lshlrev_b32 {v(T)}, 7, {v(T)}\nv_add3_u32 {v(BR.XA)}, {v(T)}, {v(T+1)}, s{s.T0}")
    for t4 in range(1, 4): A(f"v_xor_b32 {v(BR.XA+t4)}, {t4<<5}, {v(BR.XA)}")
    A(f"s_and_b32 s{s.T0}, s{s.W}, 1")
    A(f"v_bfe_u32 {v(T)}, {v(L)}, 2, 2\nv_lshrrev_b32 {v(T+1)}, 5, {v(L)}\nv_lshl_add_u32 {v(T)}, {v(T+1)}, 3, {v(T)}\nv_lshlrev_b32 {v(T)}, 7, {v(T)}")
    A(f"v_bfe_u32 {v(T+1)}, {v(L)}, 3, 1\nv_xor_b32 {v(T+1)}, s{s.T0}, {v(T+1)}\nv_lshl_add_u32 {v(T)}, {v(T+1)}, 6, {v(T)}")
    A(f"v_bfe_u32 {v(T+1)}, {v(L)}, 4, 1\nv_lshl_add_u32 {v(T)}, {v(T+1)}, 5, {v(T)}")
    A(f"v_and_b32 {v(T+1)}, 3, {v(L)}\nv_lshl_add_u32 {v(T)}, {v(T+1)}, 3, {v(T)}\nv_add_u32 {v(BR.WA)}, 0x2000, {v(T)}")
    A(f"v_and_b32 {v(T)}, 15, {v(L)}\nv_lshlrev_b32 {v(T)}, 1, {v(T)}\nv_lshrrev_b32 {v(T+1)}, 5, {v(L)}\nv_lshl_add_u32 {v(BR.PHV)}, {v(T+1)}, 7, {v(T)}")

def b_dma_stage(R, s, st):
    L = []
    L.append(f"s_lshr_b32 s{s.T1}, s{s.DST}, 2")
    L.append(f"s_add_u32 m0, s{s.T1}, {slot(st)}")
    L.append(f"s_add_u32 s{s.SOFF}, s{s.BXO}, {st*128}")
    for j in range(2):
        L.append(f"buffer_load_dwordx4 {v(R.XV+j)}, s[{s.BX}:{s.BX+3}], s{s.SOFF} offen offset:{j*1024} lds")
    for seg in range(3):
        L.append(f"s_add_u32 m0, s{s.T1}, {slot(st) + 8192 + seg*8192}")
        L.append(f"s_add_u32 s{s.SOFF}, s{s.BWO}, {st*64*3072 + seg*1024}")
        for j in range(2):
            L.append(f"buffer_load_dwordx4 {v(BR.BWV+j)}, s[{s.BW}:{s.BW+3}], s{s.SOFF} offen offset:{j*1024} lds")
    return L

def b_wphi_loads(R, s):
    L = [f"s_lshl_b32 s{s.T1}, s{s.HP}, 11", f"s_and_b32 s{s.T2}, s{s.W}, 1", f"s_lshl_b32 s{s.T2}, s{s.T2}, 10", f"s_add_u32 s{s.T1}, s{s.T1}, s{s.T2}"]
    for hh in range(2):
        for e, d in enumerate((0, 1, 2, 3, 8, 9, 10, 11)):
            L.append(f"buffer_load_ushort {v(BR.WR + hh*8 + e)}, {v(BR.PHV)}, s[{s.BP}:{s.BP+3}], s{s.T1} offen offset:{hh*512 + d*32}")
    return L

def b_part1(A, cfg, R, s):
    B = BR
    L = R.LANE
    def addr_stage(st):
        return [f"v_add_u32 {v(B.XC+i)}, {slot(st)}, {v(B.XA+i)}" for i in range(4)] + [f"v_add_u32 {v(B.WC)}, {slot(st)}, {v(B.WA)}"]
    def frag_reads(k):
        t4 = k & 3; fs = B.FR + (k & 1) * 16
        Ls = [f"ds_read_b128 {v(fs + 12, 4)}, {v(B.XC+t4)}"]
        for seg in range(3):
            for rd in range(2):
                Ls.append(f"ds_read_b64_tr_b16 {v(fs + seg*4 + rd*2, 2)}, {v(B.WC)} offset:{seg*8192 + (16*t4 + 4*rd)*128}")
        return Ls
    for ln in addr_stage(0): A(ln)
    A("s_waitcnt vmcnt(32)\ns_barrier")
    for ln in frag_reads(0): A(ln)
    for k in range(32):
        st, t4 = k >> 2, k & 3
        fs = B.FR + (k & 1) * 16
        fill = []
        if t4 == 3:
            need_bar = st <= 2 or 4 <= st <= 6 or st == 7
            if 4 <= st <= 6: A(f"s_waitcnt vmcnt({(6 - st) * 8}) lgkmcnt(0)")
            else: A("s_waitcnt lgkmcnt(0)")
            if need_bar: A("s_barrier")
            if st < 7: fill += addr_stage(st + 1)
        else:
            A("s_waitcnt lgkmcnt(0)")
        if k < 31: fill += frag_reads(k + 1)
        if t4 == 3 and st <= 2: fill += b_dma_stage(R, s, st + 5)
        mf = []
        for seg in range(3):
            acc = B.ACC + seg * 16
            c = "0" if k == 0 else v(acc, 16)
            if seg < 2: mf.append(f"{MF32} {v(acc,16)}, {v(fs + seg*4, 4)}, {v(fs + 12, 4)}, {c}")
            else: mf.append(f"{MF32} {v(acc,16)}, {v(fs + 12, 4)}, {v(fs + seg*4, 4)}, {c}")
        n = len(fill)
        cut = [min(n, 7), min(n, 12)]
        A(mf[0]); [A(x) for x in fill[:cut[0]]]
        A(mf[1]); [A(x) for x in fill[cut[0]:cut[1]]]
        A(mf[2]); [A(x) for x in fill[cut[1]:]]
    stamp(A, cfg, 3)
    T = B.T
    sL = s.T2
    A(f"v_bfe_u32 {v(T)}, {v(L)}, 4, 1\nv_mul_u32_u24 {v(T)}, 0x8000, {v(T)}\nv_lshl_or_b32 {v(T)}, {v(T)}, 16, {v(T)}")
    for i in range(8): A(f"v_lshl_or_b32 {v(B.WP+i)}, {v(B.WR+2*i+1)}, 16, {v(B.WR+2*i)}")
    for i in range(8): A(f"v_xor_b32 {v(B.WP+i)}, {v(T)}, {v(B.WP+i)}")
    A(f"s_mov_b32 s{sL}, {hex(LOG2E)}")
    A(f"s_and_b32 s{s.T0}, s{s.W}, 1\ns_lshl_b32 s{s.T0}, s{s.T0}, 13\ns_lshr_b32 s{s.T1}, s{s.W}, 1\ns_lshl_b32 s{s.T1}, s{s.T1}, 11\ns_add_u32 s{s.T0}, s{s.T0}, s{s.T1}")
    A(f"v_and_b32 {v(T+2)}, 31, {v(L)}\nv_lshlrev_b32 {v(T+2)}, 6, {v(T+2)}\nv_lshrrev_b32 {v(T+3)}, 5, {v(L)}\nv_lshl_add_u32 {v(T+2)}, {v(T+3)}, 3, {v(T+2)}\nv_add_u32 {v(T+2)}, s{s.T0}, {v(T+2)}")
    A(f"s_lshr_b32 s{s.T0}, s{s.DST}, 2\nv_add_u32 {v(T+3)}, s{s.T0}, {v(R.LANE16)}")
    for p in range(8):
        A(f"v_cvt_pk_bf16_f32 {v(B.QF+p)}, {v(B.ACC+2*p)}, {v(B.ACC+2*p+1)}")
        A(f"v_cvt_pk_bf16_f32 {v(B.KF+p)}, {v(B.ACC+16+2*p)}, {v(B.ACC+16+2*p+1)}")
    for p in range(8):
        A(f"v_cvt_pk_bf16_f32 {v(B.VF+p)}, {v(B.ACC+32+2*p)}, {v(B.ACC+32+2*p+1)}")
    for t in range(2): A(f"ds_write_b128 {v(T+3)}, {v(B.VF+t*4,4)} offset:{16384 + t*1024}")
    for i, (src, hh) in enumerate(((B.KF, 0), (B.KF, 1), (B.QF, 0), (B.QF, 1))):
        A(f"{MF32} {v(32+i*16,16)}, {v(B.WP+hh*4,4)}, {v(src+hh*4,4)}, 0")
    A(f"s_lshl_b32 s{s.T0}, s{s.HP}, 2\ns_and_b32 s{s.T1}, s{s.W}, 1\ns_lshl_b32 s{s.T1}, s{s.T1}, 1\ns_add_u32 s{s.T0}, s{s.T0}, s{s.T1}\ns_lshl_b32 s{s.T0}, s{s.T0}, 17")
    A(f"s_lshl_b32 s{s.T1}, s{s.RBB}, 12\ns_add_u32 s{s.T0}, s{s.T0}, s{s.T1}\ns_lshr_b32 s{s.T1}, s{s.W}, 1\ns_lshl_b32 s{s.T1}, s{s.T1}, 11\ns_add_u32 s{s.T0}, s{s.T0}, s{s.T1}")
    A(f"s_add_u32 s{s.T0}, s{s.T0}, {hex(WS_PHIQ)}\ns_add_u32 s{s.T1}, s{s.T0}, 0x20000")
    for hh in range(2):
        for grp in range(2):
            softmax8(A, 32 + hh * 16 + grp * 8, B.PK + grp * 4, T, sL)
        for q in range(4):
            A(f"ds_write_b64 {v(T+2)}, {v(B.PK+q*2,2)} offset:{hh*4096 + q*16}")
    A("s_waitcnt lgkmcnt(0)\ns_barrier")
    A(f"s_lshr_b32 s{s.SOFF}, s{s.DST}, 1")
    A(f"v_bfe_u32 {v(T+4)}, {v(L)}, 2, 2\nv_lshrrev_b32 {v(T+5)}, 5, {v(L)}\nv_lshl_add_u32 {v(T+4)}, {v(T+5)}, 2, {v(T+4)}\nv_lshlrev_b32 {v(T+4)}, 6, {v(T+4)}")
    A(f"v_bfe_u32 {v(T+5)}, {v(L)}, 4, 1\nv_lshl_add_u32 {v(T+4)}, {v(T+5)}, 5, {v(T+4)}\nv_and_b32 {v(T+5)}, 3, {v(L)}\nv_lshl_add_u32 {v(T+4)}, {v(T+5)}, 3, {v(T+4)}\nv_add_u32 {v(T+4)}, s{s.SOFF}, {v(T+4)}")
    A(f"s_lshr_b32 s{s.SOFF}, s{s.W}, 1\ns_lshl_b32 s{s.SOFF}, s{s.SOFF}, 11\ns_and_b32 s{s.CO}, s{s.W}, 1\ns_lshl_b32 s{s.CO}, s{s.CO}, 8\ns_add_u32 s{s.SOFF}, s{s.SOFF}, s{s.CO}")
    A(f"v_and_b32 {v(T+5)}, 0x2ff, {v(R.LANE16)}\nv_add_u32 {v(T+5)}, s{s.SOFF}, {v(T+5)}")
    for u in range(4):
        for rd in range(2):
            A(f"ds_read_b64_tr_b16 {v(u*4 + rd*2, 2)}, {v(T+4)} offset:{(16*u + 8*rd)*64}")
        A(f"ds_read_b128 {v(16 + u*4, 4)}, {v(T+5)} offset:{16384 + (u>>1)*4096 + (u&1)*1024}")
    A(f"v_and_b32 {v(T+6)}, 16, {v(L)}\nv_cmp_ne_u32 vcc, 0, {v(T+6)}\nv_mov_b32 {v(T+6)}, 0x3f803f80")
    for hh in range(2):
        for grp in range(2):
            softmax8(A, 64 + hh * 16 + grp * 8, B.PK + hh * 8 + grp * 4, T, sL)
            A(f"buffer_store_dwordx4 {v(B.PK + hh*8 + grp*4, 4)}, {v(R.LANE16)}, s[{s.WS}:{s.WS+3}], s{s.T0 if hh == 0 else s.T1} offen offset:{grp*1024}")
    A("s_waitcnt lgkmcnt(0)")
    for i in range(16): A(f"v_cndmask_b32 {v(16+i)}, {v(16+i)}, {v(T+6)}, vcc")
    A("s_nop 1")
    for u in range(4):
        A(f"{MF32} {v(32,16)}, {v(u*4,4)}, {v(16+u*4,4)}, " + ("0" if u == 0 else v(32, 16)))
    A(f"s_lshl_b32 s{s.T0}, s{s.HP}, 2\ns_add_u32 s{s.T0}, s{s.T0}, s{s.W}\ns_lshl_b32 s{s.T0}, s{s.T0}, 5\ns_add_u32 s{s.T0}, s{s.T0}, s{s.RBB}\ns_lshl_b32 s{s.T0}, s{s.T0}, 12\ns_add_u32 s{s.T0}, s{s.T0}, {hex(WS_KVP)}")
    A("s_nop 7")
    for q in range(4):
        A(f"buffer_store_dwordx4 {v(32+q*4,4)}, {v(R.LANE16)}, s[{s.WS}:{s.WS+3}], s{s.T0} offen offset:{q*1024}")
    stamp(A, cfg, 4)

def b_part2(A, cfg, R, s):
    L = R.LANE
    T = 200
    A(f"s_lshl_b32 s{s.T0}, s{s.H}, 17\ns_lshl_b32 s{s.T1}, s{s.W}, 15\ns_add_u32 s{s.T0}, s{s.T0}, s{s.T1}\ns_add_u32 s{s.T0}, s{s.T0}, {hex(WS_KVP)}")
    for p in range(8):
        for q in range(4):
            A(f"buffer_load_dwordx4 {v(p*16 + q*4, 4)}, {v(R.LANE16)}, s[{s.WS}:{s.WS+3}], s{s.T0} offen offset:{q*1024}")
        A(f"s_add_u32 s{s.T0}, s{s.T0}, 0x1000")
    A(f"s_lshl_b32 s{s.T0}, s{s.H}, 17\ns_lshl_b32 s{s.T1}, s{s.I}, 14\ns_add_u32 s{s.T0}, s{s.T0}, s{s.T1}\ns_lshl_b32 s{s.T1}, s{s.W}, 12\ns_add_u32 s{s.T0}, s{s.T0}, s{s.T1}\ns_add_u32 s{s.T0}, s{s.T0}, {hex(WS_PHIQ)}")
    for q in range(4):
        A(f"buffer_load_dwordx4 {v(128 + q*4, 4)}, {v(R.LANE16)}, s[{s.WS}:{s.WS+3}], s{s.T0} offen offset:{q*1024}")
    A(f"s_lshl_b32 s{s.T1}, s{s.W}, 12\ns_add_u32 s{s.T1}, s{s.T1}, 0x18000\nv_add_u32 {v(T)}, s{s.T1}, {v(R.LANE16)}\nv_add_u32 {v(T+1)}, 0x18000, {v(R.LANE16)}")
    A(f"v_bfe_u32 {v(T+2)}, {v(L)}, 4, 1\nv_lshlrev_b32 {v(T+2)}, 14, {v(T+2)}\nv_and_b32 {v(T+3)}, 15, {v(L)}\nv_lshl_add_u32 {v(T+2)}, {v(T+3)}, 4, {v(T+2)}")
    A(f"v_lshrrev_b32 {v(T+3)}, 5, {v(L)}\nv_lshl_add_u32 {v(T+2)}, {v(T+3)}, 8, {v(T+2)}")
    A(f"s_lshl_b32 s{s.T0}, s{s.I}, 18\ns_lshl_b32 s{s.T1}, s{s.W}, 16\ns_add_u32 s{s.T0}, s{s.T0}, s{s.T1}\ns_lshl_b32 s{s.T1}, s{s.H}, 9\ns_add_u32 s{s.T0}, s{s.T0}, s{s.T1}\ns_add_u32 s{s.T0}, s{s.T0}, {hex(WS_OF)}")
    A(f"s_add_u32 s{s.T1}, s{s.T0}, 0x8000")
    for p in range(1, 8):
        A(f"s_waitcnt vmcnt({4 + (7-p)*4})")
        for i in range(0, 16, 2): A(f"v_pk_add_f32 {v(i,2)}, {v(i,2)}, {v(p*16+i,2)}")
    for q in range(4): A(f"ds_write_b128 {v(T)}, {v(q*4,4)} offset:{q*1024}")
    A("s_waitcnt lgkmcnt(0)\ns_barrier")
    for i in range(16): A(f"ds_read_b128 {v(i*4,4)}, {v(T+1)} offset:{i*1024}")
    A("s_waitcnt lgkmcnt(0) vmcnt(0)")
    for i in range(0, 16, 2):
        A(f"v_pk_add_f32 {v(i,2)}, {v(i,2)}, {v(16+i,2)}\nv_pk_add_f32 {v(32+i,2)}, {v(32+i,2)}, {v(48+i,2)}")
    for i in range(0, 16, 2): A(f"v_pk_add_f32 {v(i,2)}, {v(i,2)}, {v(32+i,2)}")
    for p in range(8): A(f"v_cvt_pk_bf16_f32 {v(16+p)}, {v(2*p)}, {v(2*p+1)}")
    A("s_nop 1")
    for t in range(2):
        A(f"{MF32} {v(32+t*16,16)}, {v(16,4)}, {v(128+t*8,4)}, 0")
    for t in range(2):
        A(f"{MF32} {v(32+t*16,16)}, {v(20,4)}, {v(128+t*8+4,4)}, {v(32+t*16,16)}")
    A("s_nop 15")
    for t in range(2):
        b = 32 + t * 16
        A(f"v_add_f32 {v(b+8)}, 0x358637bd, {v(b+8)}\nv_rcp_f32 {v(b+8)}, {v(b+8)}\ns_nop 0")
        for i in range(0, 8, 2): A(f"v_pk_mul_f32 {v(b+i,2)}, {v(b+i,2)}, {v(b+8,2)} op_sel_hi:[1,0]")
        for p in range(4): A(f"v_cvt_pk_bf16_f32 {v(b+12+p)}, {v(b+2*p)}, {v(b+2*p+1)}")
        A(f"buffer_store_dwordx4 {v(b+12,4)}, {v(T+2)}, s[{s.WS}:{s.WS+3}], s{s.T0 if t == 0 else s.T1} offen")
```

```python
from asmlib import *
from sched import Op, schedule
import re

MF32 = "v_mfma_f32_32x32x16_bf16"
MF16 = "v_mfma_f32_16x16x32_bf16"

WS_KV = 0
WS_CTX = 32 << 20
WS_PHIQ = 48 << 20
WS_KVP = 52 << 20
WS_OF = 56 << 20
WS_BYTES = 268435456

def kernel_header(A, name):
    A.raw(f".globl {name}\n.p2align 8\n.type {name},@function")
    A.label(name)

def kernel_desc(name, vgpr, accum, sgpr=102):
    return f""".amdhsa_kernel {name}
  .amdhsa_next_free_vgpr {vgpr}
  .amdhsa_next_free_sgpr {sgpr}
  .amdhsa_accum_offset {accum}
  .amdhsa_group_segment_fixed_size 0
  .amdhsa_kernarg_size 104
  .amdhsa_user_sgpr_count 2
  .amdhsa_user_sgpr_kernarg_segment_ptr 1
  .amdhsa_system_sgpr_workgroup_id_x 1
.end_amdhsa_kernel"""

def srd(A, d, base, nbytes):
    A(f"s_mov_b32 s{d}, s{base}\ns_and_b32 s{d+1}, s{base+1}, 0xffff\ns_mov_b32 s{d+2}, {hex(nbytes)}\ns_mov_b32 s{d+3}, 0x00020000")

def auto_lgkm(lines, lookback=20, carry_in=None):
    out = []
    pend = list(carry_in or [])
    for ln in lines:
        t = ln.split(";")[0].strip()
        if not t or t.endswith(":"):
            out.append(ln); continue
        ins = Ins(t)
        m = re.search(r"lgkmcnt\((\d+)\)", t)
        if ins.op == "s_waitcnt":
            if m:
                k = int(m.group(1))
                pend = pend[len(pend) - k:] if k < len(pend) and k > 0 else ([] if k == 0 else pend)
            out.append(ln); continue
        touched = set(ins.r) | set(ins.w)
        need = -1
        for q, (rs, pos) in enumerate(pend):
            if rs & touched: need = q
        if need >= 0:
            q = need
            while q + 1 < len(pend) and len(out) - pend[q + 1][1] >= lookback: q += 1
            k = len(pend) - 1 - q
            assert k <= 15
            out.append(f"s_waitcnt lgkmcnt({k})")
            pend = pend[q + 1:]
        if ins.kind == "ds":
            pend.append((set(ins.w), len(out)))
        out.append(ln)
    return out


WS_DBG = 128 << 20
STAMP_SG = [54, 56, 58, 60, 62, 44, 46, 100]
def stamp(A, cfg, i):
    if not cfg.get("stamps"): return
    x = STAMP_SG[i]
    A(f"s_memtime s[50:51]\ns_memrealtime s[52:53]\ns_waitcnt lgkmcnt(0)\ns_mov_b32 s{x}, s50\ns_mov_b32 s{x+1}, s52")
def stamp_flush(A, cfg, srdws, swave, lane, kidx=0):
    if not cfg.get("stamps"): return
    A("v_mov_b32 v0, 0\nv_mov_b32 v1, 0")
    for i, x in enumerate(STAMP_SG):
        A(f"v_writelane_b32 v0, s{x}, {i}\nv_writelane_b32 v1, s{x+1}, {i}")
    A(f"s_lshl_b32 s50, s2, 2\ns_add_u32 s50, s50, s{swave}\ns_lshl_b32 s50, s50, 9\ns_add_u32 s50, s50, {hex(WS_DBG + kidx*(1<<20))}")
    A(f"v_lshlrev_b32 v2, 2, v{lane}")
    A(f"buffer_store_dword v0, v2, s[{srdws}:{srdws+3}], s50 offen\nbuffer_store_dword v1, v2, s[{srdws}:{srdws+3}], s50 offen offset:256")
```

```python
from gen_common import *
from gen_k2 import weave, pk_scalar
import gen_b

class R:
    FR = 0
    XV = 128; WV = 132
    XC = 136
    WC = 140
    LANE16 = 156; LANE = 157; T = 158
    XF = 160
    BV = 128

class SG:
    WS = 4; C = 8; WK = 12; WV = 16
    W = 20; H = 21; RB = 22; DST = 23; SOFF = 24; CO = 25; WO = 26; T0 = 27; T1 = 28; T2 = 29; OUT = 30
    BX = 64; BW = 68; BP = 72
    RBB = 31; HP = 32; BXO = 33; BWO = 34

def xf(k): return R.XF + k * 4 if k < 24 else (k - 24) * 4

def main_gemm(A, cfg, isV):
    s = SG
    def dma_stage(st):
        buf = (st & 1) * 65536
        L = []
        for blk in range(2):
            L.append(f"s_add_u32 m0, s{s.DST}, {buf + blk*4096}")
            L.append(f"s_add_u32 s{s.SOFF}, s{s.CO}, {st*128 + blk*32768}")
            for j in range(4):
                L.append(f"buffer_load_dwordx4 {v(R.XV+j)}, s[{s.C}:{s.C+3}], s{s.SOFF} offen offset:{j*1024} lds")
        L.append(f"s_lshr_b32 s{s.T0}, s{s.DST}, 1")
        L.append(f"s_add_u32 s{s.SOFF}, s{s.WO}, {st*64*8192}")
        for m, sr in enumerate((s.WK, s.WV)):
            L.append(f"s_add_u32 m0, s{s.T0}, {buf + 32768 + m*16384}")
            L.append("s_nop 0")
            for j in range(4):
                L.append(f"buffer_load_dwordx4 {v(R.WV+j)}, s[{sr}:{sr+3}], s{s.SOFF} offen offset:{j*1024} lds")
        return L
    def frag_reads(k):
        st, t2 = k >> 1, k & 1; fs = R.FR + (k & 1) * 64; b = st & 1
        L = []
        for i in range(8):
            L.append(f"ds_read_b128 {v(fs + 32 + i*4, 4)}, {v(R.XC + b*2 + t2)} offset:{i*2048}")
            for rd in range(2):
                L.append(f"ds_read_b64_tr_b16 {v(fs + i*4 + rd*2, 2)}, {v(R.WC + b*8 + i)} offset:{(32*t2 + 4*rd)*256}")
        return L
    if isV == 0:
        return dma_stage, frag_reads
    return dma_stage, frag_reads

def k1(A, cfg, name="k1_kernel"):
    s = SG
    kernel_header(A, name)
    A("s_cmp_ge_u32 s2, 256\ns_cbranch_scc1 K1_end")
    A("s_load_dwordx2 s[44:45], s[0:1], 8\ns_load_dwordx4 s[76:79], s[0:1], 24\ns_load_dwordx2 s[48:49], s[0:1], 96")
    A("s_load_dwordx4 s[80:83], s[0:1], 48\ns_load_dwordx2 s[84:85], s[0:1], 64")
    L = R.LANE; T = 200
    A(f"v_lshrrev_b32 {v(T)}, 6, v0\nv_and_b32 {v(L)}, 63, v0\nv_lshlrev_b32 {v(R.LANE16)}, 4, {v(L)}")
    A(f"v_readfirstlane_b32 s{s.W}, {v(T)}")
    A(f"s_and_b32 s{s.H}, s2, 7\ns_lshl_b32 s{s.H}, s{s.H}, 2\ns_lshr_b32 s{s.T0}, s2, 3\ns_and_b32 s{s.T0}, s{s.T0}, 3\ns_add_u32 s{s.H}, s{s.H}, s{s.T0}")
    A(f"s_lshr_b32 s{s.RB}, s2, 5")
    A(f"s_lshl_b32 s{s.DST}, s{s.W}, 13")
    A(f"s_lshl_b32 s{s.CO}, s{s.RB}, 18\ns_lshl_b32 s{s.T0}, s{s.W}, 16\ns_add_u32 s{s.CO}, s{s.CO}, s{s.T0}")
    A(f"s_lshl_b32 s{s.WO}, s{s.H}, 8\ns_lshl_b32 s{s.T0}, s{s.W}, 17\ns_add_u32 s{s.WO}, s{s.WO}, s{s.T0}")
    A(f"v_lshrrev_b32 {v(T)}, 4, {v(L)}\nv_and_b32 {v(T+1)}, 7, {v(L)}\nv_xor_b32 {v(T)}, {v(T)}, {v(T+1)}\nv_lshlrev_b32 {v(T)}, 4, {v(T)}")
    A(f"v_lshrrev_b32 {v(T+1)}, 3, {v(L)}\nv_lshlrev_b32 {v(T+1)}, 10, {v(T+1)}\nv_add_u32 {v(R.XV)}, {v(T)}, {v(T+1)}")
    A(f"v_xor_b32 {v(T)}, 64, {v(R.XV)}")
    A(f"v_add_u32 {v(R.XV+1)}, {7168}, {v(T)}\nv_add_u32 {v(R.XV+2)}, {7168*2}, {v(R.XV)}\nv_add_u32 {v(R.XV+3)}, {7168*3}, {v(T)}")
    A(f"v_lshrrev_b32 {v(T)}, 4, {v(L)}\nv_lshlrev_b32 {v(T+1)}, 1, {v(T)}\nv_and_b32 {v(T+2)}, 15, {v(L)}\nv_xor_b32 {v(T+1)}, {v(T+1)}, {v(T+2)}")
    A(f"v_lshlrev_b32 {v(T+1)}, 4, {v(T+1)}\nv_lshlrev_b32 {v(T)}, 13, {v(T)}\nv_add_u32 {v(R.WV)}, {v(T)}, {v(T+1)}")
    A(f"v_xor_b32 {v(T)}, 128, {v(R.WV)}")
    A(f"v_add_u32 {v(R.WV+1)}, {31744}, {v(R.WV)}\nv_add_u32 {v(R.WV+2)}, {31744*2}, {v(T)}\nv_add_u32 {v(R.WV+3)}, {31744*3}, {v(T)}")
    A("s_waitcnt lgkmcnt(0)")
    srd(A, s.C, 44, 2048 * 512 * 2); srd(A, s.WK, 76, 512 * 4096 * 2); srd(A, s.WV, 78, 512 * 4096 * 2); srd(A, s.WS, 48, WS_BYTES)
    dma_stage, frag_reads = main_gemm(A, cfg, 0)
    stamp(A, cfg, 0)
    for st in range(2):
        for ln in dma_stage(st): A(ln)
    srd(A, s.BX, 80, 2048 * 512 * 2); srd(A, s.BW, 82, 512 * 1536 * 2); srd(A, s.BP, 84, 32 * 256 * 2)
    A(f"s_and_b32 s{s.T0}, s{s.W}, 1\ns_lshl_b32 s{s.T0}, s{s.T0}, 14")
    A(f"v_and_b32 {v(T)}, 15, {v(L)}\nv_lshrrev_b32 {v(T+1)}, 1, {v(T)}\nv_lshrrev_b32 {v(T+2)}, 4, {v(L)}\nv_xor_b32 {v(T+1)}, {v(T+1)}, {v(T+2)}")
    A(f"v_lshlrev_b32 {v(T+1)}, 4, {v(T+1)}\nv_lshlrev_b32 {v(T)}, 7, {v(T)}\nv_add3_u32 {v(R.XC)}, {v(T)}, {v(T+1)}, s{s.T0}")
    A(f"v_xor_b32 {v(R.XC+1)}, 64, {v(R.XC)}\nv_add_u32 {v(R.XC+2)}, 0x10000, {v(R.XC)}\nv_add_u32 {v(R.XC+3)}, 0x10000, {v(R.XC+1)}")
    A(f"s_lshr_b32 s{s.T1}, s{s.W}, 1\ns_lshl_b32 s{s.T0}, s{s.T1}, 14\ns_add_u32 s{s.T0}, s{s.T0}, 0x8000")
    A(f"v_bfe_u32 {v(T)}, {v(L)}, 2, 2")
    A(f"v_lshrrev_b32 {v(T+1)}, 4, {v(L)}\nv_lshlrev_b32 {v(T+1)}, 3, {v(T+1)}\nv_add_u32 {v(T+1)}, {v(T+1)}, {v(T)}\nv_lshlrev_b32 {v(T+1)}, 8, {v(T+1)}")
    A(f"v_bfe_u32 {v(T)}, {v(L)}, 2, 3\nv_lshlrev_b32 {v(T)}, 5, {v(T)}\nv_add_u32 {v(T+1)}, {v(T+1)}, {v(T)}")
    A(f"v_and_b32 {v(T)}, 3, {v(L)}\nv_lshlrev_b32 {v(T)}, 3, {v(T)}\nv_add3_u32 {v(R.WC)}, {v(T+1)}, {v(T)}, s{s.T0}")
    for dt in range(1, 8): A(f"v_xor_b32 {v(R.WC+dt)}, {dt<<5}, {v(R.WC)}")
    for dt in range(8): A(f"v_add_u32 {v(R.WC+8+dt)}, 0x10000, {v(R.WC+dt)}")
    A(f"s_lshl_b32 s{s.OUT}, s{s.H}, 20\ns_lshl_b32 s{s.T0}, s{s.RB}, 17\ns_add_u32 s{s.OUT}, s{s.OUT}, s{s.T0}")
    A(f"s_and_b32 s{s.T0}, s{s.W}, 1\ns_lshl_b32 s{s.T0}, s{s.T0}, 16\ns_add_u32 s{s.OUT}, s{s.OUT}, s{s.T0}")
    A(f"s_lshl_b32 s{s.T0}, s{s.T1}, 13\ns_add_u32 s{s.OUT}, s{s.OUT}, s{s.T0}")
    gen_b.b_setup(A, R, s)
    A("s_waitcnt vmcnt(16)\ns_barrier")
    for ln in frag_reads(0): A(ln)
    A(f"s_cmp_ge_u32 s{s.W}, 2\ns_cbranch_scc1 K1_vmain")
    for isV in range(2):
        if isV: A.label("K1_vmain")
        for k in range(16):
            st, t2 = k >> 1, k & 1
            fs = R.FR + (k & 1) * 64
            fill = []
            if t2 == 1:
                A("s_waitcnt vmcnt(0) lgkmcnt(0)" if st < 7 else "s_waitcnt lgkmcnt(0)")
                A("s_barrier")
            else:
                A("s_waitcnt lgkmcnt(0)")
            if k < 15: fill += [x for x in frag_reads(k + 1) if not (cfg.get('no_tr') and 'tr_b16' in x) and not (cfg.get('no_b128') and 'b128' in x)]
            if t2 == 1 and st <= 5 and not cfg.get('no_dma'): fill += dma_stage(st + 2)
            if k == 12: fill += gen_b.b_dma_stage(R, s, 0)
            if k == 14: fill += gen_b.b_wphi_loads(R, s)
            if k == 15:
                for bs in range(1, 5): fill += gen_b.b_dma_stage(R, s, bs)
            mf = []
            for i in range(8):
                for j in range(8):
                    dt, rt = (i, j)
                    if isV == 0:
                        acc = (rt * 8 + dt) * 4; Aop, Bop = fs + dt * 4, fs + 32 + rt * 4
                    else:
                        acc = (((rt >> 1) * 8 + dt) * 2 + (rt & 1)) * 4; Aop, Bop = fs + 32 + rt * 4, fs + dt * 4
                    c = "0" if k == 0 else a(acc, 4)
                    mf.append(f"{MF16} {a(acc,4)}, {v(Aop,4)}, {v(Bop,4)}, {c}")
            for b in weave(mf, fill): A(b)
        if isV == 0: A("s_branch K1_epi")
    A.label("K1_epi")
    stamp(A, cfg, 1)
    A("s_nop 7")
    for f in range(32):
        tb = 64 + (f & 3) * 12
        if (f & 3) == 0: A(f"s_add_u32 s{s.T0}, s{s.OUT}, {(f >> 3) * 16384 + ((f >> 2) & 1) * 4096}")
        for i in range(8): A(f"v_accvgpr_read_b32 {v(tb+i)}, {a(f*8+i)}")
        for p in range(4): A(f"v_cvt_pk_bf16_f32 {v(tb+8+p)}, {v(tb+2*p)}, {v(tb+2*p+1)}")
        A(f"buffer_store_dwordx4 {v(tb+8,4)}, {v(R.LANE16)}, s[{s.WS}:{s.WS+3}], s{s.T0} offen offset:{(f&3)*1024}")
    stamp(A, cfg, 2)
    if cfg.get("bpart", 1):
        gen_b.b_part1(A, cfg, R, SG)
    if cfg.get("stamps"): A("s_waitcnt vmcnt(0)")
    stamp(A, cfg, 7)
    stamp_flush(A, cfg, s.WS, s.W, R.LANE, 0)
    A.label("K1_end")
    A("s_endpgm")

if __name__ == "__main__":
    import sys, json
    cfg = json.loads(sys.argv[2]) if len(sys.argv) > 2 else {}
    A = Asm()
    A.raw("; @launch kernel=k1_kernel grid=(256,1,1) block=(256,1,1) lds=163840")
    A.raw('.amdgcn_target "amdgcn-amd-amdhsa--gfx950"\n.text')
    k1(A, cfg)
    check_hazards(A.lines)
    A.raw('.section .rodata,"a"\n.p2align 6')
    A.raw(kernel_desc("k1_kernel", 512, 256))
    open(sys.argv[1] if len(sys.argv) > 1 else "k1.s", "w").write(A.text())
```

```python
from gen_common import *

class R:
    S = 0; P = 64; NEGM = 80; O = 112
    M = 240
    MX = 244
    TMP = 248
    KADDR = 250; VADDR = 251; LANE16 = 252; LANE = 253; NINF = 254; MXA = 255
    XV = 128; WV = 132; XA = 136; WA = 140; XC = 148; WC = 152; T2 = 160
    KF = 0; VF = 32; Q = 64; QN = 128
    LS = 160
    ONES = 176
    FR = 160

class SG:
    WS = 4; X = 8; WQ = 12; KV = 16
    W = 20; H = 21; I = 22; BA = 23; KP = 24
    SRC = 25; SL0 = 26; SL1 = 27; SL2 = 28; DST = 29; SOFF = 30
    REM = 33; T = 34; TE = 35; NI = 36; T0 = 37; T1 = 38; T2 = 39; XA_ = 40; XB_ = 41; WQO = 42; FLG = 43
    MASK = 64

def Sreg(buf, qt, kt=0): return R.S + buf * 32 + (qt * 2 + kt) * 4
def Nreg(qt, kt=0): return R.NEGM + (qt * 2 + kt) * 4
def Preg(qt): return R.P + qt * 4
def Oreg(qt, dt=0): return R.O + (qt * 8 + dt) * 4
def Qreg(qt, t=0): return R.Q + (qt * 4 + t) * 4
def MXr(qs): return R.MX + 2 * qs

def dma_half(cfg, half, slot_sg=None, slot_imm=None):
    s = SG
    L = []
    if half == 0:
        L.append(f"s_add_u32 m0, s{s.DST}, " + (f"s{slot_sg}" if slot_sg is not None else str(slot_imm)))
        L.append(f"s_add_u32 s{s.SOFF}, s{s.SRC}, 0x1000")
        for j in range(4):
            L.append(f"buffer_load_dwordx4 {v(R.LANE16)}, s[{s.KV}:{s.KV+3}], s{s.SRC} offen offset:{j*1024} lds")
    else:
        L.append(f"s_add_u32 m0, m0, 0x1000")
        L.append(f"s_add_u32 s{s.SRC}, s{s.SRC}, 0x8000")
        for j in range(4):
            L.append(f"buffer_load_dwordx4 {v(R.LANE16)}, s[{s.KV}:{s.KV+3}], s{s.SOFF} offen offset:{j*1024} lds")
    return L

def rot_slots():
    s = SG
    return [f"s_mov_b32 s{s.SL2}, s{s.SL1}", f"s_mov_b32 s{s.SL1}, s{s.SL0}", f"s_add_u32 s{s.SL0}, s{s.SL0}, 0x8000",
            f"s_cmp_eq_u32 s{s.SL0}, 0x28000", f"s_cselect_b32 s{s.SL0}, 0, s{s.SL0}"]

def rem_ops(lim):
    s = SG
    return [f"s_sub_u32 s{s.REM}, s{s.REM}, 1", f"s_cmp_le_u32 s{s.REM}, {lim}", f"s_cselect_b32 s{s.TE}, s{s.NI}, s{s.T}"]

def period(cfg, cur, voff, dma, salu, vaddr, do_qk=True, do_pv=True):
    s = SG
    nxt = 1 - cur
    PVW = 9
    NS = 32 + 4 * PVW
    mf = []
    for kt in range(2):
        for t in range(4):
            for qt in range(4):
                d = Sreg(nxt, qt, kt)
                c = v(Nreg(qt, kt), 4) if t == 0 else v(d, 4)
                mf.append(f"{MF16} {v(d,4)}, {a(R.KF + (kt*4+t)*4, 4)}, {a(Qreg(qt,t), 4)}, {c}" if do_qk else "s_nop 0")
    for qt in range(4):
        for dt in range(8):
            o = Oreg(qt, dt)
            mf.append(f"{MF16} {v(o,4)}, {a(R.VF + dt*4, 4)}, {v(Preg(qt),4)}, {v(o,4)}" if do_pv else None)
        mf.append(f"{MF16} {a(R.LS+qt*4,4)}, {a(R.ONES, 4)}, {v(Preg(qt),4)}, {a(R.LS+qt*4,4)}" if do_pv else None)
    ops = []
    if do_pv:
        n = 0
        espan = cfg.get("espan", 56) if do_qk else 40
        for qt in range(4):
            dl_cvt = 32 + PVW * qt - 3
            base = Sreg(cur, qt)
            for p in range(4):
                dle = n * espan // 16
                n += 1
                e0 = Op(f"v_exp_f32 {v(base+2*p)}, {v(base+2*p)}", dl=dle, hard=dl_cvt - 2)
                e1 = Op(f"v_exp_f32 {v(base+2*p+1)}, {v(base+2*p+1)}", dl=dle + 1, hard=dl_cvt - 1)
                cv = Op(f"v_cvt_pk_bf16_f32 {v(Preg(qt)+p)}, {v(base+2*p)}, {v(base+2*p+1)}", dl=dle + 3, hard=dl_cvt, after=[e0, e1])
                ops += [e0, e1, cv]
    prev = None
    if do_pv:
        for i in range(8):
            g = i * 3
            o = Op(f"ds_read_b128 {a(R.VF + i*4, 4)}, {v(R.VADDR)} offset:{voff + i*1024}", rel=g, dl=g + 2, hard=26, after=[prev])
            ops.append(o); prev = o
    if do_qk:
        for t in range(8):
            g = (cfg.get("k_first", 28) + t * 4) if do_pv else 4 * t + 4
            o = Op(f"ds_read_b128 {a(R.KF + t*4, 4)}, {v(R.KADDR)} offset:{t*1024}", rel=g, dl=g + 3, hard=NS - 5, after=[prev])
            ops.append(o); prev = o
    lastds = prev
    prev = None
    nd = sum(1 for t in dma if t.startswith("buffer"))
    k = 0
    firstm0 = None; m0op = None
    for txt in dma:
        g = cfg.get("dma_first", 2) + k * cfg.get("dma_span", 60) // max(nd, 1)
        if txt.startswith("s_"):
            o = Op(txt, rel=max(0, g - 3), dl=g, later=[prev] if (prev and prev.cat == "m") else [], after=[prev])
            if txt.split()[1].startswith("m0"): m0op = o
            if firstm0 is None: firstm0 = o
        else:
            o = Op(txt, rel=g, dl=g + 3, after=[prev], later=[m0op]); k += 1
        ops.append(o); prev = o
    sp = None
    i = 0
    while i < len(salu):
        if salu[i].startswith("s_cmp"):
            txt = salu[i] + "\n" + salu[i + 1]; i += 2
        else:
            txt = salu[i]; i += 1
        o = Op(txt, rel=4, dl=50, after=[sp, firstm0])
        if "\n" in txt: o.glue = 4
        ops.append(o); sp = o
    if do_qk:
        for txt in vaddr:
            ops.append(Op(txt, rel=NS - 10, dl=NS - 2, after=[lastds, sp]))
        prevm = [None, None]
        n = 0
        for kt in range(2):
            mrel = (22 if kt == 0 else 38) if do_pv else 40
            for qt in range(4):
                for hh in range(2):
                    qs = qt >> 1
                    b = Sreg(nxt, qt, kt) + 2 * hh
                    dl = cfg.get('mx_dl', 50) + n; n += 1
                    if prevm[qs] is None: o = Op(f"v_max_f32 {v(MXr(qs))}, {v(b)}, {v(b+1)}", rel=mrel, dl=dl)
                    else: o = Op(f"v_max3_f32 {v(MXr(qs))}, {v(MXr(qs))}, {v(b)}, {v(b+1)}", rel=mrel, dl=dl, after=[prevm[qs]])
                    ops.append(o); prevm[qs] = o
        o = Op(f"v_max_f32 {v(R.MXA)}, {v(MXr(0))}, {v(MXr(1))}", dl=NS - 2, after=prevm)
        ops.append(o)
        ops.append(Op(f"v_cmp_nge_f32 vcc, s{s.TE}, {v(R.MXA)}", dl=NS - 2, after=[o, sp]))
    pre = {}
    if not do_pv: pre[40] = ["s_nop 7"]
    body = schedule(mf, ops, budget=cfg.get("budget", 8), pre=pre, reserve={31: 4, NS - 1: 8}, verbose=cfg.get("verbose"))
    lines = []
    for b in body: lines += b.split("\n")
    return auto_lgkm(lines, lookback=cfg.get("lookback", 12))

def rowred(A, reg, tmp, op):
    A(f"v_mov_b32 {v(tmp)}, {v(reg)}\ns_nop 1\nv_permlane16_swap_b32 {v(reg)}, {v(tmp)}\n{op} {v(reg)}, {v(reg)}, {v(tmp)}")
    A(f"v_mov_b32 {v(tmp)}, {v(reg)}\ns_nop 1\nv_permlane32_swap_b32 {v(reg)}, {v(tmp)}\n{op} {v(reg)}, {v(reg)}, {v(tmp)}")

def rowmax(A, nxt, qt, mx):
    b = Sreg(nxt, qt)
    A(f"v_max3_f32 {v(mx)}, {v(b)}, {v(b+1)}, {v(b+2)}\nv_max3_f32 {v(mx)}, {v(mx)}, {v(b+3)}, {v(b+4)}")
    A(f"v_max3_f32 {v(mx)}, {v(mx)}, {v(b+5)}, {v(b+6)}\nv_max_f32 {v(mx)}, {v(mx)}, {v(b+7)}")
    rowred(A, mx, R.TMP, "v_max_f32")

def apply_mask(A, qs, sD):
    s = SG
    ld, le = A.newlabel("Lmd"), A.newlabel("Lme")
    A(f"s_cmp_lt_i32 s{sD}, 0\ns_cbranch_scc1 {le}")
    A(f"s_cmp_eq_i32 s{sD}, 0\ns_cbranch_scc1 {ld}")
    for r in range(16): A(f"v_mov_b32 {v(Nreg(2*qs)+r)}, {v(R.NINF)}")
    A(f"s_branch {le}")
    A.label(ld)
    for r in range(4):
        A(f"v_cndmask_b32 {v(Nreg(2*qs,0)+r)}, {v(Nreg(2*qs,0)+r)}, {v(R.NINF)}, s[{s.MASK+2*r}:{s.MASK+2*r+1}]")
        A(f"v_mov_b32 {v(Nreg(2*qs,1)+r)}, {v(R.NINF)}")
        A(f"v_cndmask_b32 {v(Nreg(2*qs+1,1)+r)}, {v(Nreg(2*qs+1,1)+r)}, {v(R.NINF)}, s[{s.MASK+2*r}:{s.MASK+2*r+1}]")
    A.label(le)

def pk_scalar(op, A, base, n, sc):
    for i in range(0, n, 2):
        A(f"{op} {v(base+i,2)}, {v(base+i,2)}, {v(sc,2)} op_sel_hi:[1,0]")

def slow_path(A, nxt, slots=(0, 1)):
    A("s_nop 7")
    mx = R.MX
    for qs in slots:
        for qt in (2 * qs, 2 * qs + 1):
            rowmax(A, nxt, qt, mx)
            A(f"v_ceil_f32 {v(mx)}, {v(mx)}\nv_max_f32 {v(mx)}, 0, {v(mx)}")
            A(f"v_add_f32 {v(R.M+qt)}, {v(R.M+qt)}, {v(mx)}\nv_sub_f32 {v(mx)}, 0, {v(mx)}")
            pk_scalar("v_pk_add_f32", A, Sreg(nxt, qt), 8, mx)
            A(f"v_exp_f32 {v(mx)}, {v(mx)}")
            A(f"v_sub_f32 {v(R.TMP)}, 0, {v(R.M+qt)}")
            for i in range(8): A(f"v_mov_b32 {v(Nreg(qt)+i)}, {v(R.TMP)}")
            A(f"v_accvgpr_read_b32 {v(R.TMP)}, {a(R.LS+qt*4)}\nv_mul_f32 {v(R.TMP)}, {v(R.TMP)}, {v(mx)}")
            for i in range(4): A(f"v_accvgpr_write_b32 {a(R.LS+qt*4+i)}, {v(R.TMP)}")
            pk_scalar("v_pk_mul_f32", A, Oreg(qt), 32, mx)
    A("s_nop 1")

def init_path(A, nxt, qs):
    mx = MXr(1)
    for qt in (2 * qs, 2 * qs + 1):
        rowmax(A, nxt, qt, mx)
        A(f"v_max_f32 {v(mx)}, 0xf149f2ca, {v(mx)}")
        A(f"v_ceil_f32 {v(R.M+qt)}, {v(mx)}\nv_sub_f32 {v(mx)}, 0, {v(R.M+qt)}")
        pk_scalar("v_pk_add_f32", A, Sreg(nxt, qt), 8, mx)
        for i in range(8): A(f"v_mov_b32 {v(Nreg(qt)+i)}, {v(mx)}")
        for i in range(4): A(f"v_accvgpr_write_b32 {a(R.LS+qt*4+i)}, 0")
        for i in range(32): A(f"v_mov_b32 {v(Oreg(qt)+i)}, 0")

def ctx_addr(A, sblk):
    s = SG
    A(f"s_lshl_b32 s{s.T0}, s{sblk}, 2\ns_add_u32 s{s.T0}, s{s.T0}, s{s.W}\ns_lshl_b32 s{s.T0}, s{s.T0}, 18")
    A(f"s_lshl_b32 s{s.T1}, s{s.H}, 12\ns_add_u32 s{s.T0}, s{s.T0}, s{s.T1}\ns_add_u32 s{s.T0}, s{s.T0}, {hex(WS_CTX)}")
    A(f"s_add_u32 s{s.T1}, s{s.T0}, 0x20000")

def store_frag(A, f, src, dst):
    s = SG
    for p in range(4):
        A(f"v_cvt_pk_bf16_f32 {v(dst + p)}, {v(src+2*p)}, {v(src+2*p+1)}")
    A(f"buffer_store_dwordx4 {v(dst,4)}, {v(R.LANE16)}, s[{s.WS}:{s.WS+3}], s{s.T0 if f < 4 else s.T1} offen offset:{(f&3)*1024}")

def epilogue_b(A):
    s = SG
    ctx_addr(A, s.I)
    A("s_nop 3")
    for q in range(2):
        A(f"v_accvgpr_read_b32 {v(R.TMP)}, {a(R.LS+(2+q)*4)}\ns_nop 0\nv_rcp_f32 {v(R.TMP)}, {v(R.TMP)}\ns_nop 0")
        for e in range(4):
            b = Oreg(2 + q) + e * 8
            pk_scalar("v_pk_mul_f32", A, b, 8, R.TMP)
            store_frag(A, q * 4 + e, b, 32 + (q * 4 + e) * 4)

def epilogue_a(A):
    s = SG
    A(f"s_mul_i32 s{s.T0}, s{s.W}, 17408\ns_xor_b32 s{s.T1}, s{s.W}, 1\ns_mul_i32 s{s.T1}, s{s.T1}, 17408")
    A(f"v_add_u32 {v(R.KADDR)}, s{s.T0}, {v(R.LANE16)}\nv_add_u32 {v(R.VADDR)}, s{s.T1}, {v(R.LANE16)}")
    A(f"v_mov_b32 v96, {v(R.M+2)}\nv_mov_b32 v97, {v(R.M+3)}\ns_nop 3")
    A(f"v_accvgpr_read_b32 v98, {a(R.LS+8)}\nv_accvgpr_read_b32 v99, {a(R.LS+12)}")
    A(f"v_accvgpr_read_b32 v100, {a(R.LS)}\nv_accvgpr_read_b32 v101, {a(R.LS+4)}")
    A("s_waitcnt vmcnt(0)\ns_barrier")
    A(f"ds_write_b128 {v(R.KADDR)}, v[96:99] offset:16384")
    for i in range(16):
        A(f"ds_write_b128 {v(R.KADDR)}, {v(Oreg(2)+i*4,4)} offset:{i*1024}")
    ctx_addr(A, s.BA)
    A("s_waitcnt lgkmcnt(0)\ns_barrier")
    A(f"ds_read_b128 v[96:99], {v(R.VADDR)} offset:16384")
    for i in range(16):
        A(f"ds_read_b128 {v(i*4,4)}, {v(R.VADDR)} offset:{i*1024}")
    A("s_waitcnt lgkmcnt(15)")
    for q in range(2):
        W0, W1 = 102 + q * 4, 104 + q * 4
        A(f"v_max_f32 {v(R.MXA)}, {v(R.M+q)}, v{96+q}")
        A(f"v_sub_f32 {v(W0)}, {v(R.M+q)}, {v(R.MXA)}\nv_sub_f32 {v(W1)}, v{96+q}, {v(R.MXA)}")
        A(f"v_exp_f32 {v(W0)}, {v(W0)}\nv_exp_f32 {v(W1)}, {v(W1)}\ns_nop 0")
        A(f"v_mul_f32 v{100+q}, v{100+q}, {v(W0)}\nv_fma_f32 v{100+q}, v{98+q}, {v(W1)}, v{100+q}")
        A(f"v_rcp_f32 v{100+q}, v{100+q}\ns_nop 0")
        A(f"v_mul_f32 {v(W0)}, {v(W0)}, v{100+q}\nv_mul_f32 {v(W1)}, {v(W1)}, v{100+q}")
    for f in range(8):
        q = f >> 2
        W0, W1 = 102 + q * 4, 104 + q * 4
        b = Oreg(0) + f * 8
        pk_scalar("v_pk_mul_f32", A, b, 8, W0)
        A(f"s_waitcnt lgkmcnt({14 - 2*f})")
        for i in range(0, 8, 2):
            A(f"v_pk_fma_f32 {v(b+i,2)}, {v(f*8+i,2)}, {v(W1,2)}, {v(b+i,2)} op_sel_hi:[1,0,1]")
        store_frag(A, f, b, 64 + f * 4)

def weave(mf, fill, budget=8):
    out = []
    fl = []
    for t in fill: fl += t.split("\n")
    i = 0
    for g in range(len(mf)):
        out.append(mf[g])
        used = 0; first = True
        while i < len(fl):
            t = fl[i]
            c = 8 if t.startswith("buffer") else (0 if (first and t.startswith("s_")) else 4)
            if t.startswith("buffer") and out[-1].startswith("s_add_u32 m0"): break
            if g < len(mf) - 1 and used + c > budget: break
            out.append(t); used += c; i += 1; first = False
    assert i == len(fl)
    return out

def qproj(A, cfg):
    s = SG
    BUFSZ = 49152
    def dma_stage(st):
        buf = (st % 3) * BUFSZ
        L = []
        for blk in range(2):
            L.append(f"s_add_u32 m0, s{s.DST}, {buf + blk*4096}")
            L.append(f"s_add_u32 s{s.SOFF}, s{s.XA_ + blk}, {st*128}")
            for j in range(4):
                L.append(f"buffer_load_dwordx4 {v(R.XV+j)}, s[{s.X}:{s.X+3}], s{s.SOFF} offen offset:{j*1024} lds")
        L.append(f"s_lshr_b32 s{s.T0}, s{s.DST}, 1\ns_add_u32 m0, s{s.T0}, {buf + 32768}")
        L.append(f"s_add_u32 s{s.SOFF}, s{s.WQO}, {st*64*8192}")
        for j in range(4):
            L.append(f"buffer_load_dwordx4 {v(R.WV+j)}, s[{s.WQ}:{s.WQ+3}], s{s.SOFF} offen offset:{j*1024} lds")
        return L
    def addr_stage(st):
        buf = (st % 3) * BUFSZ
        return [f"v_add_u32 {v(R.XC+i)}, {buf}, {v(R.XA+i)}" for i in range(2)] + [f"v_add_u32 {v(R.WC+i)}, {buf}, {v(R.WA+i)}" for i in range(8)]
    def frag_reads(k):
        t2 = k & 1; fs = R.FR + (k & 1) * 48
        L = []
        for rt in range(4):
            L.append(f"ds_read_b128 {a(fs + 32 + rt*4, 4)}, {v(R.XC+t2)} offset:{rt*2048}")
        for dt in range(8):
            for rd in range(2):
                L.append(f"ds_read_b64_tr_b16 {a(fs + dt*4 + rd*2, 2)}, {v(R.WC+dt)} offset:{(32*t2 + 4*rd)*256}")
        return L
    def ring(slot):
        return dma_half(cfg, 0, slot_imm=slot * 32768) + dma_half(cfg, 1)
    for st in range(3):
        for ln in dma_stage(st): A(ln)
    for ln in addr_stage(0): A(ln)
    A("s_waitcnt vmcnt(24)\ns_barrier")
    for ln in frag_reads(0): A(ln)
    undo = f"s_sub_u32 s{s.SRC}, s{s.SRC}, s{s.T2}"
    for k in range(16):
        st, t2 = k >> 1, k & 1
        fs = R.FR + (k & 1) * 48
        fill = []; tailv = []
        if t2 == 1:
            if st < 7: A(f"s_waitcnt vmcnt({12 if st <= 5 else 16}) lgkmcnt(0)")
            else: A("s_waitcnt lgkmcnt(0)")
            A("s_barrier")
        else:
            A("s_waitcnt lgkmcnt(0)")
            if st < 7: tailv = addr_stage(st + 1)
        if k < 15: fill += frag_reads(k + 1)
        if t2 == 1:
            if st <= 4: fill += dma_stage(st + 3)
            elif st == 5: fill += ring(3) + [undo]
            elif st == 6: fill += ring(0)
            else: fill += ring(1)
        if k == 12: fill += ring(4) + [undo, f"s_mov_b32 s{s.KV+2}, s{s.FLG}"]
        fill += tailv
        mf = []
        for dt in range(8):
            for rt in range(4):
                acc = (rt * 8 + dt) * 4
                c = "0" if k == 0 else v(acc, 4)
                mf.append(f"{MF16} {v(acc,4)}, {a(fs + dt*4, 4)}, {a(fs + 32 + rt*4, 4)}, {c}")
        for b in weave(mf, fill): A(b)

def k2(A, cfg, name="k2_kernel"):
    s = SG
    THRESH = cfg.get("thresh", 0x42800000)
    kernel_header(A, name)
    A("s_cmp_ge_u32 s2, 256\ns_cbranch_scc1 K2_end")
    A("s_load_dwordx2 s[44:45], s[0:1], 0\ns_load_dwordx2 s[46:47], s[0:1], 16\ns_load_dwordx2 s[48:49], s[0:1], 96")
    A(f"v_lshrrev_b32 {v(R.T2)}, 6, v0\nv_and_b32 {v(R.LANE)}, 63, v0\nv_lshlrev_b32 {v(R.LANE16)}, 4, {v(R.LANE)}")
    A(f"v_readfirstlane_b32 s{s.W}, {v(R.T2)}")
    A(f"s_and_b32 s{s.H}, s2, 7\ns_lshl_b32 s{s.H}, s{s.H}, 2\ns_lshr_b32 s{s.T0}, s2, 3\ns_and_b32 s{s.T0}, s{s.T0}, 3\ns_add_u32 s{s.H}, s{s.H}, s{s.T0}")
    A(f"s_lshr_b32 s{s.I}, s2, 5\ns_sub_u32 s{s.BA}, 15, s{s.I}")
    A(f"s_lshl_b32 s{s.DST}, s{s.W}, 13")
    A(f"s_lshl_b32 s{s.T0}, s{s.W}, 15")
    A(f"s_lshl_b32 s{s.XA_}, s{s.BA}, 17\ns_add_u32 s{s.XA_}, s{s.XA_}, s{s.T0}")
    A(f"s_lshl_b32 s{s.XB_}, s{s.I}, 17\ns_add_u32 s{s.XB_}, s{s.XB_}, s{s.T0}")
    A(f"s_lshl_b32 s{s.WQO}, s{s.H}, 8\ns_lshl_b32 s{s.T0}, s{s.W}, 17\ns_add_u32 s{s.WQO}, s{s.WQO}, s{s.T0}")
    L = R.LANE; T = R.T2
    A(f"v_lshrrev_b32 {v(T)}, 4, {v(L)}\nv_and_b32 {v(T+1)}, 7, {v(L)}\nv_xor_b32 {v(T)}, {v(T)}, {v(T+1)}\nv_lshlrev_b32 {v(T)}, 4, {v(T)}")
    A(f"v_lshrrev_b32 {v(T+1)}, 3, {v(L)}\nv_lshlrev_b32 {v(T+1)}, 10, {v(T+1)}\nv_add_u32 {v(R.XV)}, {v(T)}, {v(T+1)}")
    A(f"v_xor_b32 {v(T)}, 64, {v(R.XV)}")
    A(f"v_add_u32 {v(R.XV+1)}, {7168}, {v(T)}\nv_add_u32 {v(R.XV+2)}, {7168*2}, {v(R.XV)}\nv_add_u32 {v(R.XV+3)}, {7168*3}, {v(T)}")
    A(f"v_lshrrev_b32 {v(T)}, 4, {v(L)}\nv_lshlrev_b32 {v(T+1)}, 1, {v(T)}\nv_and_b32 {v(T+2)}, 15, {v(L)}\nv_xor_b32 {v(T+1)}, {v(T+1)}, {v(T+2)}")
    A(f"v_lshlrev_b32 {v(T+1)}, 4, {v(T+1)}\nv_lshlrev_b32 {v(T)}, 13, {v(T)}\nv_add_u32 {v(R.WV)}, {v(T)}, {v(T+1)}")
    A(f"v_xor_b32 {v(T)}, 128, {v(R.WV)}")
    A(f"v_add_u32 {v(R.WV+1)}, {31744}, {v(R.WV)}\nv_add_u32 {v(R.WV+2)}, {31744*2}, {v(T)}\nv_add_u32 {v(R.WV+3)}, {31744*3}, {v(T)}")
    A(f"v_and_b32 {v(T)}, 15, {v(L)}\nv_lshrrev_b32 {v(T+1)}, 1, {v(T)}\nv_lshrrev_b32 {v(T+2)}, 4, {v(L)}\nv_xor_b32 {v(T+1)}, {v(T+1)}, {v(T+2)}")
    A(f"v_lshlrev_b32 {v(T+1)}, 4, {v(T+1)}\nv_lshlrev_b32 {v(T)}, 7, {v(T)}\nv_add3_u32 {v(R.XA)}, {v(T)}, {v(T+1)}, s{s.DST}")
    A(f"v_xor_b32 {v(R.XA+1)}, 64, {v(R.XA)}")
    A(f"v_bfe_u32 {v(T)}, {v(L)}, 2, 2")
    A(f"v_lshrrev_b32 {v(T+1)}, 4, {v(L)}\nv_lshlrev_b32 {v(T+1)}, 3, {v(T+1)}\nv_add_u32 {v(T+1)}, {v(T+1)}, {v(T)}\nv_lshlrev_b32 {v(T+1)}, 8, {v(T+1)}")
    A(f"v_bfe_u32 {v(T)}, {v(L)}, 2, 3\nv_lshlrev_b32 {v(T)}, 5, {v(T)}\nv_add_u32 {v(T+1)}, {v(T+1)}, {v(T)}")
    A(f"v_and_b32 {v(T)}, 3, {v(L)}\nv_lshlrev_b32 {v(T)}, 3, {v(T)}\nv_add_u32 {v(T+1)}, {v(T+1)}, {v(T)}")
    A(f"v_add_u32 {v(R.WA)}, 0x8000, {v(T+1)}")
    for dt in range(1, 8): A(f"v_xor_b32 {v(R.WA+dt)}, {dt<<5}, {v(R.WA)}")
    A(f"v_and_b32 {v(T)}, 15, {v(L)}\nv_lshrrev_b32 {v(T+1)}, 4, {v(L)}\nv_lshlrev_b32 {v(T+1)}, 2, {v(T+1)}\nv_sub_u32 {v(T)}, {v(T)}, {v(T+1)}")
    for r in range(4):
        A(f"v_cmp_gt_i32 s[{s.MASK+2*r}:{s.MASK+2*r+1}], {r}, {v(T)}")
    A(f"v_mov_b32 {v(R.NINF)}, 0xff800000")
    A("s_waitcnt lgkmcnt(0)")
    srd(A, s.X, 44, 2048 * 512 * 2); srd(A, s.WQ, 46, 512 * 4096 * 2); srd(A, s.WS, 48, WS_BYTES); srd(A, s.KV, 48, WS_BYTES)
    A(f"s_and_b32 s{s.KP}, s{s.W}, 1\ns_lshl_b32 s{s.T0}, s{s.KP}, 14\ns_lshr_b32 s{s.T1}, s{s.W}, 1\ns_lshl_b32 s{s.T2}, s{s.T1}, 13")
    A(f"s_lshl_b32 s{s.SRC}, s{s.H}, 20\ns_add_u32 s{s.FLG}, s{s.BA}, 1\ns_lshl_b32 s{s.FLG}, s{s.FLG}, 16\ns_add_u32 s{s.FLG}, s{s.FLG}, s{s.SRC}")
    A(f"s_add_u32 s{s.SRC}, s{s.SRC}, s{s.T0}\ns_add_u32 s{s.SRC}, s{s.SRC}, s{s.T2}")
    A(f"s_lshl_b32 s{s.T2}, s{s.T1}, 15")
    A(f"s_cmp_eq_u32 s{s.T1}, 1\ns_cselect_b32 s{s.KV+2}, 0, s{s.FLG}")
    A(f"s_lshl_b32 s{s.KP}, s{s.KP}, 13")
    A(f"s_lshl_b32 s{s.REM}, s{s.I}, 2\ns_add_u32 s{s.REM}, s{s.REM}, 4")
    A(f"s_mov_b32 s{s.T}, {hex(THRESH)}")
    stamp(A, cfg, 0)
    qproj(A, cfg)
    stamp(A, cfg, 1)
    A(f"v_add_u32 {v(R.KADDR)}, {3*32768}, {v(R.LANE16)}")
    A("s_waitcnt vmcnt(24)\ns_barrier")
    for t in range(8):
        A(f"ds_read_b128 {a(R.KF + t*4, 4)}, {v(R.KADDR)} offset:{t*1024}")
    A(f"v_add_u32 {v(R.KADDR)}, {3*32768 + 8192}, {v(R.LANE16)}")
    A(f"v_mov_b32 {v(R.TMP)}, 0x3e0293ee")
    A(f"s_add_u32 s{s.T0}, s{s.DST}, 0x10000\ns_xor_b32 s{s.T1}, s{s.T0}, 0x2000")
    A(f"v_add_u32 {v(R.VADDR)}, s{s.T0}, {v(R.LANE16)}\nv_add_u32 {v(R.T2)}, s{s.T1}, {v(R.LANE16)}")
    for blk in range(2):
        for f in range(8):
            b = blk * 64 + f * 8
            pk_scalar("v_pk_mul_f32", A, b, 8, R.TMP)
            for p in range(4): A(f"v_cvt_pk_bf16_f32 {v(b+p)}, {v(b+2*p)}, {v(b+2*p+1)}")
            if blk == 0: A(f"ds_write_b128 {v(R.VADDR)}, {v(b,4)} offset:{f*1024}")
            for p in range(4): A(f"v_accvgpr_write_b32 {a(R.Q + (blk*8+f)*4 + p)}, {v(b+p)}")
    for i in range(32): A(f"v_mov_b32 {v(R.NEGM+i)}, 0")
    A(f"v_mov_b32 {v(R.TMP)}, 0x3f803f80")
    for i in range(4): A(f"v_accvgpr_write_b32 {a(R.ONES+i)}, {v(R.TMP)}")
    A(f"s_cmp_eq_u32 s{s.I}, 0\ns_cbranch_scc0 K2_nm0")
    A(f"s_sub_u32 s{s.T0}, 0, s{s.W}")
    apply_mask(A, 1, s.T0)
    A.label("K2_nm0")
    A("s_waitcnt lgkmcnt(0)\ns_barrier")
    for f in range(8): A(f"ds_read_b128 {a(R.QN + f*4, 4)}, {v(R.T2)} offset:{f*1024}")
    A(f"s_mov_b32 s{s.SL0}, 0\ns_mov_b32 s{s.SL1}, {4*32768}\ns_mov_b32 s{s.SL2}, {3*32768}")
    A(f"s_mov_b32 s{s.NI}, 0x7fc00000\ns_mov_b32 s{s.TE}, s{s.T}")
    va = [f"v_add_u32 {v(R.KADDR)}, s{s.SL1}, {v(R.LANE16)}", f"v_mov_b32 {v(R.VADDR)}, {v(R.LANE16)}"]
    for ln in period(cfg, 1, 0, [], [], va, do_pv=False): A(ln)
    A("s_waitcnt lgkmcnt(0)\ns_barrier")
    for t in dma_half(cfg, 0, slot_imm=2 * 32768) + dma_half(cfg, 1): A(t)
    init_path(A, 0, 0)
    init_path(A, 0, 1)
    stamp(A, cfg, 2)
    A(f"s_cmp_le_u32 s{s.REM}, 5\ns_cbranch_scc1 K2_h1b")
    def rare(tag, nxt, lim, cont):
        A.label(f"K2_rare{tag}")
        A(f"v_cmp_lt_f32 vcc, s{s.T}, {v(R.MXA)}\ns_nop 4\ns_cbranch_vccz K2_rs{tag}")
        slow_path(A, nxt)
        A.label(f"K2_rs{tag}")
        A(f"s_cmp_le_u32 s{s.REM}, {lim}\ns_cbranch_scc0 {cont}")
    def mask_a(off):
        A(f"s_and_b32 s{s.T2}, s{s.W}, 1\ns_add_u32 s{s.T2}, s{s.T2}, {off}\ns_sub_u32 s{s.T0}, s{s.T2}, s{s.W}")
        apply_mask(A, 0, s.T0)
        A(f"s_xor_b32 s{s.T0}, s{s.W}, 1\ns_sub_u32 s{s.T0}, s{s.T2}, s{s.T0}")
        apply_mask(A, 1, s.T0)
    A.raw(".p2align 6")
    A.label("K2_loop1")
    chk = []
    sa = [f"s_add_u32 s{s.T0}, s{s.SL1}, 0x2000", f"s_add_u32 s{s.T1}, s{s.SL0}, s{s.KP}", f"s_cmp_eq_u32 s{s.REM}, 2",
          f"s_cselect_b32 s{s.T0}, s{s.T1}, s{s.T0}"] + rem_ops(5)
    va = [f"v_add_u32 {v(R.KADDR)}, s{s.T0}, {v(R.LANE16)}"]
    p = ["s_waitcnt vmcnt(16) lgkmcnt(0)", "s_barrier"] + period(cfg, 0, 16384, dma_half(cfg, 0, slot_sg=s.SL2), sa, va)
    chk += p
    for ln in p: A(ln)
    A("s_cbranch_vccnz K2_rare10")
    A.label("K2_c1a")
    va = [f"v_add_u32 {v(R.KADDR)}, s{s.SL1}, {v(R.LANE16)}", f"v_add_u32 {v(R.VADDR)}, s{s.SL0}, {v(R.LANE16)}"]
    p = ["s_waitcnt lgkmcnt(0)"] + period(cfg, 1, 16384 + 8192, dma_half(cfg, 1), rot_slots() + rem_ops(5), va)
    chk += p
    for ln in p: A(ln)
    A("s_cbranch_vccz K2_loop1")
    check_hazards(chk + chk)
    rare("11", 0, 5, "K2_loop1")
    A.label("K2_h1b")
    A(f"s_cmp_eq_u32 s{s.REM}, 0\ns_cbranch_scc1 K2_trans")
    A(f"s_sub_u32 s{s.T0}, 5, s{s.REM}\ns_sub_u32 s{s.T0}, s{s.T0}, s{s.W}")
    apply_mask(A, 1, s.T0)
    A(f"s_cmp_eq_u32 s{s.REM}, 2\ns_cbranch_scc0 K2_loop1")
    A(f"v_add_u32 {v(R.KADDR)}, s{s.KP}, {v(R.KADDR)}")
    A("s_branch K2_loop1")
    rare("10", 1, 5, "K2_c1a")
    A(f"s_cmp_eq_u32 s{s.REM}, 1\ns_cbranch_scc1 K2_swap")
    A(f"s_sub_u32 s{s.T0}, 5, s{s.REM}\ns_sub_u32 s{s.T0}, s{s.T0}, s{s.W}")
    apply_mask(A, 1, s.T0)
    A("s_branch K2_c1a")
    A.label("K2_swap")
    for i in range(32): A(f"v_accvgpr_mov_b32 {a(Qreg(2)+i)}, {a(R.QN+i)}")
    for i in range(16): A(f"v_mov_b32 {v(R.NEGM+16+i)}, 0")
    A(f"s_mov_b32 s{s.T}, 0x7f800000")
    A(f"s_cmp_eq_u32 s{s.I}, 7\ns_cbranch_scc0 K2_c1a")
    mask_a(0)
    A("s_branch K2_c1a")
    A.label("K2_trans")
    stamp(A, cfg, 3)
    epilogue_b(A)
    init_path(A, 0, 1)
    A(f"s_mov_b32 s{s.T}, {hex(THRESH)}")
    A(f"v_cmp_lt_f32 vcc, s{s.T}, {v(MXr(0))}")
    A(f"s_add_u32 s{s.T0}, s{s.SL0}, s{s.KP}\nv_add_u32 {v(R.KADDR)}, s{s.T0}, {v(R.LANE16)}\nv_mov_b32 {v(R.VADDR)}, {v(R.KADDR)}")
    A(f"s_lshl_b32 s{s.REM}, s{s.I}, 2\ns_sub_u32 s{s.REM}, 30, s{s.REM}")
    A("s_cbranch_vccz K2_t1")
    slow_path(A, 0, slots=(0,))
    A.label("K2_t1")
    stamp(A, cfg, 4)
    A(f"s_cmp_eq_u32 s{s.REM}, 2\ns_cbranch_scc1 K2_h2b")
    A.raw(".p2align 6")
    A.label("K2_loop2")
    chk = []
    sa = rot_slots() + [f"s_add_u32 s{s.T0}, s{s.SL0}, s{s.KP}"] + rem_ops(3)
    va = [f"v_add_u32 {v(R.KADDR)}, s{s.T0}, {v(R.LANE16)}", f"v_add_u32 {v(R.VADDR)}, s{s.T0}, {v(R.LANE16)}"]
    for cur in range(2):
        p = ["s_waitcnt vmcnt(16) lgkmcnt(0)", "s_barrier"] + period(cfg, cur, 16384, dma_half(cfg, 0, slot_sg=s.SL2) + dma_half(cfg, 1), sa, va)
        chk += p
        for ln in p: A(ln)
        if cur == 0:
            A("s_cbranch_vccnz K2_rare20")
            A.label("K2_c2a")
        else:
            A("s_cbranch_vccz K2_loop2")
    check_hazards(chk + chk)
    rare("21", 0, 3, "K2_loop2")
    A.label("K2_h2b")
    mask_a(2)
    A("s_branch K2_loop2")
    rare("20", 1, 3, "K2_c2a")
    A(f"s_cmp_eq_u32 s{s.REM}, 1\ns_cbranch_scc1 K2_tail")
    mask_a(0)
    A("s_branch K2_c2a")
    A.label("K2_tail")
    stamp(A, cfg, 5)
    A("s_waitcnt vmcnt(16) lgkmcnt(0)\ns_barrier")
    for ln in period(cfg, 1, 16384, [], [], [], do_qk=False): A(ln)
    stamp(A, cfg, 6)
    epilogue_a(A)
    if cfg.get("bpart", 1):
        import gen_b
        A("s_nop 1")
        gen_b.b_part2(A, cfg, R, SG)
    if cfg.get("stamps"): A("s_waitcnt vmcnt(0)")
    stamp(A, cfg, 7)
    stamp_flush(A, cfg, s.WS, s.W, R.LANE, 1)
    A.label("K2_end")
    A("s_endpgm")

if __name__ == "__main__":
    import sys, json
    cfg = json.loads(sys.argv[2]) if len(sys.argv) > 2 else {}
    A = Asm()
    A.raw("; @launch kernel=k2_kernel grid=(256,1,1) block=(256,1,1) lds=163840")
    A.raw('.amdgcn_target "amdgcn-amd-amdhsa--gfx950"\n.text')
    k2(A, cfg)
    check_hazards(A.lines)
    A.raw('.section .rodata,"a"\n.p2align 6')
    A.raw(kernel_desc("k2_kernel", 512, 256))
    open(sys.argv[1] if len(sys.argv) > 1 else "k2.s", "w").write(A.text())
```

```python
from gen_common import *
from gen_k2 import weave

class R:
    ACC = 0
    CF = 0
    WF = 128
    WV = 160
    WA = 164
    WB = 168
    LANE16 = 172; LANE = 173; T = 174

class SG:
    WS = 4; WO = 8; WB = 12; OUT = 16
    W = 20; RT = 21; CT = 22; DST = 23; SOFF = 24; CO = 25; WOO = 26; OFO = 27; WBO = 28; T0 = 29; T1 = 30
    C = 32

def k3(A, cfg, name="k3_kernel"):
    s = SG
    D = cfg.get("k3_depth", 6)
    kernel_header(A, name)
    A("s_cmp_ge_u32 s2, 256\ns_cbranch_scc1 K3_end")
    A("s_load_dwordx2 s[44:45], s[0:1], 40\ns_load_dwordx4 s[76:79], s[0:1], 72\ns_load_dwordx2 s[48:49], s[0:1], 96")
    L = R.LANE; T = R.T
    A(f"v_lshrrev_b32 {v(T)}, 6, v0\nv_and_b32 {v(L)}, 63, v0\nv_lshlrev_b32 {v(R.LANE16)}, 4, {v(L)}")
    A(f"v_readfirstlane_b32 s{s.W}, {v(T)}")
    A(f"s_and_b32 s{s.RT}, s2, 7\ns_lshl_b32 s{s.RT}, s{s.RT}, 2\ns_bfe_u32 s{s.T0}, s2, 0x20003\ns_add_u32 s{s.RT}, s{s.RT}, s{s.T0}\ns_lshr_b32 s{s.CT}, s2, 5")
    A(f"s_mul_i32 s{s.DST}, s{s.W}, {D*4096}")
    A(f"s_lshl_b32 s{s.CO}, s{s.RT}, 19\ns_lshl_b32 s{s.T0}, s{s.W}, 15\ns_add_u32 s{s.CO}, s{s.CO}, s{s.T0}\ns_add_u32 s{s.CO}, s{s.CO}, {hex(WS_CTX)}")
    A(f"s_lshl_b32 s{s.OFO}, s{s.RT}, 16\ns_lshl_b32 s{s.T0}, s{s.W}, 12\ns_add_u32 s{s.OFO}, s{s.OFO}, s{s.T0}\ns_add_u32 s{s.OFO}, s{s.OFO}, {hex(WS_OF)}")
    A(f"s_lshl_b32 s{s.T1}, s{s.CT}, 7\ns_lshl_b32 s{s.WOO}, s{s.W}, 20\ns_add_u32 s{s.WOO}, s{s.WOO}, s{s.T1}")
    A(f"s_lshl_b32 s{s.WBO}, s{s.W}, 17\ns_add_u32 s{s.WBO}, s{s.WBO}, s{s.T1}")
    A(f"v_lshrrev_b32 {v(T)}, 4, {v(L)}\nv_lshlrev_b32 {v(T)}, 1, {v(T)}\nv_and_b32 {v(T+1)}, 7, {v(L)}\nv_xor_b32 {v(T)}, {v(T)}, {v(T+1)}\nv_lshlrev_b32 {v(T)}, 4, {v(T)}")
    A(f"v_lshrrev_b32 {v(T+1)}, 3, {v(L)}\nv_lshl_add_u32 {v(R.WV)}, {v(T+1)}, 10, {v(T)}")
    for j in range(1, 4): A(f"v_add_u32 {v(R.WV+j)}, {7168*j}, {v(R.WV)}")
    A("s_waitcnt lgkmcnt(0)")
    srd(A, s.WO, 44, 4096 * 512 * 2); srd(A, s.WB, 76, 512 * 512 * 2); srd(A, s.OUT, 78, 2048 * 1024 * 2); srd(A, s.WS, 48, WS_BYTES)
    N = 36
    def loads(n):
        Ls = []
        isB = n >= 32
        Ls.append(f"s_add_u32 m0, s{s.DST}, {(n % D) * 4096}")
        Ls.append(f"s_add_u32 s{s.SOFF}, s{s.WBO if isB else s.WOO}, {((n - 32) if isB else n) * 32768}")
        sr = s.WB if isB else s.WO
        for j in range(4):
            Ls.append(f"buffer_load_dwordx4 {v(R.WV+j)}, s[{sr}:{sr+3}], s{s.SOFF} offen offset:{j*1024} lds")
        cf = R.CF + (n % (D + 1)) * 16
        if n % 4 == 0:
            for rt in range(4):
                if isB: Ls.append(f"s_add_u32 s{s.C+rt}, s{s.OFO}, {rt*16384}")
                else: Ls.append(f"s_add_u32 s{s.C+rt}, s{s.CO}, {rt*131072 + n*1024}")
        for rt in range(4):
            Ls.append(f"buffer_load_dwordx4 {v(cf + rt*4, 4)}, {v(R.LANE16)}, s[{s.WS}:{s.WS+3}], s{s.C+rt} offen offset:{(n % 4)*1024}")
        return Ls
    def wreads(n):
        isB = n >= 32
        wf = R.WF + (n & 1) * 16
        Ls = []
        for c in range(4):
            for rd in range(2):
                Ls.append(f"ds_read_b64_tr_b16 {v(wf + c*4 + rd*2, 2)}, {v((R.WB if isB else R.WA) + c)} offset:{(n % D)*4096 + rd*(1024 if isB else 2048)}")
        return Ls
    stamp(A, cfg, 0)
    for n in range(D):
        for ln in loads(n): A(ln)
    A(f"v_bfe_u32 {v(T)}, {v(L)}, 2, 2\nv_lshlrev_b32 {v(T)}, 7, {v(T)}\nv_bfe_u32 {v(T+1)}, {v(L)}, 3, 2\nv_lshl_add_u32 {v(T)}, {v(T+1)}, 5, {v(T)}")
    A(f"v_and_b32 {v(T+1)}, 3, {v(L)}\nv_lshl_add_u32 {v(T)}, {v(T+1)}, 3, {v(T)}\nv_add_u32 {v(T)}, s{s.DST}, {v(T)}")
    A(f"v_lshrrev_b32 {v(T+1)}, 4, {v(L)}\nv_lshl_add_u32 {v(R.WA)}, {v(T+1)}, 9, {v(T)}")
    A(f"v_bfe_u32 {v(T+1)}, {v(L)}, 4, 1\nv_lshl_add_u32 {v(T)}, {v(T+1)}, 9, {v(T)}\nv_lshrrev_b32 {v(T+1)}, 5, {v(L)}\nv_lshl_add_u32 {v(R.WB)}, {v(T+1)}, 11, {v(T)}")
    for c in range(1, 4): A(f"v_xor_b32 {v(R.WA+c)}, {c<<5}, {v(R.WA)}\nv_xor_b32 {v(R.WB+c)}, {c<<5}, {v(R.WB)}")
    A(f"s_waitcnt vmcnt({4 + 8*(D-1)})")
    for ln in wreads(0): A(ln)
    for n in range(N):
        issued = min(N, n + D)
        if n + 1 < N: allowed = 4 + 8 * (issued - (n + 2))
        else: allowed = 0
        A(f"s_waitcnt vmcnt({max(allowed,0)}) lgkmcnt(0)")
        fill = []
        if n + 1 < N: fill += wreads(n + 1)
        if n + D < N: fill += loads(n + D)
        wf = R.WF + (n & 1) * 16; cf = R.CF + (n % (D + 1)) * 16
        mf = []
        for rt in range(4):
            for c in range(4):
                acc = (64 if n >= 32 else 0) + (rt * 4 + c) * 4
                cc = "0" if n in (0, 32) else a(acc, 4)
                mf.append(f"{MF16} {a(acc,4)}, {v(wf + c*4, 4)}, {v(cf + rt*4, 4)}, {cc}")
        for b in weave(mf, fill): A(b)
    stamp(A, cfg, 1)
    A(f"s_lshl_b32 s{s.T0}, s{s.W}, 15\nv_add_u32 {v(T)}, s{s.T0}, {v(R.LANE16)}")
    A(f"s_lshl_b32 s{s.T0}, s{s.W}, 12\nv_lshrrev_b32 {v(T+1)}, 4, {v(L)}\nv_lshlrev_b32 {v(T+1)}, 10, {v(T+1)}\nv_and_b32 {v(T+2)}, 15, {v(L)}")
    A(f"v_lshl_add_u32 {v(T+1)}, {v(T+2)}, 4, {v(T+1)}\nv_add_u32 {v(T+1)}, s{s.T0}, {v(T+1)}\nv_add_u32 {v(T+3)}, 0x10000, {v(T+1)}")
    A(f"v_lshlrev_b32 {v(T+2)}, 11, {v(T+2)}\nv_lshrrev_b32 {v(T+4)}, 4, {v(L)}\nv_lshl_add_u32 {v(T+2)}, {v(T+4)}, 5, {v(T+2)}")
    A(f"s_lshl_b32 s{s.T0}, s{s.RT}, 17\ns_lshl_b32 s{s.T1}, s{s.W}, 15\ns_add_u32 s{s.T0}, s{s.T0}, s{s.T1}\ns_lshl_b32 s{s.T1}, s{s.CT}, 7\ns_add_u32 s{s.T0}, s{s.T0}, s{s.T1}")
    A("s_barrier")
    for i in range(32): A(f"ds_write_b128 {v(T)}, {a(i*4,4)} offset:{i*1024}")
    A("s_waitcnt lgkmcnt(0)\ns_barrier")
    for part in range(2):
        base = part * 64
        for src in range(4):
            for g in range(4):
                A(f"ds_read_b128 {v(base + src*16 + g*4, 4)}, {v(T+1 if src < 2 else T+3)} offset:{(src & 1)*32768 + part*16384 + g*256}")
        if part == 0: continue
    for part in range(2):
        base = part * 64
        A(f"s_waitcnt lgkmcnt({15 if part == 0 else 0})" if part == 1 else "s_waitcnt lgkmcnt(15)\ns_waitcnt lgkmcnt(15)")
        for i in range(0, 16, 2):
            A(f"v_pk_add_f32 {v(base+i,2)}, {v(base+i,2)}, {v(base+16+i,2)}\nv_pk_add_f32 {v(base+32+i,2)}, {v(base+32+i,2)}, {v(base+48+i,2)}")
        for i in range(0, 16, 2):
            A(f"v_pk_add_f32 {v(base+i,2)}, {v(base+i,2)}, {v(base+32+i,2)}")
        for p in range(8): A(f"v_cvt_pk_bf16_f32 {v(base+16+p)}, {v(base+2*p)}, {v(base+2*p+1)}")
        for hh in range(2):
            A(f"buffer_store_dwordx4 {v(base+16+hh*4,4)}, {v(T+2)}, s[{s.OUT}:{s.OUT+3}], s{s.T0} offen offset:{part*1024 + hh*16}")
    if cfg.get("stamps"): A("s_waitcnt vmcnt(0)")
    stamp(A, cfg, 7)
    stamp_flush(A, cfg, s.WS, s.W, R.LANE, 2)
    A.label("K3_end")
    A("s_endpgm")
```

```python
CAT = {"s": 0, "m": 1, "v": 2}
class Op:
    def __init__(self, text, rel=0, dl=10**6, after=(), later=(), cost=None, hard=10**6):
        self.text = text; self.rel = rel; self.dl = dl; self.hard = hard
        self.after = [x for x in after if x is not None]
        self.later = [x for x in later if x is not None]
        self.slot = None
        op = text.split()[0]
        if op.startswith("s_"): self.cat = "s"; c = 4
        elif op.startswith("ds_"): self.cat = "m"; c = 4
        elif op.startswith(("buffer_", "global_")): self.cat = "m"; c = 8
        else:
            self.cat = "v"; c = 8 if op.startswith(("v_exp", "v_rcp", "v_log", "v_rsq")) else 4
        self.trans = (self.cat == "v" and c == 8)
        self.cost = c if cost is None else cost

def schedule(mfmas, ops, budget=24, pre=None, reserve=None, verbose=False, slack=1000):
    n = len(mfmas)
    pre = pre or {}; reserve = reserve or {}
    total = sum(o.cost for o in ops if o.cat != "s")
    cap = [max(0, budget - reserve.get(g, 0)) for g in range(n)]
    captot = sum(cap)
    pending = list(ops)
    slots = []
    done = 0.0; capacc = 0.0
    over = 0
    for g in range(n):
        cur = {"s": [], "m": [], "v": []}
        used = 0
        capacc += cap[g]
        target = total * capacc / captot
        while True:
            cands = []
            for o in pending:
                if o.rel > g: continue
                ok = True
                for p in o.after:
                    if p.slot is None: ok = False; break
                    if p.slot == g:
                        if CAT[p.cat] > CAT[o.cat]: ok = False; break
                        if p.trans and cur["v"] and cur["v"][-1] is p: ok = False; break
                for p in o.later:
                    if p.slot is None or p.slot >= g: ok = False; break
                if ok: cands.append(o)
            if not cands: break
            cands.sort(key=lambda o: (0 if o.hard <= g else 1, o.dl))
            pick = None
            for o in cands:
                c = getattr(o, "glue", 0) + (0 if (o.cat == "s" and not cur["s"]) else o.cost)
                urgent = o.hard <= g or g == n - 1
                if c == 0: pick = (o, c); break
                if urgent: pick = (o, c); break
                if used + c <= cap[g] and (done < target + slack or o.dl <= g + 1) and (o.cat != "s" or not cur["s"]): pick = (o, c); break
            if pick is None: break
            o, c = pick
            o.slot = g; cur[o.cat].append(o); used += c
            if o.cat != "s": done += o.cost
            pending.remove(o)
        if used > cap[g]: over += used - cap[g]
        slots.append((cur, used))
    out = []
    for g in range(n):
        out += pre.get(g, [])
        if mfmas[g] is not None: out.append(mfmas[g])
        cur, used = slots[g]
        for c in "smv":
            for o in cur[c]: out.append(o.text)
    while pending:
        out.append("s_nop 0")
        for o in list(pending):
            if all(p.slot is not None for p in o.after + o.later):
                o.slot = n; out.append(o.text); pending.remove(o)
    if verbose: print("slot use:", [u for _, u in slots], "over", over)
    return out
```

```python
import sys, json
from gen_common import *
import gen_k1, gen_k2, gen_k3
cfg = json.loads(sys.argv[2]) if len(sys.argv) > 2 else {}
ref = open("concat_heads__compressed_kv_cla__linear_kernel_hedgehog__prompt.s.ref").read().split("\n")
A = Asm()
for ln in ref:
    if ln.startswith(";") and "@launch" not in ln and "Override" not in ln and "grid=ceil" not in ln: A.raw(ln)
    if not ln.startswith(";"): break
A.raw("; @launch kernel=k1_kernel grid=(256,1,1) block=(256,1,1) lds=163840")
A.raw("; @launch kernel=k2_kernel grid=(256,1,1) block=(256,1,1) lds=163840")
A.raw("; @launch kernel=k3_kernel grid=(256,1,1) block=(256,1,1) lds=131072")
A.raw('.amdgcn_target "amdgcn-amd-amdhsa--gfx950"\n.text')
gen_k1.k1(A, cfg); gen_k2.k2(A, cfg); gen_k3.k3(A, cfg)
check_hazards(A.lines)
A.raw('.section .rodata,"a"')
for n in ("k1_kernel", "k2_kernel", "k3_kernel"):
    A.raw(".p2align 6"); A.raw(kernel_desc(n, 512, 256))
open(sys.argv[1], "w").write(A.text())
```

```python
from gen_common import *

class R:
    S = 0; P = 64; NEGM = 80; O = 112
    M = 240
    MX = 244
    TMP = 248
    KADDR = 250; VADDR = 251; LANE16 = 252; LANE = 253; NINF = 254; MXA = 255
    XV = 128; WV = 132; XA = 136; WA = 140; XC = 148; WC = 152; T2 = 160
    KF = 0; VF = 32; Q = 64; QN = 128
    LS = 160
    ONES = 176
    FR = 160

class SG:
    WS = 4; X = 8; WQ = 12; KV = 16
    W = 20; H = 21; I = 22; BA = 23; KP = 24
    SRC = 25; SL0 = 26; SL1 = 27; SL2 = 28; DST = 29; SOFF = 30
    REM = 33; T = 34; TE = 35; NI = 36; T0 = 37; T1 = 38; T2 = 39; XA_ = 40; XB_ = 41; WQO = 42; FLG = 43
    MASK = 64

def Sreg(buf, qt, kt=0): return R.S + buf * 32 + (qt * 2 + kt) * 4
def Nreg(qt, kt=0): return R.NEGM + (qt * 2 + kt) * 4
def Preg(qt): return R.P + qt * 4
def Oreg(qt, dt=0): return R.O + (qt * 8 + dt) * 4
def Qreg(qt, t=0): return R.Q + (qt * 4 + t) * 4
def MXr(qs): return R.MX + 2 * qs

def dma_half(cfg, half, slot_sg=None, slot_imm=None):
    s = SG
    L = []
    if half == 0:
        L.append(f"s_add_u32 m0, s{s.DST}, " + (f"s{slot_sg}" if slot_sg is not None else str(slot_imm)))
        L.append(f"s_add_u32 s{s.SOFF}, s{s.SRC}, 0x1000")
        for j in range(4):
            L.append(f"buffer_load_dwordx4 {v(R.LANE16)}, s[{s.KV}:{s.KV+3}], s{s.SRC} offen offset:{j*1024} sc1 lds")
    else:
        L.append(f"s_add_u32 m0, m0, 0x1000")
        L.append(f"s_add_u32 s{s.SRC}, s{s.SRC}, 0x8000")
        for j in range(4):
            L.append(f"buffer_load_dwordx4 {v(R.LANE16)}, s[{s.KV}:{s.KV+3}], s{s.SOFF} offen offset:{j*1024} sc1 lds")
    return L

def rot_slots():
    s = SG
    return [f"s_mov_b32 s{s.SL2}, s{s.SL1}", f"s_mov_b32 s{s.SL1}, s{s.SL0}", f"s_add_u32 s{s.SL0}, s{s.SL0}, 0x8000",
            f"s_cmp_eq_u32 s{s.SL0}, 0x28000", f"s_cselect_b32 s{s.SL0}, 0, s{s.SL0}"]

def rem_ops(lim):
    s = SG
    return [f"s_sub_u32 s{s.REM}, s{s.REM}, 1", f"s_cmp_le_u32 s{s.REM}, {lim}", f"s_cselect_b32 s{s.TE}, s{s.NI}, s{s.T}"]

def period(cfg, cur, voff, dma, salu, vaddr, do_qk=True, do_pv=True):
    s = SG
    nxt = 1 - cur
    PVW = 9
    NS = 32 + 4 * PVW
    mf = []
    for kt in range(2):
        for t in range(4):
            for qt in range(4):
                d = Sreg(nxt, qt, kt)
                c = v(Nreg(qt, kt), 4) if t == 0 else v(d, 4)
                mf.append(f"{MF16} {v(d,4)}, {a(R.KF + (kt*4+t)*4, 4)}, {a(Qreg(qt,t), 4)}, {c}" if do_qk else "s_nop 0")
    for qt in range(4):
        for dt in range(8):
            o = Oreg(qt, dt)
            mf.append(f"{MF16} {v(o,4)}, {a(R.VF + dt*4, 4)}, {v(Preg(qt),4)}, {v(o,4)}" if do_pv else None)
        mf.append(f"{MF16} {a(R.LS+qt*4,4)}, {a(R.ONES, 4)}, {v(Preg(qt),4)}, {a(R.LS+qt*4,4)}" if do_pv else None)
    ops = []
    if do_pv:
        n = 0
        espan = cfg.get("espan", 56) if do_qk else 40
        for qt in range(4):
            dl_cvt = 32 + PVW * qt - 3
            base = Sreg(cur, qt)
            for p in range(4):
                dle = n * espan // 16
                n += 1
                e0 = Op(f"v_exp_f32 {v(base+2*p)}, {v(base+2*p)}", dl=dle, hard=dl_cvt - 2)
                e1 = Op(f"v_exp_f32 {v(base+2*p+1)}, {v(base+2*p+1)}", dl=dle + 1, hard=dl_cvt - 1)
                cv = Op(f"v_cvt_pk_bf16_f32 {v(Preg(qt)+p)}, {v(base+2*p)}, {v(base+2*p+1)}", dl=dle + 3, hard=dl_cvt, after=[e0, e1])
                ops += [e0, e1, cv]
    prev = None
    if do_pv:
        for i in range(8):
            g = i * 3
            o = Op(f"ds_read_b128 {a(R.VF + i*4, 4)}, {v(R.VADDR)} offset:{voff + i*1024}", rel=g, dl=g + 2, hard=26, after=[prev])
            ops.append(o); prev = o
    if do_qk:
        for t in range(8):
            g = (cfg.get("k_first", 28) + t * 4) if do_pv else 4 * t + 4
            o = Op(f"ds_read_b128 {a(R.KF + t*4, 4)}, {v(R.KADDR)} offset:{t*1024}", rel=g, dl=g + 3, hard=NS - 5, after=[prev])
            ops.append(o); prev = o
    lastds = prev
    prev = None
    nd = sum(1 for t in dma if t.startswith("buffer"))
    k = 0
    firstm0 = None; m0op = None
    for txt in dma:
        g = cfg.get("dma_first", 2) + k * cfg.get("dma_span", 60) // max(nd, 1)
        if txt.startswith("s_"):
            o = Op(txt, rel=max(0, g - 3), dl=g, later=[prev] if (prev and prev.cat == "m") else [], after=[prev])
            if txt.split()[1].startswith("m0"): m0op = o
            if firstm0 is None: firstm0 = o
        else:
            o = Op(txt, rel=g, dl=g + 3, after=[prev], later=[m0op]); k += 1
        ops.append(o); prev = o
    sp = None
    i = 0
    while i < len(salu):
        if salu[i].startswith("s_cmp"):
            txt = salu[i] + "\n" + salu[i + 1]; i += 2
        else:
            txt = salu[i]; i += 1
        o = Op(txt, rel=4, dl=50, after=[sp, firstm0])
        if "\n" in txt: o.glue = 4
        ops.append(o); sp = o
    if do_qk:
        for txt in vaddr:
            ops.append(Op(txt, rel=NS - 10, dl=NS - 2, after=[lastds, sp]))
        prevm = [None, None]
        n = 0
        for kt in range(2):
            mrel = (22 if kt == 0 else 38) if do_pv else 40
            for qt in range(4):
                for hh in range(2):
                    qs = qt >> 1
                    b = Sreg(nxt, qt, kt) + 2 * hh
                    dl = cfg.get('mx_dl', 50) + n; n += 1
                    if prevm[qs] is None: o = Op(f"v_max_f32 {v(MXr(qs))}, {v(b)}, {v(b+1)}", rel=mrel, dl=dl)
                    else: o = Op(f"v_max3_f32 {v(MXr(qs))}, {v(MXr(qs))}, {v(b)}, {v(b+1)}", rel=mrel, dl=dl, after=[prevm[qs]])
                    ops.append(o); prevm[qs] = o
        o = Op(f"v_max_f32 {v(R.MXA)}, {v(MXr(0))}, {v(MXr(1))}", dl=NS - 2, after=prevm)
        ops.append(o)
        ops.append(Op(f"v_cmp_nge_f32 vcc, s{s.TE}, {v(R.MXA)}", dl=NS - 2, after=[o, sp]))
    pre = {}
    if not do_pv: pre[40] = ["s_nop 7"]
    body = schedule(mf, ops, budget=cfg.get("budget", 8), pre=pre, reserve={31: 4, NS - 1: 8}, verbose=cfg.get("verbose"))
    lines = []
    for b in body: lines += b.split("\n")
    return auto_lgkm(lines, lookback=cfg.get("lookback", 12))

def rowred(A, reg, tmp, op):
    A(f"v_mov_b32 {v(tmp)}, {v(reg)}\ns_nop 1\nv_permlane16_swap_b32 {v(reg)}, {v(tmp)}\n{op} {v(reg)}, {v(reg)}, {v(tmp)}")
    A(f"v_mov_b32 {v(tmp)}, {v(reg)}\ns_nop 1\nv_permlane32_swap_b32 {v(reg)}, {v(tmp)}\n{op} {v(reg)}, {v(reg)}, {v(tmp)}")

def rowmax(A, nxt, qt, mx):
    b = Sreg(nxt, qt)
    A(f"v_max3_f32 {v(mx)}, {v(b)}, {v(b+1)}, {v(b+2)}\nv_max3_f32 {v(mx)}, {v(mx)}, {v(b+3)}, {v(b+4)}")
    A(f"v_max3_f32 {v(mx)}, {v(mx)}, {v(b+5)}, {v(b+6)}\nv_max_f32 {v(mx)}, {v(mx)}, {v(b+7)}")
    rowred(A, mx, R.TMP, "v_max_f32")

def apply_mask(A, qs, sD):
    s = SG
    ld, le = A.newlabel("Lmd"), A.newlabel("Lme")
    A(f"s_cmp_lt_i32 s{sD}, 0\ns_cbranch_scc1 {le}")
    A(f"s_cmp_eq_i32 s{sD}, 0\ns_cbranch_scc1 {ld}")
    for r in range(16): A(f"v_mov_b32 {v(Nreg(2*qs)+r)}, {v(R.NINF)}")
    A(f"s_branch {le}")
    A.label(ld)
    for r in range(4):
        A(f"v_cndmask_b32 {v(Nreg(2*qs,0)+r)}, {v(Nreg(2*qs,0)+r)}, {v(R.NINF)}, s[{s.MASK+2*r}:{s.MASK+2*r+1}]")
        A(f"v_mov_b32 {v(Nreg(2*qs,1)+r)}, {v(R.NINF)}")
        A(f"v_cndmask_b32 {v(Nreg(2*qs+1,1)+r)}, {v(Nreg(2*qs+1,1)+r)}, {v(R.NINF)}, s[{s.MASK+2*r}:{s.MASK+2*r+1}]")
    A.label(le)

def pk_scalar(op, A, base, n, sc):
    for i in range(0, n, 2):
        A(f"{op} {v(base+i,2)}, {v(base+i,2)}, {v(sc,2)} op_sel_hi:[1,0]")

def slow_path(A, nxt, slots=(0, 1)):
    A("s_nop 7")
    mx = R.MX
    for qs in slots:
        for qt in (2 * qs, 2 * qs + 1):
            rowmax(A, nxt, qt, mx)
            A(f"v_ceil_f32 {v(mx)}, {v(mx)}\nv_max_f32 {v(mx)}, 0, {v(mx)}")
            A(f"v_add_f32 {v(R.M+qt)}, {v(R.M+qt)}, {v(mx)}\nv_sub_f32 {v(mx)}, 0, {v(mx)}")
            pk_scalar("v_pk_add_f32", A, Sreg(nxt, qt), 8, mx)
            A(f"v_exp_f32 {v(mx)}, {v(mx)}")
            A(f"v_sub_f32 {v(R.TMP)}, 0, {v(R.M+qt)}")
            for i in range(8): A(f"v_mov_b32 {v(Nreg(qt)+i)}, {v(R.TMP)}")
            A(f"v_accvgpr_read_b32 {v(R.TMP)}, {a(R.LS+qt*4)}\nv_mul_f32 {v(R.TMP)}, {v(R.TMP)}, {v(mx)}")
            for i in range(4): A(f"v_accvgpr_write_b32 {a(R.LS+qt*4+i)}, {v(R.TMP)}")
            pk_scalar("v_pk_mul_f32", A, Oreg(qt), 32, mx)
    A("s_nop 1")

def init_path(A, nxt, qs):
    mx = MXr(1)
    for qt in (2 * qs, 2 * qs + 1):
        rowmax(A, nxt, qt, mx)
        A(f"v_max_f32 {v(mx)}, 0xf149f2ca, {v(mx)}")
        A(f"v_ceil_f32 {v(R.M+qt)}, {v(mx)}\nv_sub_f32 {v(mx)}, 0, {v(R.M+qt)}")
        pk_scalar("v_pk_add_f32", A, Sreg(nxt, qt), 8, mx)
        for i in range(8): A(f"v_mov_b32 {v(Nreg(qt)+i)}, {v(mx)}")
        for i in range(4): A(f"v_accvgpr_write_b32 {a(R.LS+qt*4+i)}, 0")
        for i in range(32): A(f"v_mov_b32 {v(Oreg(qt)+i)}, 0")

def ctx_addr(A, sblk):
    s = SG
    A(f"s_lshl_b32 s{s.T0}, s{sblk}, 2\ns_add_u32 s{s.T0}, s{s.T0}, s{s.W}\ns_lshl_b32 s{s.T0}, s{s.T0}, 18")
    A(f"s_lshl_b32 s{s.T1}, s{s.H}, 12\ns_add_u32 s{s.T0}, s{s.T0}, s{s.T1}\ns_add_u32 s{s.T0}, s{s.T0}, {hex(WS_CTX)}")
    A(f"s_add_u32 s{s.T1}, s{s.T0}, 0x20000")

def store_frag(A, f, src, dst):
    s = SG
    for p in range(4):
        A(f"v_cvt_pk_bf16_f32 {v(dst + p)}, {v(src+2*p)}, {v(src+2*p+1)}")
    A(f"buffer_store_dwordx4 {v(dst,4)}, {v(R.LANE16)}, s[{s.WS}:{s.WS+3}], s{s.T0 if f < 4 else s.T1} offen offset:{(f&3)*1024}")

def epilogue_b(A):
    s = SG
    ctx_addr(A, s.I)
    A("s_nop 3")
    for q in range(2):
        A(f"v_accvgpr_read_b32 {v(R.TMP)}, {a(R.LS+(2+q)*4)}\ns_nop 0\nv_rcp_f32 {v(R.TMP)}, {v(R.TMP)}\ns_nop 0")
        for e in range(4):
            b = Oreg(2 + q) + e * 8
            pk_scalar("v_pk_mul_f32", A, b, 8, R.TMP)
            store_frag(A, q * 4 + e, b, 32 + (q * 4 + e) * 4)

def epilogue_a(A):
    s = SG
    A(f"s_mul_i32 s{s.T0}, s{s.W}, 17408\ns_xor_b32 s{s.T1}, s{s.W}, 1\ns_mul_i32 s{s.T1}, s{s.T1}, 17408")
    A(f"v_add_u32 {v(R.KADDR)}, s{s.T0}, {v(R.LANE16)}\nv_add_u32 {v(R.VADDR)}, s{s.T1}, {v(R.LANE16)}")
    A(f"v_mov_b32 v96, {v(R.M+2)}\nv_mov_b32 v97, {v(R.M+3)}\ns_nop 3")
    A(f"v_accvgpr_read_b32 v98, {a(R.LS+8)}\nv_accvgpr_read_b32 v99, {a(R.LS+12)}")
    A(f"v_accvgpr_read_b32 v100, {a(R.LS)}\nv_accvgpr_read_b32 v101, {a(R.LS+4)}")
    A("s_waitcnt vmcnt(0)\ns_barrier")
    A(f"ds_write_b128 {v(R.KADDR)}, v[96:99] offset:16384")
    for i in range(16):
        A(f"ds_write_b128 {v(R.KADDR)}, {v(Oreg(2)+i*4,4)} offset:{i*1024}")
    ctx_addr(A, s.BA)
    A("s_waitcnt lgkmcnt(0)\ns_barrier")
    A(f"ds_read_b128 v[96:99], {v(R.VADDR)} offset:16384")
    for i in range(16):
        A(f"ds_read_b128 {v(i*4,4)}, {v(R.VADDR)} offset:{i*1024}")
    A("s_waitcnt lgkmcnt(15)")
    for q in range(2):
        W0, W1 = 102 + q * 4, 104 + q * 4
        A(f"v_max_f32 {v(R.MXA)}, {v(R.M+q)}, v{96+q}")
        A(f"v_sub_f32 {v(W0)}, {v(R.M+q)}, {v(R.MXA)}\nv_sub_f32 {v(W1)}, v{96+q}, {v(R.MXA)}")
        A(f"v_exp_f32 {v(W0)}, {v(W0)}\nv_exp_f32 {v(W1)}, {v(W1)}\ns_nop 0")
        A(f"v_mul_f32 v{100+q}, v{100+q}, {v(W0)}\nv_fma_f32 v{100+q}, v{98+q}, {v(W1)}, v{100+q}")
        A(f"v_rcp_f32 v{100+q}, v{100+q}\ns_nop 0")
        A(f"v_mul_f32 {v(W0)}, {v(W0)}, v{100+q}\nv_mul_f32 {v(W1)}, {v(W1)}, v{100+q}")
    for f in range(8):
        q = f >> 2
        W0, W1 = 102 + q * 4, 104 + q * 4
        b = Oreg(0) + f * 8
        pk_scalar("v_pk_mul_f32", A, b, 8, W0)
        A(f"s_waitcnt lgkmcnt({14 - 2*f})")
        for i in range(0, 8, 2):
            A(f"v_pk_fma_f32 {v(b+i,2)}, {v(f*8+i,2)}, {v(W1,2)}, {v(b+i,2)} op_sel_hi:[1,0,1]")
        store_frag(A, f, b, 64 + f * 4)

def weave(mf, fill, budget=8):
    out = []
    fl = []
    for t in fill: fl += t.split("\n")
    i = 0
    for g in range(len(mf)):
        out.append(mf[g])
        used = 0; first = True
        while i < len(fl):
            t = fl[i]
            c = 8 if t.startswith("buffer") else (0 if (first and t.startswith("s_")) else 4)
            if t.startswith("buffer") and out[-1].startswith("s_add_u32 m0"): break
            if g < len(mf) - 1 and used + c > budget: break
            out.append(t); used += c; i += 1; first = False
    assert i == len(fl)
    return out

def weave2(mf, reads, vmem, valu=(), first=1, last=None):
    n = len(mf)
    last = n - 2 if last is None else last
    gaps = [[] for _ in range(n)]
    busy = [0] * n
    vm = []
    for t in vmem: vm += t.split("\n")
    nb = sum(1 for t in vm if t.startswith("buffer"))
    k = 0; pend = []; prevg = -1
    for t in vm:
        if t.startswith("buffer"):
            g = first + (k * (last - first + 1)) // max(nb, 1)
            g = max(g, prevg + 1 + (1 if pend else 0))
            g = min(g, n - 1)
            lo = prevg + 1
            for j, p in enumerate(pend):
                gg = max(lo, g - len(pend) + j)
                if gg >= g: gg = max(lo, g - 1)
                if gg >= g:
                    gaps[g].append(p);
                    if j == len(pend) - 1: gaps[g].append("s_nop 0")
                else: gaps[gg].append(p)
            pend = []
            gaps[g].append(t); busy[g] += 8; prevg = g; k += 1
        elif t == "s_nop 0": continue
        else: pend.append(t)
    for p in pend: gaps[min(prevg + 1, n - 1)].append(p)
    for g in range(n): busy[g] += 4 * max(0, sum(1 for t in gaps[g] if t.startswith("s_")) - 1)
    g = 0
    for t in reads:
        c = 8 if "b128" in t else 4
        while g < n - 1 and busy[g] + c > 8: g += 1
        gaps[g].append(t); busy[g] += c
    g = min(g + 1, n - 1)
    for t in valu:
        while g < n - 1 and busy[g] + 4 > 8: g += 1
        gaps[g].append(t); busy[g] += 4
    out = []
    for g in range(n):
        out.append(mf[g]); out += gaps[g]
    return out

def attention(A, cfg, fcfg, late=()):
    s = SG
    THRESH = cfg.get("thresh", 0x42800000)
    A(f"s_add_u32 s{s.T0}, s{s.DST}, 0x10000\ns_xor_b32 s{s.T1}, s{s.T0}, 0x2000")
    A(f"v_add_u32 {v(R.T2)}, s{s.T1}, {v(R.LANE16)}\nv_mov_b32 {v(R.NINF)}, 0xff800000")
    L = R.LANE; T = R.T2 + 1
    A(f"v_and_b32 {v(T)}, 15, {v(L)}\nv_lshrrev_b32 {v(T+1)}, 4, {v(L)}\nv_lshlrev_b32 {v(T+1)}, 2, {v(T+1)}\nv_sub_u32 {v(T)}, {v(T)}, {v(T+1)}")
    for r in range(4):
        A(f"v_cmp_gt_i32 s[{s.MASK+2*r}:{s.MASK+2*r+1}], {r}, {v(T)}")
    for i in range(32): A(f"v_mov_b32 {v(R.NEGM+i)}, 0")
    A(f"v_mov_b32 {v(R.TMP)}, 0x3f803f80")
    for i in range(4): A(f"v_accvgpr_write_b32 {a(R.ONES+i)}, {v(R.TMP)}")
    A(f"s_cmp_eq_u32 s{s.I}, 0\ns_cbranch_scc0 K2_nm0")
    A(f"s_sub_u32 s{s.T0}, 0, s{s.W}")
    apply_mask(A, 1, s.T0)
    A.label("K2_nm0")
    A("s_waitcnt lgkmcnt(0)\ns_barrier")
    for f in range(8): A(f"ds_read_b128 {a(R.QN + f*4, 4)}, {v(R.T2)} offset:{f*1024}")
    A(f"v_add_u32 {v(R.KADDR)}, {3*32768 + 8192}, {v(R.LANE16)}")
    A(f"s_mov_b32 s{s.SL0}, 0\ns_mov_b32 s{s.SL1}, {4*32768}\ns_mov_b32 s{s.SL2}, {3*32768}")
    A(f"s_mov_b32 s{s.NI}, 0x7fc00000\ns_mov_b32 s{s.TE}, s{s.T}")
    va = [f"v_add_u32 {v(R.KADDR)}, s{s.SL1}, {v(R.LANE16)}", f"v_mov_b32 {v(R.VADDR)}, {v(R.LANE16)}"]
    for ln in period(cfg, 1, 0, [], [], va, do_pv=False): A(ln)
    A("s_waitcnt lgkmcnt(0)\ns_barrier")
    for t in dma_half(cfg, 0, slot_imm=2 * 32768) + dma_half(cfg, 1): A(t)
    for t in late: A(t)
    init_path(A, 0, 0)
    init_path(A, 0, 1)
    stamp(A, cfg, 2); stamp(A, fcfg, 6)
    A(f"s_cmp_le_u32 s{s.REM}, 5\ns_cbranch_scc1 K2_h1b")
    def rare(tag, nxt, lim, cont):
        A.label(f"K2_rare{tag}")
        A(f"v_cmp_lt_f32 vcc, s{s.T}, {v(R.MXA)}\ns_nop 4\ns_cbranch_vccz K2_rs{tag}")
        slow_path(A, nxt)
        A.label(f"K2_rs{tag}")
        A(f"s_cmp_le_u32 s{s.REM}, {lim}\ns_cbranch_scc0 {cont}")
    def mask_a(off):
        A(f"s_and_b32 s{s.T2}, s{s.W}, 1\ns_add_u32 s{s.T2}, s{s.T2}, {off}\ns_sub_u32 s{s.T0}, s{s.T2}, s{s.W}")
        apply_mask(A, 0, s.T0)
        A(f"s_xor_b32 s{s.T0}, s{s.W}, 1\ns_sub_u32 s{s.T0}, s{s.T2}, s{s.T0}")
        apply_mask(A, 1, s.T0)
    A.raw(".p2align 6")
    A.label("K2_loop1")
    chk = []
    sa = [f"s_add_u32 s{s.T0}, s{s.SL1}, 0x2000", f"s_add_u32 s{s.T1}, s{s.SL0}, s{s.KP}", f"s_cmp_eq_u32 s{s.REM}, 2",
          f"s_cselect_b32 s{s.T0}, s{s.T1}, s{s.T0}"] + rem_ops(5)
    va = [f"v_add_u32 {v(R.KADDR)}, s{s.T0}, {v(R.LANE16)}"]
    p = ["s_waitcnt vmcnt(16) lgkmcnt(0)", "s_barrier"] + period(cfg, 0, 16384, dma_half(cfg, 0, slot_sg=s.SL2), sa, va)
    chk += p
    for ln in p: A(ln)
    A("s_cbranch_vccnz K2_rare10")
    A.label("K2_c1a")
    va = [f"v_add_u32 {v(R.KADDR)}, s{s.SL1}, {v(R.LANE16)}", f"v_add_u32 {v(R.VADDR)}, s{s.SL0}, {v(R.LANE16)}"]
    p = ["s_waitcnt lgkmcnt(0)"] + period(cfg, 1, 16384 + 8192, dma_half(cfg, 1), rot_slots() + rem_ops(5), va)
    chk += p
    for ln in p: A(ln)
    A("s_cbranch_vccz K2_loop1")
    check_hazards(chk + chk)
    rare("11", 0, 5, "K2_loop1")
    A.label("K2_h1b")
    A(f"s_cmp_eq_u32 s{s.REM}, 0\ns_cbranch_scc1 K2_trans")
    A(f"s_sub_u32 s{s.T0}, 5, s{s.REM}\ns_sub_u32 s{s.T0}, s{s.T0}, s{s.W}")
    apply_mask(A, 1, s.T0)
    A(f"s_cmp_eq_u32 s{s.REM}, 2\ns_cbranch_scc0 K2_loop1")
    A(f"v_add_u32 {v(R.KADDR)}, s{s.KP}, {v(R.KADDR)}")
    A("s_branch K2_loop1")
    rare("10", 1, 5, "K2_c1a")
    A(f"s_cmp_eq_u32 s{s.REM}, 1\ns_cbranch_scc1 K2_swap")
    A(f"s_sub_u32 s{s.T0}, 5, s{s.REM}\ns_sub_u32 s{s.T0}, s{s.T0}, s{s.W}")
    apply_mask(A, 1, s.T0)
    A("s_branch K2_c1a")
    A.label("K2_swap")
    for i in range(32): A(f"v_accvgpr_mov_b32 {a(Qreg(2)+i)}, {a(R.QN+i)}")
    for i in range(16): A(f"v_mov_b32 {v(R.NEGM+16+i)}, 0")
    A(f"s_mov_b32 s{s.T}, 0x7f800000")
    A(f"s_cmp_eq_u32 s{s.I}, 7\ns_cbranch_scc0 K2_c1a")
    mask_a(0)
    A("s_branch K2_c1a")
    A.label("K2_trans")
    stamp(A, cfg, 3)
    A(f"v_accvgpr_read_b32 {v(R.TMP)}, a255\nv_mov_b32 {v(R.TMP+1)}, 7\ns_nop 0\nbuffer_store_byte {v(R.TMP+1)}, {v(R.TMP)}, s[44:47], 0 offen sc1")
    epilogue_b(A)
    init_path(A, 0, 1)
    A(f"s_mov_b32 s{s.T}, {hex(THRESH)}")
    A(f"v_cmp_lt_f32 vcc, s{s.T}, {v(MXr(0))}")
    A(f"s_add_u32 s{s.T0}, s{s.SL0}, s{s.KP}\nv_add_u32 {v(R.KADDR)}, s{s.T0}, {v(R.LANE16)}\nv_mov_b32 {v(R.VADDR)}, {v(R.KADDR)}")
    A(f"s_lshl_b32 s{s.REM}, s{s.I}, 2\ns_sub_u32 s{s.REM}, 30, s{s.REM}")
    A("s_cbranch_vccz K2_t1")
    slow_path(A, 0, slots=(0,))
    A.label("K2_t1")
    stamp(A, cfg, 4)
    A(f"s_cmp_eq_u32 s{s.REM}, 2\ns_cbranch_scc1 K2_h2b")
    A.raw(".p2align 6")
    A.label("K2_loop2")
    chk = []
    sa = rot_slots() + [f"s_add_u32 s{s.T0}, s{s.SL0}, s{s.KP}"] + rem_ops(3)
    va = [f"v_add_u32 {v(R.KADDR)}, s{s.T0}, {v(R.LANE16)}", f"v_add_u32 {v(R.VADDR)}, s{s.T0}, {v(R.LANE16)}"]
    for cur in range(2):
        p = ["s_waitcnt vmcnt(16) lgkmcnt(0)", "s_barrier"] + period(cfg, cur, 16384, dma_half(cfg, 0, slot_sg=s.SL2) + dma_half(cfg, 1), sa, va)
        chk += p
        for ln in p: A(ln)
        if cur == 0:
            A("s_cbranch_vccnz K2_rare20")
            A.label("K2_c2a")
        else:
            A("s_cbranch_vccz K2_loop2")
    check_hazards(chk + chk)
    rare("21", 0, 3, "K2_loop2")
    A.label("K2_h2b")
    mask_a(2)
    A("s_branch K2_loop2")
    rare("20", 1, 3, "K2_c2a")
    A(f"s_cmp_eq_u32 s{s.REM}, 1\ns_cbranch_scc1 K2_tail")
    mask_a(0)
    A("s_branch K2_c2a")
    A.label("K2_tail")
    stamp(A, cfg, 5)
    A("s_waitcnt vmcnt(16) lgkmcnt(0)\ns_barrier")
    for ln in period(cfg, 1, 16384, [], [], [], do_qk=False): A(ln)
    stamp(A, cfg, 6)
    epilogue_a(A)
    if cfg.get("bpart", 1):
        import gen_b
        A("s_nop 1")
        gen_b.b_part2(A, cfg, R, SG)
    if cfg.get("stamps"): A("s_waitcnt vmcnt(0)")
    stamp(A, cfg, 7)
    stamp_flush(A, cfg, s.WS, s.W, R.LANE, 1)
```

```python
from gen_common import *

LOG2E = 0x3fb8aa3b

def crosshalf(A, reg, tmp, op):
    A(f"v_mov_b32 {v(tmp)}, {v(reg)}\ns_nop 1\nv_permlane32_swap_b32 {v(reg)}, {v(tmp)}\n{op} {v(reg)}, {v(reg)}, {v(tmp)}")

def softmax8(A, b, dst, t0, sL):
    m, t = t0, t0 + 1
    A(f"v_max3_f32 {v(m)}, {v(b)}, {v(b+1)}, {v(b+2)}\nv_max3_f32 {v(m)}, {v(m)}, {v(b+3)}, {v(b+4)}")
    A(f"v_max3_f32 {v(m)}, {v(m)}, {v(b+5)}, {v(b+6)}\nv_max_f32 {v(m)}, {v(m)}, {v(b+7)}")
    crosshalf(A, m, t, "v_max_f32")
    A(f"v_mul_f32 {v(m)}, s{sL}, {v(m)}")
    for i in range(8): A(f"v_fma_f32 {v(b+i)}, {v(b+i)}, s{sL}, -{v(m)}")
    for i in range(8): A(f"v_exp_f32 {v(b+i)}, {v(b+i)}")
    A(f"v_add_f32 {v(m)}, {v(b)}, {v(b+1)}\nv_add_f32 {v(t)}, {v(b+2)}, {v(b+3)}")
    A(f"v_add_f32 {v(m)}, {v(m)}, {v(b+4)}\nv_add_f32 {v(t)}, {v(t)}, {v(b+5)}")
    A(f"v_add_f32 {v(m)}, {v(m)}, {v(b+6)}\nv_add_f32 {v(t)}, {v(t)}, {v(b+7)}\nv_add_f32 {v(m)}, {v(m)}, {v(t)}")
    crosshalf(A, m, t, "v_add_f32")
    A(f"v_rcp_f32 {v(m)}, {v(m)}\ns_nop 0")
    for i in range(0, 8, 2): A(f"v_pk_mul_f32 {v(b+i,2)}, {v(b+i,2)}, {v(m,2)} op_sel_hi:[1,0]")
    for p in range(4): A(f"v_cvt_pk_bf16_f32 {v(dst+p)}, {v(b+2*p)}, {v(b+2*p+1)}")

class BR:
    BWV = 160
    XA = 162
    WA = 166
    XC = 168; WC = 172
    PHV = 173
    WP = 176
    T = 184
    WR = 208
    FR = 0
    ACC = 32
    D = 80
    PK = 96
    QF = 112; KF = 120; VF = 128

def slot(st): return ((st + 1) % 5) * 32768

def b_setup(A, R, s):
    L = R.LANE; T = BR.T
    A(f"s_mov_b32 s{s.RBB}, s{s.H}\ns_lshr_b32 s{s.HP}, s2, 5")
    A(f"s_lshl_b32 s{s.BXO}, s{s.RBB}, 16\ns_lshl_b32 s{s.T0}, s{s.W}, 14\ns_add_u32 s{s.BXO}, s{s.BXO}, s{s.T0}")
    A(f"s_mul_i32 s{s.BWO}, s{s.W}, {16*3072}\ns_lshl_b32 s{s.T0}, s{s.HP}, 7\ns_add_u32 s{s.BWO}, s{s.BWO}, s{s.T0}")
    A(f"v_bfe_u32 {v(T)}, {v(L)}, 4, 1\nv_lshlrev_b32 {v(T)}, 2, {v(T)}\nv_and_b32 {v(T+1)}, 7, {v(L)}\nv_xor_b32 {v(T)}, {v(T)}, {v(T+1)}\nv_lshlrev_b32 {v(T)}, 4, {v(T)}")
    A(f"v_lshrrev_b32 {v(T+1)}, 3, {v(L)}\nv_mul_u32_u24 {v(T+1)}, 3072, {v(T+1)}\nv_add_u32 {v(BR.BWV)}, {v(T)}, {v(T+1)}\nv_add_u32 {v(BR.BWV+1)}, {8*3072-1024}, {v(BR.BWV)}")
    A(f"s_lshr_b32 s{s.T0}, s{s.W}, 1\ns_lshl_b32 s{s.T0}, s{s.T0}, 12")
    A(f"v_and_b32 {v(T)}, 31, {v(L)}\nv_bfe_u32 {v(T+1)}, {v(L)}, 1, 3\nv_lshrrev_b32 {v(T+2)}, 5, {v(L)}\nv_xor_b32 {v(T+1)}, {v(T+1)}, {v(T+2)}")
    A(f"v_lshlrev_b32 {v(T+1)}, 4, {v(T+1)}\nv_lshlrev_b32 {v(T)}, 7, {v(T)}\nv_add3_u32 {v(BR.XA)}, {v(T)}, {v(T+1)}, s{s.T0}")
    for t4 in range(1, 4): A(f"v_xor_b32 {v(BR.XA+t4)}, {t4<<5}, {v(BR.XA)}")
    A(f"s_and_b32 s{s.T0}, s{s.W}, 1")
    A(f"v_bfe_u32 {v(T)}, {v(L)}, 2, 2\nv_lshrrev_b32 {v(T+1)}, 5, {v(L)}\nv_lshl_add_u32 {v(T)}, {v(T+1)}, 3, {v(T)}\nv_lshlrev_b32 {v(T)}, 7, {v(T)}")
    A(f"v_bfe_u32 {v(T+1)}, {v(L)}, 3, 1\nv_xor_b32 {v(T+1)}, s{s.T0}, {v(T+1)}\nv_lshl_add_u32 {v(T)}, {v(T+1)}, 6, {v(T)}")
    A(f"v_bfe_u32 {v(T+1)}, {v(L)}, 4, 1\nv_lshl_add_u32 {v(T)}, {v(T+1)}, 5, {v(T)}")
    A(f"v_and_b32 {v(T+1)}, 3, {v(L)}\nv_lshl_add_u32 {v(T)}, {v(T+1)}, 3, {v(T)}\nv_add_u32 {v(BR.WA)}, 0x2000, {v(T)}")
    A(f"v_and_b32 {v(T)}, 15, {v(L)}\nv_lshlrev_b32 {v(T)}, 1, {v(T)}\nv_lshrrev_b32 {v(T+1)}, 5, {v(L)}\nv_lshl_add_u32 {v(BR.PHV)}, {v(T+1)}, 7, {v(T)}")

def b_dma_stage(R, s, st):
    L = []
    L.append(f"s_lshr_b32 s{s.T1}, s{s.DST}, 2")
    L.append(f"s_add_u32 m0, s{s.T1}, {slot(st)}")
    L.append(f"s_add_u32 s{s.SOFF}, s{s.BXO}, {st*128}")
    for j in range(2):
        L.append(f"buffer_load_dwordx4 {v(R.XV+j)}, s[{s.BX}:{s.BX+3}], s{s.SOFF} offen offset:{j*1024} lds")
    for seg in range(3):
        L.append(f"s_add_u32 m0, s{s.T1}, {slot(st) + 8192 + seg*8192}")
        L.append(f"s_add_u32 s{s.SOFF}, s{s.BWO}, {st*64*3072 + seg*1024}")
        for j in range(2):
            L.append(f"buffer_load_dwordx4 {v(BR.BWV+j)}, s[{s.BW}:{s.BW+3}], s{s.SOFF} offen offset:{j*1024} lds")
    return L

def b_wphi_loads(R, s):
    L = [f"s_lshl_b32 s{s.T1}, s{s.HP}, 11", f"s_and_b32 s{s.T2}, s{s.W}, 1", f"s_lshl_b32 s{s.T2}, s{s.T2}, 10", f"s_add_u32 s{s.T1}, s{s.T1}, s{s.T2}"]
    for hh in range(2):
        for e, d in enumerate((0, 1, 2, 3, 8, 9, 10, 11)):
            L.append(f"buffer_load_ushort {v(BR.WR + hh*8 + e)}, {v(BR.PHV)}, s[{s.BP}:{s.BP+3}], s{s.T1} offen offset:{hh*512 + d*32}")
    return L

def b_part1(A, cfg, R, s):
    B = BR
    L = R.LANE
    def addr_stage(st):
        return [f"v_add_u32 {v(B.XC+i)}, {slot(st)}, {v(B.XA+i)}" for i in range(4)] + [f"v_add_u32 {v(B.WC)}, {slot(st)}, {v(B.WA)}"]
    def frag_reads(k):
        t4 = k & 3; fs = B.FR + (k & 1) * 16
        Ls = [f"ds_read_b128 {v(fs + 12, 4)}, {v(B.XC+t4)}"]
        for seg in range(3):
            for rd in range(2):
                Ls.append(f"ds_read_b64_tr_b16 {v(fs + seg*4 + rd*2, 2)}, {v(B.WC)} offset:{seg*8192 + (16*t4 + 4*rd)*128}")
        return Ls
    for ln in addr_stage(0): A(ln)
    A("s_waitcnt vmcnt(32)\ns_barrier")
    for ln in frag_reads(0): A(ln)
    for k in range(32):
        st, t4 = k >> 2, k & 3
        fs = B.FR + (k & 1) * 16
        fill = []
        if t4 == 3:
            need_bar = st <= 2 or 4 <= st <= 6 or st == 7
            if 4 <= st <= 6: A(f"s_waitcnt vmcnt({(6 - st) * 8}) lgkmcnt(0)")
            else: A("s_waitcnt lgkmcnt(0)")
            if need_bar: A("s_barrier")
            if st < 7: fill += addr_stage(st + 1)
        else:
            A("s_waitcnt lgkmcnt(0)")
        if k < 31: fill += frag_reads(k + 1)
        if t4 == 3 and st <= 2: fill += b_dma_stage(R, s, st + 5)
        mf = []
        for seg in range(3):
            acc = B.ACC + seg * 16
            c = "0" if k == 0 else v(acc, 16)
            if seg < 2: mf.append(f"{MF32} {v(acc,16)}, {v(fs + seg*4, 4)}, {v(fs + 12, 4)}, {c}")
            else: mf.append(f"{MF32} {v(acc,16)}, {v(fs + 12, 4)}, {v(fs + seg*4, 4)}, {c}")
        n = len(fill)
        cut = [min(n, 7), min(n, 12)]
        A(mf[0]); [A(x) for x in fill[:cut[0]]]
        A(mf[1]); [A(x) for x in fill[cut[0]:cut[1]]]
        A(mf[2]); [A(x) for x in fill[cut[1]:]]
    stamp(A, cfg, 3)
    T = B.T
    sL = s.T2
    A(f"v_bfe_u32 {v(T)}, {v(L)}, 4, 1\nv_mul_u32_u24 {v(T)}, 0x8000, {v(T)}\nv_lshl_or_b32 {v(T)}, {v(T)}, 16, {v(T)}")
    for i in range(8): A(f"v_lshl_or_b32 {v(B.WP+i)}, {v(B.WR+2*i+1)}, 16, {v(B.WR+2*i)}")
    for i in range(8): A(f"v_xor_b32 {v(B.WP+i)}, {v(T)}, {v(B.WP+i)}")
    A(f"s_mov_b32 s{sL}, {hex(LOG2E)}")
    A(f"s_and_b32 s{s.T0}, s{s.W}, 1\ns_lshl_b32 s{s.T0}, s{s.T0}, 13\ns_lshr_b32 s{s.T1}, s{s.W}, 1\ns_lshl_b32 s{s.T1}, s{s.T1}, 11\ns_add_u32 s{s.T0}, s{s.T0}, s{s.T1}")
    A(f"v_and_b32 {v(T+2)}, 31, {v(L)}\nv_lshlrev_b32 {v(T+2)}, 6, {v(T+2)}\nv_lshrrev_b32 {v(T+3)}, 5, {v(L)}\nv_lshl_add_u32 {v(T+2)}, {v(T+3)}, 3, {v(T+2)}\nv_add_u32 {v(T+2)}, s{s.T0}, {v(T+2)}")
    A(f"s_lshr_b32 s{s.T0}, s{s.DST}, 2\nv_add_u32 {v(T+3)}, s{s.T0}, {v(R.LANE16)}")
    for p in range(8):
        A(f"v_cvt_pk_bf16_f32 {v(B.QF+p)}, {v(B.ACC+2*p)}, {v(B.ACC+2*p+1)}")
        A(f"v_cvt_pk_bf16_f32 {v(B.KF+p)}, {v(B.ACC+16+2*p)}, {v(B.ACC+16+2*p+1)}")
    for p in range(8):
        A(f"v_cvt_pk_bf16_f32 {v(B.VF+p)}, {v(B.ACC+32+2*p)}, {v(B.ACC+32+2*p+1)}")
    for t in range(2): A(f"ds_write_b128 {v(T+3)}, {v(B.VF+t*4,4)} offset:{16384 + t*1024}")
    for i, (src, hh) in enumerate(((B.KF, 0), (B.KF, 1), (B.QF, 0), (B.QF, 1))):
        A(f"{MF32} {v(32+i*16,16)}, {v(B.WP+hh*4,4)}, {v(src+hh*4,4)}, 0")
    A(f"s_lshl_b32 s{s.T0}, s{s.HP}, 2\ns_and_b32 s{s.T1}, s{s.W}, 1\ns_lshl_b32 s{s.T1}, s{s.T1}, 1\ns_add_u32 s{s.T0}, s{s.T0}, s{s.T1}\ns_lshl_b32 s{s.T0}, s{s.T0}, 17")
    A(f"s_lshl_b32 s{s.T1}, s{s.RBB}, 12\ns_add_u32 s{s.T0}, s{s.T0}, s{s.T1}\ns_lshr_b32 s{s.T1}, s{s.W}, 1\ns_lshl_b32 s{s.T1}, s{s.T1}, 11\ns_add_u32 s{s.T0}, s{s.T0}, s{s.T1}")
    A(f"s_add_u32 s{s.T0}, s{s.T0}, {hex(WS_PHIQ)}\ns_add_u32 s{s.T1}, s{s.T0}, 0x20000")
    for hh in range(2):
        for grp in range(2):
            softmax8(A, 32 + hh * 16 + grp * 8, B.PK + grp * 4, T, sL)
        for q in range(4):
            A(f"ds_write_b64 {v(T+2)}, {v(B.PK+q*2,2)} offset:{hh*4096 + q*16}")
    A("s_waitcnt lgkmcnt(0)\ns_barrier")
    A(f"s_lshr_b32 s{s.SOFF}, s{s.DST}, 1")
    A(f"v_bfe_u32 {v(T+4)}, {v(L)}, 2, 2\nv_lshrrev_b32 {v(T+5)}, 5, {v(L)}\nv_lshl_add_u32 {v(T+4)}, {v(T+5)}, 2, {v(T+4)}\nv_lshlrev_b32 {v(T+4)}, 6, {v(T+4)}")
    A(f"v_bfe_u32 {v(T+5)}, {v(L)}, 4, 1\nv_lshl_add_u32 {v(T+4)}, {v(T+5)}, 5, {v(T+4)}\nv_and_b32 {v(T+5)}, 3, {v(L)}\nv_lshl_add_u32 {v(T+4)}, {v(T+5)}, 3, {v(T+4)}\nv_add_u32 {v(T+4)}, s{s.SOFF}, {v(T+4)}")
    A(f"s_lshr_b32 s{s.SOFF}, s{s.W}, 1\ns_lshl_b32 s{s.SOFF}, s{s.SOFF}, 11\ns_and_b32 s{s.CO}, s{s.W}, 1\ns_lshl_b32 s{s.CO}, s{s.CO}, 8\ns_add_u32 s{s.SOFF}, s{s.SOFF}, s{s.CO}")
    A(f"v_and_b32 {v(T+5)}, 0x2ff, {v(R.LANE16)}\nv_add_u32 {v(T+5)}, s{s.SOFF}, {v(T+5)}")
    for u in range(4):
        for rd in range(2):
            A(f"ds_read_b64_tr_b16 {v(u*4 + rd*2, 2)}, {v(T+4)} offset:{(16*u + 8*rd)*64}")
        A(f"ds_read_b128 {v(16 + u*4, 4)}, {v(T+5)} offset:{16384 + (u>>1)*4096 + (u&1)*1024}")
    A(f"v_and_b32 {v(T+6)}, 16, {v(L)}\nv_cmp_ne_u32 vcc, 0, {v(T+6)}\nv_mov_b32 {v(T+6)}, 0x3f803f80")
    for hh in range(2):
        for grp in range(2):
            softmax8(A, 64 + hh * 16 + grp * 8, B.PK + hh * 8 + grp * 4, T, sL)
            A(f"buffer_store_dwordx4 {v(B.PK + hh*8 + grp*4, 4)}, {v(R.LANE16)}, s[{s.WS}:{s.WS+3}], s{s.T0 if hh == 0 else s.T1} offen offset:{grp*1024}")
    A("s_waitcnt lgkmcnt(0)")
    for i in range(16): A(f"v_cndmask_b32 {v(16+i)}, {v(16+i)}, {v(T+6)}, vcc")
    A("s_nop 1")
    for u in range(4):
        A(f"{MF32} {v(32,16)}, {v(u*4,4)}, {v(16+u*4,4)}, " + ("0" if u == 0 else v(32, 16)))
    A(f"s_lshl_b32 s{s.T0}, s{s.HP}, 2\ns_add_u32 s{s.T0}, s{s.T0}, s{s.W}\ns_lshl_b32 s{s.T0}, s{s.T0}, 5\ns_add_u32 s{s.T0}, s{s.T0}, s{s.RBB}\ns_lshl_b32 s{s.T0}, s{s.T0}, 12\ns_add_u32 s{s.T0}, s{s.T0}, {hex(WS_KVP)}")
    A("s_nop 7")
    for q in range(4):
        A(f"buffer_store_dwordx4 {v(32+q*4,4)}, {v(R.LANE16)}, s[{s.WS}:{s.WS+3}], s{s.T0} offen offset:{q*1024}")
    stamp(A, cfg, 4)

def b_part2(A, cfg, R, s):
    L = R.LANE
    T = 200
    A(f"s_lshr_b32 s{s.T0}, s{s.H}, 2\nv_and_b32 {v(T)}, 31, {v(L)}\nv_lshl_add_u32 {v(T)}, {v(T)}, 3, s{s.T0}\ns_mov_b32 s{s.T1}, 0")
    A.label("B2_poll")
    A(f"buffer_load_ubyte {v(T+1)}, {v(T)}, s[44:47], 0 offen sc1\ns_waitcnt vmcnt(0)")
    A(f"v_cmp_ne_u32 vcc, 7, {v(T+1)}\ns_add_u32 s{s.T1}, s{s.T1}, 1\ns_nop 3\ns_cbranch_vccz B2_go\ns_sleep 4\ns_cmp_lt_u32 s{s.T1}, 0x40000\ns_cbranch_scc1 B2_poll")
    A.label("B2_go")
    A(f"s_lshl_b32 s{s.T0}, s{s.H}, 17\ns_lshl_b32 s{s.T1}, s{s.W}, 15\ns_add_u32 s{s.T0}, s{s.T0}, s{s.T1}\ns_add_u32 s{s.T0}, s{s.T0}, {hex(WS_KVP)}")
    for p in range(8):
        for q in range(4):
            A(f"buffer_load_dwordx4 {v(p*16 + q*4, 4)}, {v(R.LANE16)}, s[{s.WS}:{s.WS+3}], s{s.T0} offen offset:{q*1024} sc1")
        A(f"s_add_u32 s{s.T0}, s{s.T0}, 0x1000")
    A(f"s_lshl_b32 s{s.T0}, s{s.H}, 17\ns_lshl_b32 s{s.T1}, s{s.I}, 14\ns_add_u32 s{s.T0}, s{s.T0}, s{s.T1}\ns_lshl_b32 s{s.T1}, s{s.W}, 12\ns_add_u32 s{s.T0}, s{s.T0}, s{s.T1}\ns_add_u32 s{s.T0}, s{s.T0}, {hex(WS_PHIQ)}")
    for q in range(4):
        A(f"buffer_load_dwordx4 {v(128 + q*4, 4)}, {v(R.LANE16)}, s[{s.WS}:{s.WS+3}], s{s.T0} offen offset:{q*1024} sc1")
    A(f"s_lshl_b32 s{s.T1}, s{s.W}, 12\ns_add_u32 s{s.T1}, s{s.T1}, 0x18000\nv_add_u32 {v(T)}, s{s.T1}, {v(R.LANE16)}\nv_add_u32 {v(T+1)}, 0x18000, {v(R.LANE16)}")
    A(f"v_bfe_u32 {v(T+2)}, {v(L)}, 4, 1\nv_lshlrev_b32 {v(T+2)}, 14, {v(T+2)}\nv_and_b32 {v(T+3)}, 15, {v(L)}\nv_lshl_add_u32 {v(T+2)}, {v(T+3)}, 4, {v(T+2)}")
    A(f"v_lshrrev_b32 {v(T+3)}, 5, {v(L)}\nv_lshl_add_u32 {v(T+2)}, {v(T+3)}, 8, {v(T+2)}")
    A(f"s_lshl_b32 s{s.T0}, s{s.I}, 18\ns_lshl_b32 s{s.T1}, s{s.W}, 16\ns_add_u32 s{s.T0}, s{s.T0}, s{s.T1}\ns_lshl_b32 s{s.T1}, s{s.H}, 9\ns_add_u32 s{s.T0}, s{s.T0}, s{s.T1}\ns_add_u32 s{s.T0}, s{s.T0}, {hex(WS_OF)}")
    A(f"s_add_u32 s{s.T1}, s{s.T0}, 0x8000")
    for p in range(1, 8):
        A(f"s_waitcnt vmcnt({4 + (7-p)*4})")
        for i in range(0, 16, 2): A(f"v_pk_add_f32 {v(i,2)}, {v(i,2)}, {v(p*16+i,2)}")
    for q in range(4): A(f"ds_write_b128 {v(T)}, {v(q*4,4)} offset:{q*1024}")
    A("s_waitcnt lgkmcnt(0)\ns_barrier")
    for i in range(16): A(f"ds_read_b128 {v(i*4,4)}, {v(T+1)} offset:{i*1024}")
    A("s_waitcnt lgkmcnt(0) vmcnt(0)")
    for i in range(0, 16, 2):
        A(f"v_pk_add_f32 {v(i,2)}, {v(i,2)}, {v(16+i,2)}\nv_pk_add_f32 {v(32+i,2)}, {v(32+i,2)}, {v(48+i,2)}")
    for i in range(0, 16, 2): A(f"v_pk_add_f32 {v(i,2)}, {v(i,2)}, {v(32+i,2)}")
    for p in range(8): A(f"v_cvt_pk_bf16_f32 {v(16+p)}, {v(2*p)}, {v(2*p+1)}")
    A("s_nop 1")
    for t in range(2):
        A(f"{MF32} {v(32+t*16,16)}, {v(16,4)}, {v(128+t*8,4)}, 0")
    for t in range(2):
        A(f"{MF32} {v(32+t*16,16)}, {v(20,4)}, {v(128+t*8+4,4)}, {v(32+t*16,16)}")
    A("s_nop 15")
    for t in range(2):
        b = 32 + t * 16
        A(f"v_add_f32 {v(b+8)}, 0x358637bd, {v(b+8)}\nv_rcp_f32 {v(b+8)}, {v(b+8)}\ns_nop 0")
        for i in range(0, 8, 2): A(f"v_pk_mul_f32 {v(b+i,2)}, {v(b+i,2)}, {v(b+8,2)} op_sel_hi:[1,0]")
        for p in range(4): A(f"v_cvt_pk_bf16_f32 {v(b+12+p)}, {v(b+2*p)}, {v(b+2*p+1)}")
        A(f"buffer_store_dwordx4 {v(b+12,4)}, {v(T+2)}, s[{s.WS}:{s.WS+3}], s{s.T0 if t == 0 else s.T1} offen")
```

```python
from gen_common import *
from gen_att import weave2

WS_PART = 64 << 20
WS_FLAG = 60 << 20

class R:
    FR = 0
    WV = 64
    BV = 68
    WA = 72
    WB = 76
    CA = 78
    WC = 80
    CC = 84
    LANE16 = 85; LANE = 86; T = 88
    SUM = 0
    BACC = 64

class SG:
    WS = 4; WO = 8; WB = 12; OUT = 16
    W = 20; SL = 21; RB = 22; CB = 23; DST = 24; SOFF = 25; CO = 26; WOO = 27; OFO = 28; WBO = 29; T0 = 30; T1 = 31
    RT = 32; CT = 33; PO = 34; FO = 35; ROT = 36; CUR = 37

NSLOT = 4
def sl(n): return (n % NSLOT) * 32768

def k3(A, cfg, name="k3_kernel"):
    s = SG
    kernel_header(A, name)
    A("s_cmp_ge_u32 s2, 256\ns_cbranch_scc1 K3_end")
    A("s_load_dwordx2 s[44:45], s[0:1], 40\ns_load_dwordx4 s[76:79], s[0:1], 72\ns_load_dwordx2 s[48:49], s[0:1], 96")
    L = R.LANE; T = R.T
    A(f"v_lshrrev_b32 {v(T)}, 6, v0\nv_and_b32 {v(L)}, 63, v0\nv_lshlrev_b32 {v(R.LANE16)}, 4, {v(L)}")
    A(f"v_readfirstlane_b32 s{s.W}, {v(T)}")
    A(f"s_bfe_u32 s{s.SL}, s2, 0x20001\ns_and_b32 s{s.RB}, s2, 1\ns_lshl_b32 s{s.RB}, s{s.RB}, 3\ns_lshr_b32 s{s.T0}, s2, 5\ns_add_u32 s{s.RB}, s{s.RB}, s{s.T0}\ns_bfe_u32 s{s.CB}, s2, 0x20003")
    A(f"s_and_b32 s{s.RT}, s2, 7\ns_lshl_b32 s{s.RT}, s{s.RT}, 2\ns_add_u32 s{s.RT}, s{s.RT}, s{s.CB}\ns_lshr_b32 s{s.CT}, s2, 5")
    A(f"s_lshl_b32 s{s.DST}, s{s.W}, 12")
    if cfg.get("rot3", 0): A(f"s_lshl_b32 s{s.ROT}, s{s.CB}, 1\ns_add_u32 s{s.ROT}, s{s.ROT}, s{s.CT}\ns_lshl_b32 s{s.ROT}, s{s.ROT}, 12")
    else: A(f"s_mov_b32 s{s.ROT}, 0")
    A(f"s_lshl_b32 s{s.CO}, s{s.RB}, 20\ns_lshl_b32 s{s.T0}, s{s.W}, 18\ns_add_u32 s{s.CO}, s{s.CO}, s{s.T0}\ns_lshl_b32 s{s.T0}, s{s.SL}, 15\ns_add_u32 s{s.CO}, s{s.CO}, s{s.T0}\ns_add_u32 s{s.CO}, s{s.CO}, {hex(WS_CTX)}")
    A(f"s_lshl_b32 s{s.WOO}, s{s.SL}, 20\ns_lshl_b32 s{s.T0}, s{s.W}, 14\ns_add_u32 s{s.WOO}, s{s.WOO}, s{s.T0}\ns_lshl_b32 s{s.T0}, s{s.CB}, 8\ns_add_u32 s{s.WOO}, s{s.WOO}, s{s.T0}")
    A(f"s_lshl_b32 s{s.OFO}, s{s.RT}, 16\ns_lshl_b32 s{s.T0}, s{s.W}, 14\ns_add_u32 s{s.OFO}, s{s.OFO}, s{s.T0}\ns_add_u32 s{s.OFO}, s{s.OFO}, {hex(WS_OF)}")
    A(f"s_lshl_b32 s{s.WBO}, s{s.W}, 15\ns_lshl_b32 s{s.T0}, s{s.CT}, 7\ns_add_u32 s{s.WBO}, s{s.WBO}, s{s.T0}")
    A(f"v_lshrrev_b32 {v(T)}, 4, {v(L)}\nv_lshlrev_b32 {v(T+1)}, 1, {v(T)}\nv_and_b32 {v(T+2)}, 15, {v(L)}\nv_xor_b32 {v(T+1)}, {v(T+1)}, {v(T+2)}\nv_lshlrev_b32 {v(T+1)}, 4, {v(T+1)}")
    A(f"v_lshl_add_u32 {v(R.WV)}, {v(T)}, 10, {v(T+1)}\nv_xor_b32 {v(T)}, 128, {v(R.WV)}")
    A(f"v_add_u32 {v(R.WV+1)}, 3072, {v(T)}\nv_add_u32 {v(R.WV+2)}, {3072*2}, {v(R.WV)}\nv_add_u32 {v(R.WV+3)}, {3072*3}, {v(T)}")
    A("s_waitcnt lgkmcnt(0)")
    srd(A, s.WO, 44, 4096 * 512 * 2); srd(A, s.WB, 76, 512 * 512 * 2); srd(A, s.OUT, 78, 2048 * 1024 * 2); srd(A, s.WS, 48, WS_BYTES)
    def stage(n):
        Ls = []
        if n < 16:
            Ls.append(f"s_add_u32 s{s.CUR}, s{s.ROT}, {n*2048}\ns_and_b32 s{s.CUR}, s{s.CUR}, 0x7fff\ns_add_u32 m0, s{s.DST}, {sl(n)}")
            Ls.append(f"s_add_u32 s{s.SOFF}, s{s.CO}, s{s.CUR}")
            for j in range(2): Ls.append(f"buffer_load_dwordx4 {v(R.LANE16)}, s[{s.WS}:{s.WS+3}], s{s.SOFF} offen offset:{j*1024} lds")
            Ls.append(f"s_add_u32 s{s.SOFF}, s{s.SOFF}, {131072 - 2048}")
            for j in range(2, 4): Ls.append(f"buffer_load_dwordx4 {v(R.LANE16)}, s[{s.WS}:{s.WS+3}], s{s.SOFF} offen offset:{j*1024} lds")
            Ls.append(f"s_lshl_b32 s{s.CUR}, s{s.CUR}, 5\ns_add_u32 m0, s{s.DST}, {sl(n) + 16384}")
            Ls.append(f"s_add_u32 s{s.SOFF}, s{s.WOO}, s{s.CUR}")
            for j in range(4): Ls.append(f"buffer_load_dwordx4 {v(R.WV+j)}, s[{s.WO}:{s.WO+3}], s{s.SOFF} offen offset:{j*1024} lds")
        else:
            b = n - 16
            Ls.append(f"s_add_u32 m0, s{s.DST}, {sl(n)}")
            Ls.append(f"s_add_u32 s{s.SOFF}, s{s.OFO}, {b*4096}")
            for j in range(4): Ls.append(f"buffer_load_dwordx4 {v(R.LANE16)}, s[{s.WS}:{s.WS+3}], s{s.SOFF} offen offset:{j*1024} lds")
            Ls.append(f"s_add_u32 m0, s{s.DST}, {sl(n) + 16384}")
            Ls.append(f"s_add_u32 s{s.SOFF}, s{s.WBO}, {b*131072}")
            for j in range(4): Ls.append(f"buffer_load_dwordx4 {v(R.BV+j)}, s[{s.WB}:{s.WB+3}], s{s.SOFF} offen offset:{j*1024} lds")
        return Ls
    stamp(A, cfg, 0)
    for n in range(NSLOT):
        for ln in stage(n): A(ln)
    A(f"v_lshrrev_b32 {v(T)}, 4, {v(L)}\nv_lshlrev_b32 {v(T)}, 1, {v(T)}\nv_and_b32 {v(T+1)}, 7, {v(L)}\nv_xor_b32 {v(T)}, {v(T)}, {v(T+1)}\nv_lshlrev_b32 {v(T)}, 4, {v(T)}")
    A(f"v_lshrrev_b32 {v(T+1)}, 3, {v(L)}\nv_lshl_add_u32 {v(R.BV)}, {v(T+1)}, 10, {v(T)}")
    for j in range(1, 4): A(f"v_add_u32 {v(R.BV+j)}, {7168*j}, {v(R.BV)}")
    A(f"s_lshr_b32 s{s.T0}, s{s.W}, 1\ns_lshl_b32 s{s.T0}, s{s.T0}, 7")
    A(f"v_lshrrev_b32 {v(T)}, 2, {v(L)}\nv_lshlrev_b32 {v(T)}, 8, {v(T)}\nv_bfe_u32 {v(T+1)}, {v(L)}, 2, 3\nv_lshl_add_u32 {v(T)}, {v(T+1)}, 5, {v(T)}")
    A(f"v_and_b32 {v(T+1)}, 3, {v(L)}\nv_lshl_add_u32 {v(T)}, {v(T+1)}, 3, {v(T)}\nv_xor_b32 {v(T)}, s{s.T0}, {v(T)}\nv_add_u32 {v(R.WA)}, 0x4000, {v(T)}")
    for c in range(1, 4): A(f"v_xor_b32 {v(R.WA+c)}, {c<<5}, {v(R.WA)}")
    A(f"s_and_b32 s{s.T0}, s{s.W}, 1\ns_lshl_b32 s{s.T0}, s{s.T0}, 13\nv_add_u32 {v(R.CA)}, s{s.T0}, {v(R.LANE16)}")
    A(f"s_lshr_b32 s{s.T0}, s{s.W}, 1\ns_lshl_b32 s{s.T0}, s{s.T0}, 6")
    A(f"v_bfe_u32 {v(T)}, {v(L)}, 2, 3\nv_lshlrev_b32 {v(T)}, 7, {v(T)}\nv_lshrrev_b32 {v(T+1)}, 5, {v(L)}\nv_lshl_add_u32 {v(T)}, {v(T+1)}, 11, {v(T)}")
    A(f"v_bfe_u32 {v(T+1)}, {v(L)}, 3, 2\nv_lshl_add_u32 {v(T)}, {v(T+1)}, 5, {v(T)}\nv_and_b32 {v(T+1)}, 3, {v(L)}\nv_lshl_add_u32 {v(T)}, {v(T+1)}, 3, {v(T)}")
    A(f"v_xor_b32 {v(T)}, s{s.T0}, {v(T)}\nv_add_u32 {v(R.WB)}, 0x4000, {v(T)}\nv_xor_b32 {v(R.WB+1)}, 32, {v(R.WB)}")
    A(f"s_lshl_b32 s{s.T0}, s{s.RB}, 2\ns_add_u32 s{s.T0}, s{s.T0}, s{s.CB}\ns_lshl_b32 s{s.FO}, s{s.T0}, 7\ns_add_u32 s{s.FO}, s{s.FO}, {hex(WS_FLAG)}")
    A(f"s_lshl_b32 s{s.PO}, s{s.T0}, 17\ns_add_u32 s{s.PO}, s{s.PO}, {hex(WS_PART)}")
    def addr(n):
        if n < 16: return [f"v_add_u32 {v(R.WC+c)}, {sl(n)}, {v(R.WA+c)}" for c in range(4)] + [f"v_add_u32 {v(R.CC)}, {sl(n)}, {v(R.CA)}"]
        return [f"v_add_u32 {v(R.WC+c)}, {sl(n)}, {v(R.WB+c)}" for c in range(2)] + [f"v_add_u32 {v(R.CC)}, {sl(n)}, {v(R.CA)}"]
    def reads(k):
        t2 = k & 1; fs = R.FR + (k & 1) * 32
        Ls = []
        for i in range(4):
            Ls.append(f"ds_read_b128 {v(fs + 16 + i*4, 4)}, {v(R.CC)} offset:{i*2048 + t2*1024}")
            for rd in range(2):
                Ls.append(f"ds_read_b64_tr_b16 {v(fs + i*4 + rd*2, 2)}, {v(R.WC+i)} offset:{(32*t2 + 16*rd)*256}")
        return Ls
    for ln in addr(0): A(ln)
    A(f"s_waitcnt vmcnt({8*(NSLOT-1)})\ns_barrier")
    for ln in reads(0): A(ln)
    for k in range(32):
        st, t2 = k >> 1, k & 1
        fs = R.FR + (k & 1) * 32
        tailv = []; vm = []
        if t2 == 1:
            if st < 15: A(f"s_waitcnt vmcnt({8*(NSLOT-2)}) lgkmcnt(0)")
            else: A("s_waitcnt lgkmcnt(0)")
            A("s_barrier")
            vm = stage(st + NSLOT)[:7 if st + NSLOT < 16 else 6]
        else:
            A("s_waitcnt lgkmcnt(0)")
            if st < 15: tailv = addr(st + 1)
            if st >= 1: vm = stage(st - 1 + NSLOT)[7 if st - 1 + NSLOT < 16 else 6:]
        if k == 31: vm = stage(st + NSLOT)
        mf = []
        for c in range(4):
            for rt in range(4):
                acc = (rt * 4 + c) * 4
                cc = "0" if k == 0 else a(acc, 4)
                mf.append(f"{MF16} {a(acc,4)}, {v(fs + c*4, 4)}, {v(fs + 16 + rt*4, 4)}, {cc}")
        for b in weave2(mf, reads(k + 1) if k < 31 else [], vm, tailv, first=2): A(b)
    stamp(A, cfg, 1)
    A(f"s_lshl_b32 s{s.T0}, s{s.W}, 15\ns_lshl_b32 s{s.T1}, s{s.SL}, 13\ns_add_u32 s{s.T0}, s{s.T0}, s{s.T1}\ns_add_u32 s{s.T0}, s{s.T0}, s{s.PO}\ns_add_u32 s{s.T1}, s{s.T0}, 0x1000")
    for ln in addr(16): A(ln)
    A(f"v_add_u32 {v(T)}, 0x20000, {v(R.LANE16)}")
    A(f"s_cmp_eq_u32 s{s.W}, s{s.SL}\ns_cbranch_scc1 K3_own")
    for f in range(8):
        tb = (f & 3) * 12
        for i in range(8): A(f"v_accvgpr_read_b32 {v(tb+i)}, {a(f*8+i)}")
        for p in range(4): A(f"v_cvt_pk_bf16_f32 {v(tb+8+p)}, {v(tb+2*p)}, {v(tb+2*p+1)}")
        A(f"buffer_store_dwordx4 {v(tb+8,4)}, {v(R.LANE16)}, s[{s.WS}:{s.WS+3}], s{s.T0 if f < 4 else s.T1} offen offset:{(f&3)*1024} sc1")
    A("s_waitcnt vmcnt(8)\ns_branch K3_pub")
    A.label("K3_own")
    for i in range(16): A(f"ds_write_b128 {v(T)}, {a(i*4,4)} offset:{i*1024}")
    A("s_waitcnt vmcnt(0)")
    A.label("K3_pub")
    A("s_barrier")
    stamp(A, cfg, 2)
    def breads(k):
        b, t4 = k >> 2, k & 3; fs = R.FR + (k & 3) * 16
        Ls = []
        for i in range(2):
            Ls.append(f"ds_read_b128 {v(fs + 8 + i*4, 4)}, {v(R.CC)} offset:{i*4096 + t4*1024}")
            for rd in range(2):
                Ls.append(f"ds_read_b64_tr_b16 {v(fs + i*4 + rd*2, 2)}, {v(R.WC+i)} offset:{(32*t4 + 8*rd)*128}")
        return Ls
    for ln in breads(0) + breads(1): A(ln)
    for k in range(16):
        fs = R.FR + (k & 3) * 16
        if k + 2 < 16:
            if (k + 2) % 4 == 0:
                for ln in addr(16 + (k + 2) // 4): A(ln)
            for ln in breads(k + 2): A(ln)
        A(f"s_waitcnt lgkmcnt({12 if k + 2 < 16 else (6 if k == 14 else 0)})")
        for c in range(2):
            for rt in range(2):
                acc = R.BACC + (rt * 2 + c) * 4
                cc = "0" if k == 0 else a(acc, 4)
                A(f"{MF16} {a(acc,4)}, {v(fs + c*4, 4)}, {v(fs + 8 + rt*4, 4)}, {cc}")
    A("s_waitcnt vmcnt(0) lgkmcnt(0)\ns_barrier")
    A(f"s_cmp_eq_u32 s{s.W}, 0\ns_cbranch_scc0 K3_nf")
    A(f"s_lshl_b32 s{s.T0}, s{s.SL}, 2\ns_add_u32 s{s.T0}, s{s.T0}, s{s.FO}\nv_mov_b32 {v(T)}, 1\nv_mov_b32 {v(T+1)}, 0")
    A(f"s_mov_b64 exec, 1\nbuffer_store_dword {v(T)}, {v(T+1)}, s[{s.WS}:{s.WS+3}], s{s.T0} offen sc1\ns_mov_b64 exec, -1")
    A.label("K3_nf")
    A(f"v_and_b32 {v(T)}, 15, {v(L)}\nv_lshlrev_b32 {v(T)}, 11, {v(T)}\nv_lshrrev_b32 {v(T+1)}, 4, {v(L)}\nv_lshl_add_u32 {v(T+2)}, {v(T+1)}, 3, {v(T)}")
    A(f"v_lshl_add_u32 {v(T+3)}, {v(T+1)}, 5, {v(T)}")
    A(f"s_lshl_b32 s{s.T0}, s{s.RT}, 17\ns_and_b32 s{s.T1}, s{s.W}, 1\ns_lshl_b32 s{s.T1}, s{s.T1}, 16\ns_add_u32 s{s.T0}, s{s.T0}, s{s.T1}")
    A(f"s_lshl_b32 s{s.T1}, s{s.CT}, 7\ns_add_u32 s{s.T0}, s{s.T0}, s{s.T1}\ns_lshr_b32 s{s.T1}, s{s.W}, 1\ns_lshl_b32 s{s.T1}, s{s.T1}, 6\ns_add_u32 s{s.T0}, s{s.T0}, s{s.T1}\ns_add_u32 s{s.T1}, s{s.T0}, 0x8000")
    for i in range(16): A(f"v_accvgpr_read_b32 {v(i)}, {a(R.BACC+i)}")
    for p in range(8): A(f"v_cvt_pk_bf16_f32 {v(16+p)}, {v(2*p)}, {v(2*p+1)}")
    for rt in range(2):
        for c in range(2):
            A(f"buffer_store_dwordx2 {v(16 + (rt*2+c)*2, 2)}, {v(T+2)}, s[{s.OUT}:{s.OUT+3}], s{s.T0 if rt == 0 else s.T1} offen offset:{1024 + c*32}")
    stamp(A, cfg, 3)
    A(f"s_add_u32 s{s.T1}, s{s.DST}, 0x20000\nv_add_u32 {v(T)}, s{s.T1}, {v(R.LANE16)}")
    for c in range(4): A(f"ds_read_b128 {v(48+c*4,4)}, {v(T)} offset:{c*1024}")
    A(f"v_mov_b32 {v(T+1)}, 0\ns_mov_b32 s{s.T1}, 0")
    A.label("K3_poll")
    A(f"buffer_load_dwordx4 {v(T+4,4)}, {v(T+1)}, s[{s.WS}:{s.WS+3}], s{s.FO} offen sc1")
    A("s_waitcnt vmcnt(0)")
    A(f"v_and_b32 {v(T+4)}, {v(T+4)}, {v(T+5)}\nv_and_b32 {v(T+6)}, {v(T+6)}, {v(T+7)}\nv_and_b32 {v(T+4)}, {v(T+4)}, {v(T+6)}")
    A(f"v_cmp_eq_u32 vcc, 1, {v(T+4)}\ns_nop 4\ns_cbranch_vccnz K3_go\ns_sleep 2\ns_add_u32 s{s.T1}, s{s.T1}, 1\ns_cmp_lt_u32 s{s.T1}, 0x40000\ns_cbranch_scc1 K3_poll")
    A.label("K3_go")
    stamp(A, cfg, 4)
    A(f"s_lshl_b32 s{s.T0}, s{s.SL}, 15\ns_add_u32 s{s.T0}, s{s.T0}, s{s.PO}\ns_lshl_b32 s{s.T1}, s{s.W}, 11\ns_add_u32 s{s.T0}, s{s.T0}, s{s.T1}")
    for j in range(1, 4):
        A(f"s_add_u32 s{s.T1}, s{s.SL}, {j}\ns_and_b32 s{s.T1}, s{s.T1}, 3\ns_lshl_b32 s{s.T1}, s{s.T1}, 13\ns_add_u32 s{s.T1}, s{s.T1}, s{s.T0}")
        for u in range(2):
            A(f"buffer_load_dwordx4 {v(16 + (j-1)*8 + u*4, 4)}, {v(R.LANE16)}, s[{s.WS}:{s.WS+3}], s{s.T1} offen offset:{u*1024} sc1")
    A(f"s_lshl_b32 s{s.T0}, s{s.RB}, 18\ns_and_b32 s{s.T1}, s{s.SL}, 1\ns_lshl_b32 s{s.T1}, s{s.T1}, 17\ns_add_u32 s{s.T0}, s{s.T0}, s{s.T1}\ns_lshl_b32 s{s.T1}, s{s.W}, 15\ns_add_u32 s{s.T0}, s{s.T0}, s{s.T1}")
    A(f"s_lshl_b32 s{s.T1}, s{s.CB}, 8\ns_add_u32 s{s.T0}, s{s.T0}, s{s.T1}\ns_lshr_b32 s{s.T1}, s{s.SL}, 1\ns_lshl_b32 s{s.T1}, s{s.T1}, 7\ns_add_u32 s{s.T0}, s{s.T0}, s{s.T1}")
    A("s_waitcnt lgkmcnt(0)")
    for j in range(3):
        A(f"s_waitcnt vmcnt({4 - 2*j})")
        for p in range(8):
            r = 16 + j * 8 + p
            A(f"v_lshlrev_b32 {v(40)}, 16, {v(r)}\nv_and_b32 {v(41)}, 0xffff0000, {v(r)}\nv_pk_add_f32 {v(48+2*p,2)}, {v(48+2*p,2)}, {v(40,2)}")
    for p in range(8): A(f"v_cvt_pk_bf16_f32 {v(16+p)}, {v(48+2*p)}, {v(48+2*p+1)}")
    for c in range(4):
        A(f"buffer_store_dwordx2 {v(16+c*2,2)}, {v(T+2)}, s[{s.OUT}:{s.OUT+3}], s{s.T0} offen offset:{c*32}")
    if cfg.get("stamps"): A("s_waitcnt vmcnt(0)")
    stamp(A, cfg, 7)
    stamp_flush(A, cfg, s.WS, s.W, R.LANE, 2)
    A.label("K3_end")
    A("s_endpgm")
```

```python
from gen_common import *
import gen_att as att
from gen_att import weave2, pk_scalar, dma_half
from gen_b import softmax8, LOG2E

class R:
    XV = 128; WV = 132; XC = 136; WC = 138; TK = 147; CT = 148
    BWV = 156; BXA = 158; BWA = 162; PHV = 163; FLV = 164; FLD = 165; PLV = 166
    PFV = 168
    ACC = 176
    WR = 224
    T = 240
    LANE16 = 252; LANE = 253; SCL = 254
    GFR = 128
    BFR = 128
    PK = 96; QF = 112; KF = 120; VF = 148; WP = 168

class SG(att.SG):
    C = 8; WK = 12; WV = 16
    RB = 22; DST2 = 31; OUT = 32; PF = 44; CO = 48; WO = 49
    BX = 64; BW = 68; BP = 72
    BXO = 26; BWO = 27; PFO = 28; PFO2 = 25
    PTR = 76

def ptr(i): return SG.PTR + 2 * i

def resolve_waits(lines):
    out = []; seq = []
    for ln in lines:
        t = ln.strip()
        if t.startswith("WAITV"):
            parts = t.split()
            tags = parts[1].split(",")
            last = max((i for i, g in enumerate(seq) if g in tags), default=None)
            assert last is not None, t
            n = min(len(seq) - 1 - last, 63)
            out.append(f"    s_waitcnt vmcnt({n})" + (f" lgkmcnt({parts[2][1:] or 0})" if len(parts) > 2 else ""))
            continue
        if t.startswith(("buffer_", "global_")):
            tag = t.split("@")[1].strip() if "@" in t else ""
            if tag != "opt": seq.append(tag)
            ln = ln.split(";")[0].rstrip()
        out.append(ln)
    return out

def tagged(lines, tag):
    return [l + f" ; @{tag}" if l.startswith("buffer") else l for l in lines]

def bslot(st): return (st % 5) * 32768

def b_stage(st):
    s = SG
    L = [f"s_lshr_b32 s{s.T1}, s{s.DST}, 2", f"s_add_u32 m0, s{s.T1}, {bslot(st)}", f"s_add_u32 s{s.SOFF}, s{s.BXO}, {st*128}"]
    for j in range(2): L.append(f"buffer_load_dwordx4 {v(R.XV+j)}, s[{s.BX}:{s.BX+3}], s{s.SOFF} offen offset:{j*1024} lds")
    for seg in range(3):
        L.append(f"s_add_u32 m0, s{s.T1}, {bslot(st) + 8192 + seg*8192}")
        L.append(f"s_add_u32 s{s.SOFF}, s{s.BWO}, {st*64*3072 + seg*1024}")
        for j in range(2): L.append(f"buffer_load_dwordx4 {v(R.BWV+j)}, s[{s.BW}:{s.BW+3}], s{s.SOFF} offen offset:{j*1024} lds")
    return tagged(L, f"b{st}")

QBUF = 49152
def g_stage(n):
    s = SG
    gi, st = n >> 3, n & 7
    buf = (n % 3) * QBUF
    L = []
    if n == 16:
        L += [f"s_mov_b32 s{s.C}, s{ptr(0)}", f"s_and_b32 s{s.C+1}, s{ptr(0)+1}, 0xffff", f"s_mov_b32 s{s.WK}, s{ptr(2)}", f"s_and_b32 s{s.WK+1}, s{ptr(2)+1}, 0xffff"]
    for blk in range(2):
        L.append(f"s_add_u32 m0, s{s.DST}, {buf + blk*4096}")
        if gi < 2: L.append(f"s_add_u32 s{s.SOFF}, s{s.CO}, {st*128 + blk*32768}")
        else: L.append(f"s_add_u32 s{s.SOFF}, s{s.XA_ + blk}, {st*128}")
        for j in range(4): L.append(f"buffer_load_dwordx4 {v(R.XV+j)}, s[{s.C}:{s.C+3}], s{s.SOFF} offen offset:{j*1024} lds")
    sr = s.WV if gi == 1 else s.WK
    L.append(f"s_add_u32 m0, s{s.DST2}, {buf + 32768}")
    L.append(f"s_add_u32 s{s.SOFF}, s{s.WO}, {st*64*8192}")
    for j in range(4): L.append(f"buffer_load_dwordx4 {v(R.WV+j)}, s[{sr}:{sr+3}], s{s.SOFF} offen offset:{j*1024} lds")
    return tagged(L, f"g{n}")

def split_vm(L, nfirst):
    c = 0
    for i, t in enumerate(L):
        if t.startswith("buffer"):
            c += 1
            if c == nfirst: return L[:i + 1], L[i + 1:]
    return L, []

def addr_delta(d):
    m = hex(d & 0xffffffff)
    return [f"v_add_u32 {v(R.XC+i)}, {m}, {v(R.XC+i)}" for i in range(10)]

def conv(isV, f):
    s = SG
    if isV:
        t = R.CT
        V = [f"v_accvgpr_read_b32 {v(t+i)}, {a(f*8+i)}" for i in (4, 5, 6, 7, 0, 1, 2, 3)]
    else:
        t = f * 8; V = []
    V += [f"v_cvt_pk_bf16_f32 {v(t+p)}, {v(t+2*p)}, {v(t+2*p+1)}" for p in range(4)]
    S = [f"s_add_u32 s{s.FLG}, s{s.OUT}, {(f >> 3) * 16384 + isV * 8192 + ((f >> 2) & 1) * 4096}",
         f"buffer_store_dwordx4 {v(t,4)}, {v(R.LANE16)}, s[{s.WS}:{s.WS+3}], s{s.FLG} offen offset:{(f&3)*1024} sc1"]
    return V, S

def b_reads(k):
    t4 = k & 3; fs = R.BFR + (k & 3) * 16
    Ls = [f"ds_read_b128 {a(fs + 12, 4)}, {v(R.BXA+t4)}"]
    for seg in range(3):
        for rd in range(2):
            Ls.append(f"ds_read_b64_tr_b16 {a(fs + seg*4 + rd*2, 2)}, {v(R.BWA)} offset:{seg*8192 + (16*t4 + 4*rd)*128}")
    return Ls

class Tick:
    def __init__(self, on): self.on = on; self.n = 0
    def __call__(self, A):
        if not self.on or self.n > 64: return
        if self.n > 0: A(f"v_writelane_b32 v{R.TK}, s{52 + 2*((self.n-1)&1)}, {self.n-1}")
        A(f"s_memrealtime s[{52 + 2*(self.n&1)}:{53 + 2*(self.n&1)}]")
        self.n += 1

def ka(A0, cfg, name="ka_kernel"):
    s = SG
    tick = Tick(cfg.get("ticks"))
    fcfg = cfg if cfg.get("stampset", "front") == "front" else dict(cfg, stamps=0)
    acfg = cfg if cfg.get("stampset", "front") != "front" else dict(cfg, stamps=0)
    kernel_header(A0, name)
    A = Asm(); A._lab = 1000
    A("s_cmp_ge_u32 s2, 256\ns_cbranch_scc1 KA_end")
    A(f"s_load_dwordx16 s[{s.PTR}:{s.PTR+15}], s[0:1], 0\ns_load_dwordx4 s[{s.PTR+16}:{s.PTR+19}], s[0:1], 64\ns_load_dwordx4 s[52:55], s[0:1], 88")
    L = R.LANE; T = R.T
    A(f"v_lshrrev_b32 {v(T)}, 6, v0\nv_and_b32 {v(L)}, 63, v0\nv_lshlrev_b32 {v(R.LANE16)}, 4, {v(L)}")
    A(f"v_readfirstlane_b32 s{s.W}, {v(T)}")
    A(f"s_and_b32 s{s.H}, s2, 7\ns_lshl_b32 s{s.H}, s{s.H}, 2\ns_bfe_u32 s{s.T0}, s2, 0x20003\ns_add_u32 s{s.H}, s{s.H}, s{s.T0}")
    A(f"s_lshr_b32 s{s.RB}, s2, 5")
    A(f"s_lshl_b32 s{s.DST}, s{s.W}, 13\ns_lshl_b32 s{s.DST2}, s{s.W}, 12")
    A(f"s_lshl_b32 s{s.CO}, s{s.RB}, 18\ns_lshl_b32 s{s.T0}, s{s.W}, 16\ns_add_u32 s{s.CO}, s{s.CO}, s{s.T0}")
    A(f"s_lshl_b32 s{s.WO}, s{s.H}, 8\ns_lshl_b32 s{s.T0}, s{s.W}, 17\ns_add_u32 s{s.WO}, s{s.WO}, s{s.T0}")
    A(f"v_lshrrev_b32 {v(T)}, 4, {v(L)}\nv_and_b32 {v(T+1)}, 7, {v(L)}\nv_xor_b32 {v(T)}, {v(T)}, {v(T+1)}\nv_lshlrev_b32 {v(T)}, 4, {v(T)}")
    A(f"v_lshrrev_b32 {v(T+1)}, 3, {v(L)}\nv_lshlrev_b32 {v(T+1)}, 10, {v(T+1)}\nv_add_u32 {v(R.XV)}, {v(T)}, {v(T+1)}")
    A(f"v_xor_b32 {v(T)}, 64, {v(R.XV)}")
    A(f"v_add_u32 {v(R.XV+1)}, {7168}, {v(T)}\nv_add_u32 {v(R.XV+2)}, {7168*2}, {v(R.XV)}\nv_add_u32 {v(R.XV+3)}, {7168*3}, {v(T)}")
    A(f"v_lshrrev_b32 {v(T)}, 4, {v(L)}\nv_lshlrev_b32 {v(T+1)}, 1, {v(T)}\nv_and_b32 {v(T+2)}, 15, {v(L)}\nv_xor_b32 {v(T+1)}, {v(T+1)}, {v(T+2)}")
    A(f"v_lshlrev_b32 {v(T+1)}, 4, {v(T+1)}\nv_lshlrev_b32 {v(T)}, 13, {v(T)}\nv_add_u32 {v(R.WV)}, {v(T)}, {v(T+1)}")
    A(f"v_xor_b32 {v(T)}, 128, {v(R.WV)}")
    A(f"v_add_u32 {v(R.WV+1)}, {31744}, {v(R.WV)}\nv_add_u32 {v(R.WV+2)}, {31744*2}, {v(T)}\nv_add_u32 {v(R.WV+3)}, {31744*3}, {v(T)}")
    A("s_waitcnt lgkmcnt(0)")
    srd(A, s.C, ptr(1), 2048 * 512 * 2); srd(A, s.WK, ptr(3), 512 * 4096 * 2); srd(A, s.WV, ptr(4), 512 * 4096 * 2); srd(A, s.WS, 54, WS_BYTES)
    A(f"s_mov_b32 s{s.REM}, s52\ns_mov_b32 s{s.T}, s53")
    stamp(A, cfg, 0)
    for n in range(3):
        for ln in g_stage(n): A(ln)
    srd(A, s.BX, ptr(6), 2048 * 512 * 2); srd(A, s.BW, ptr(7), 512 * 1536 * 2); srd(A, s.BP, ptr(8), 32 * 256 * 2)
    A(f"v_and_b32 {v(T)}, 15, {v(L)}\nv_lshrrev_b32 {v(T+1)}, 1, {v(T)}\nv_lshrrev_b32 {v(T+2)}, 4, {v(L)}\nv_xor_b32 {v(T+1)}, {v(T+1)}, {v(T+2)}")
    A(f"v_lshlrev_b32 {v(T+1)}, 4, {v(T+1)}\nv_lshlrev_b32 {v(T)}, 7, {v(T)}\nv_add3_u32 {v(R.XC)}, {v(T)}, {v(T+1)}, s{s.DST}")
    A(f"v_xor_b32 {v(R.XC+1)}, 64, {v(R.XC)}")
    A(f"v_bfe_u32 {v(T)}, {v(L)}, 2, 2")
    A(f"v_lshrrev_b32 {v(T+1)}, 4, {v(L)}\nv_lshlrev_b32 {v(T+1)}, 3, {v(T+1)}\nv_add_u32 {v(T+1)}, {v(T+1)}, {v(T)}\nv_lshlrev_b32 {v(T+1)}, 8, {v(T+1)}")
    A(f"v_bfe_u32 {v(T)}, {v(L)}, 2, 3\nv_lshlrev_b32 {v(T)}, 5, {v(T)}\nv_add_u32 {v(T+1)}, {v(T+1)}, {v(T)}")
    A(f"v_and_b32 {v(T)}, 3, {v(L)}\nv_lshlrev_b32 {v(T)}, 3, {v(T)}\nv_add_u32 {v(T+1)}, {v(T+1)}, {v(T)}\nv_add_u32 {v(R.WC)}, 0x8000, {v(T+1)}")
    for dt in range(1, 8): A(f"v_xor_b32 {v(R.WC+dt)}, {dt<<5}, {v(R.WC)}")
    A(f"s_lshl_b32 s{s.OUT}, s{s.H}, 20\ns_lshl_b32 s{s.T0}, s{s.RB}, 17\ns_add_u32 s{s.OUT}, s{s.OUT}, s{s.T0}\ns_lshl_b32 s{s.T0}, s{s.W}, 15\ns_add_u32 s{s.OUT}, s{s.OUT}, s{s.T0}")
    A(f"s_sub_u32 s{s.BA}, 15, s{s.I}")
    A(f"s_lshl_b32 s{s.XA_}, s{s.BA}, 17\ns_add_u32 s{s.XA_}, s{s.XA_}, s{s.T0}\ns_lshl_b32 s{s.XB_}, s{s.I}, 17\ns_add_u32 s{s.XB_}, s{s.XB_}, s{s.T0}")
    A(f"s_lshl_b32 s{s.BXO}, s{s.H}, 16\ns_lshl_b32 s{s.T0}, s{s.W}, 14\ns_add_u32 s{s.BXO}, s{s.BXO}, s{s.T0}")
    A(f"s_mul_i32 s{s.BWO}, s{s.W}, {16*3072}\ns_lshl_b32 s{s.T0}, s{s.RB}, 7\ns_add_u32 s{s.BWO}, s{s.BWO}, s{s.T0}")
    A(f"v_bfe_u32 {v(T)}, {v(L)}, 4, 1\nv_lshlrev_b32 {v(T)}, 2, {v(T)}\nv_and_b32 {v(T+1)}, 7, {v(L)}\nv_xor_b32 {v(T)}, {v(T)}, {v(T+1)}\nv_lshlrev_b32 {v(T)}, 4, {v(T)}")
    A(f"v_lshrrev_b32 {v(T+1)}, 3, {v(L)}\nv_mul_u32_u24 {v(T+1)}, 3072, {v(T+1)}\nv_add_u32 {v(R.BWV)}, {v(T)}, {v(T+1)}\nv_add_u32 {v(R.BWV+1)}, {8*3072-1024}, {v(R.BWV)}")
    A(f"s_lshr_b32 s{s.T0}, s{s.W}, 1\ns_lshl_b32 s{s.T0}, s{s.T0}, 12")
    A(f"v_and_b32 {v(T)}, 31, {v(L)}\nv_bfe_u32 {v(T+1)}, {v(L)}, 1, 3\nv_lshrrev_b32 {v(T+2)}, 5, {v(L)}\nv_xor_b32 {v(T+1)}, {v(T+1)}, {v(T+2)}")
    A(f"v_lshlrev_b32 {v(T+1)}, 4, {v(T+1)}\nv_lshlrev_b32 {v(T)}, 7, {v(T)}\nv_add3_u32 {v(R.BXA)}, {v(T)}, {v(T+1)}, s{s.T0}")
    for t4 in range(1, 4): A(f"v_xor_b32 {v(R.BXA+t4)}, {t4<<5}, {v(R.BXA)}")
    A(f"s_and_b32 s{s.T0}, s{s.W}, 1")
    A(f"v_bfe_u32 {v(T)}, {v(L)}, 2, 2\nv_lshrrev_b32 {v(T+1)}, 5, {v(L)}\nv_lshl_add_u32 {v(T)}, {v(T+1)}, 3, {v(T)}\nv_lshlrev_b32 {v(T)}, 7, {v(T)}")
    A(f"v_bfe_u32 {v(T+1)}, {v(L)}, 3, 1\nv_xor_b32 {v(T+1)}, s{s.T0}, {v(T+1)}\nv_lshl_add_u32 {v(T)}, {v(T+1)}, 6, {v(T)}")
    A(f"v_bfe_u32 {v(T+1)}, {v(L)}, 4, 1\nv_lshl_add_u32 {v(T)}, {v(T+1)}, 5, {v(T)}")
    A(f"v_and_b32 {v(T+1)}, 3, {v(L)}\nv_lshl_add_u32 {v(T)}, {v(T+1)}, 3, {v(T)}\nv_add_u32 {v(R.BWA)}, 0x2000, {v(T)}")
    A(f"v_and_b32 {v(T)}, 15, {v(L)}\nv_lshlrev_b32 {v(T)}, 1, {v(T)}\nv_lshrrev_b32 {v(T+1)}, 5, {v(L)}\nv_lshl_add_u32 {v(R.PHV)}, {v(T+1)}, 7, {v(T)}")
    A(f"v_mov_b32 {v(R.SCL)}, 0x3e0293ee")
    A(f"s_lshl_b32 s{s.T0}, s{s.H}, 3\ns_add_u32 s{s.T1}, s{s.T0}, s{s.RB}\ns_cmp_eq_u32 s{s.W}, 0\ns_cselect_b32 s{s.T1}, s{s.T1}, 0x1000\ns_cselect_b32 s{s.T0}, s{s.T0}, 0x1000")
    A(f"v_mov_b32 {v(R.FLV)}, 0x1000\nv_writelane_b32 {v(R.FLV)}, s{s.T1}, 0\nv_mov_b32 v146, s{s.T0}")
    A(f"s_lshl_b32 s{s.PFO}, s2, 2\ns_add_u32 s{s.PFO}, s{s.PFO}, s{s.W}\ns_mov_b32 s{s.PF+3}, 0x00020000")
    P = R.PFV
    A(f"v_mul_u32_u24 {v(P)}, 24, {v(L)}\nv_lshlrev_b32 {v(P+1)}, 3, {v(L)}")
    plan = []
    for pi, nbytes, n in ((4, 4 << 20, 4), (0, 2 << 20, 2), (2, 4 << 20, 4), (6, 2 << 20, 2), (7, 1536 * 1024, 1), (5, 4 << 20, 4), (9, 512 * 1024, 1)):
        for j in range(n):
            vo = R.LANE16 if nbytes >= (2 << 20) else (P if pi == 7 else P + 1)
            pre = [f"s_mov_b32 s{s.PF}, s{ptr(pi)}", f"s_and_b32 s{s.PF+1}, s{ptr(pi)+1}, 0xffff", f"s_mov_b32 s{s.PF+2}, {nbytes}", f"s_mul_i32 s{s.PFO2}, s{s.PFO}, {nbytes // 1024}"] if j == 0 else []
            plan.append(pre + [f"buffer_load_dword {v(P+2)}, {v(vo)}, s[{s.PF}:{s.PF+3}], s{s.PFO2} offen offset:{j*1024} ; @pf"])
    pf0 = cfg.get("pf0", 1)
    if not cfg.get("pf", 1): plan = []
    dbg_srd = [f"s_mov_b32 s{s.PF}, s{s.REM}", f"s_and_b32 s{s.PF+1}, s{s.T}, 0xffff", f"s_mov_b32 s{s.PF+2}, 256"]
    def signal(val): return [f"buffer_store_byte {v(R.FLD)}, {v(R.FLV)}, s[{s.PF}:{s.PF+3}], 0 offen sc1 ; @sig"]
    poll_ld = lambda tag: [f"buffer_load_dwordx2 {v(R.PLV,2)}, v146, s[{s.PF}:{s.PF+3}], 0 offen sc1 ; @{tag}"]
    def poll_chk(mask, tag):
        chk = f"v_and_b32 {v(R.PLV)}, {v(R.PLV)}, {v(R.PLV+1)}\nv_and_b32 {v(R.PLV)}, {hex(mask)}, {v(R.PLV)}\nv_cmp_eq_u32 vcc, {hex(mask)}, {v(R.PLV)}"
        A(f"s_cmp_eq_u32 s{s.W}, 0\ns_cbranch_scc0 KA_rdy{tag}")
        A(chk + f"\ns_mov_b32 s{s.T0}, 0\ns_nop 3\ns_cbranch_vccnz KA_rdy{tag}")
        A.label(f"KA_poll{tag}")
        A(f"s_sleep 4\nbuffer_load_dwordx2 {v(R.PLV,2)}, v146, s[{s.PF}:{s.PF+3}], 0 offen sc1 ; @opt\ns_waitcnt vmcnt(0)")
        A(chk + f"\ns_add_u32 s{s.T0}, s{s.T0}, 1\ns_nop 3\ns_cbranch_vccnz KA_rdy{tag}\ns_cmp_lt_u32 s{s.T0}, 0x40000\ns_cbranch_scc1 KA_poll{tag}")
        A.label(f"KA_rdy{tag}")
    wphi = [f"s_lshl_b32 s{s.PFO}, s{s.RB}, 11", f"s_and_b32 s{s.T2}, s{s.W}, 1", f"s_lshl_b32 s{s.T2}, s{s.T2}, 10", f"s_add_u32 s{s.PFO}, s{s.PFO}, s{s.T2}"]
    for hh in range(2):
        for e, d in enumerate((0, 1, 2, 3, 8, 9, 10, 11)):
            wphi.append(f"buffer_load_ushort {v(R.WR + hh*8 + e)}, {v(R.PHV)}, s[{s.BP}:{s.BP+3}], s{s.PFO} offen offset:{hh*512 + d*32} ; @wp")
    def g_reads(k):
        t2 = k & 1; fs = R.GFR + (k & 1) * 48
        Ls = [f"ds_read_b128 {a(fs + 32 + rt*4, 4)}, {v(R.XC+t2)} offset:{rt*2048}" for rt in range(4)]
        for dt in range(8):
            for rd in range(2): Ls.append(f"ds_read_b64_tr_b16 {a(fs + dt*4 + rd*2, 2)}, {v(R.WC+dt)} offset:{(32*t2 + 4*rd)*256}")
        return Ls
    vm = {k: [] for k in range(49)}
    for n in range(21):
        h0, h1 = split_vm(g_stage(n + 3), 6)
        vm[2 * n + 1] += h0; vm[2 * n + 2] += h1
    npf = cfg.get("npf", 13); ppk = cfg.get("pf_per_k", 2)
    npre = cfg.get("pf_pre", 0)
    for p in plan[:npre]:
        for x in p: A(x)
    for i, p in enumerate(plan[npre:npf]): vm[pf0 + i // ppk] += p
    vm[40] = dbg_srd + vm[40]
    vlast = cfg.get("v_last", 42)
    vk = [32 + (f * (vlast - 31)) // 16 for f in range(16)]
    h0, h1 = split_vm(wphi, 8)
    vm[43] += b_stage(0); vm[44] += h0; vm[45] += b_stage(1); vm[46] += b_stage(2); vm[47] += b_stage(3); vm[48] += b_stage(4)
    A("WAITV g0\ns_barrier")
    for ln in g_reads(0): A(ln)
    for k in range(48):
        n, t2 = k >> 1, k & 1
        gi = k >> 4
        fs = R.GFR + (k & 1) * 48
        tailv = []
        if t2 == 1:
            tags = [f"g{n+1}"] if n < 23 else ["b0"]
            A(f"WAITV {','.join(tags)} L\ns_barrier")
        else:
            A("s_waitcnt lgkmcnt(0)")
            if n < 23: tailv = addr_delta(((n + 1) % 3 - n % 3) * QBUF)
        if k % 2 == 0: tick(A)
        if k in (16, 32): stamp(A, fcfg, k // 16)
        post = []
        if gi == 1:
            V, S = conv(0, k & 15); tailv = V + tailv; post = S
        if gi == 2:
            fl = [f for f in range(16) if vk[f] == k]
            for j, f in enumerate(fl):
                V, S = conv(1, f)
                if j == 0: tailv = V + tailv; post = S
                else: post = post + V + S
        mf = []
        for dt in range(8):
            for rt in range(4):
                W_, X_ = a(fs + dt * 4, 4), a(fs + 32 + rt * 4, 4)
                if gi == 1:
                    acc = a((((rt >> 1) * 8 + dt) * 2 + (rt & 1)) * 4, 4); ops = f"{X_}, {W_}"
                else:
                    acc = v((rt * 8 + dt) * 4, 4); ops = f"{W_}, {X_}"
                mf.append(f"{MF16} {acc}, {ops}, " + ("0" if k % 16 == 0 else acc))
        rd = g_reads(k + 1) if k < 47 else b_reads(0) + b_reads(1)
        for b in weave2(mf, rd, vm[k], tailv, first=2): A(b)
        for x in post: A(x)
    stamp(A, fcfg, 3)
    srd(A, s.KV, s.WS, WS_BYTES)
    A(f"s_and_b32 s{s.KP}, s{s.W}, 1\ns_lshl_b32 s{s.T0}, s{s.KP}, 14\ns_lshr_b32 s{s.CO}, s{s.W}, 1\ns_lshl_b32 s{s.T2}, s{s.CO}, 13")
    A(f"s_lshl_b32 s{s.SRC}, s{s.H}, 20\ns_add_u32 s{s.WQO}, s{s.BA}, 1\ns_lshl_b32 s{s.WQO}, s{s.WQO}, 16\ns_add_u32 s{s.WQO}, s{s.WQO}, s{s.SRC}")
    A(f"s_add_u32 s{s.SRC}, s{s.SRC}, s{s.T0}\ns_add_u32 s{s.SRC}, s{s.SRC}, s{s.T2}")
    A(f"s_cmp_eq_u32 s{s.CO}, 1\ns_cselect_b32 s{s.KV+2}, 0, s{s.WQO}\ns_lshl_b32 s{s.CO}, s{s.CO}, 15\ns_lshl_b32 s{s.KP}, s{s.KP}, 13")
    ring = lambda slot, tag: tagged(dma_half(cfg, 0, slot_imm=slot * 32768) + dma_half(cfg, 1), tag)
    undo = f"s_sub_u32 s{s.SRC}, s{s.SRC}, s{s.CO}"
    bvm = {k: [] for k in range(33)}
    bvm[0] += vm[48]; bvm[1] += h1
    for st in range(3):
        x0, x1 = split_vm(b_stage(st + 5), 4)
        bvm[4 * st + 2] += x0; bvm[4 * st + 3] += x1
    bvm[cfg.get("b_poll", 12)] += poll_ld("pk")
    r3 = ring(3, "r0") + [undo]; r4 = ring(4, "r1") + [undo, f"s_mov_b32 s{s.KV+2}, s{s.WQO}"]
    for i, r in enumerate((r3, r4)):
        x0, x1 = split_vm(r, 4)
        bvm[18 + 2 * i] += x0; bvm[19 + 2 * i] += x1
    for i, r in enumerate((ring(0, "r2"), ring(1, "r3"))):
        x0, x1 = split_vm(r, 4)
        bvm[22 + 4 * i] += x0; bvm[23 + 4 * i] += x1
    ksigV = cfg.get("b_sigV", 2)
    bvm[ksigV] = signal(3) + bvm[ksigV]
    qv = []
    for f in range(16):
        b = f * 8
        qv += [f"v_mul_f32 {v(b+i)}, {v(R.SCL)}, {v(b+i)}" for i in range(8)]
        qv += [f"v_cvt_pk_bf16_f32 {v(b+p)}, {v(b+2*p)}, {v(b+2*p+1)}" for p in range(4)]
        qv += [f"v_accvgpr_write_b32 {a(att.R.Q + f*4 + p)}, {v(b+p)}" for p in range(4)]
    for k in range(32):
        st, t4 = k >> 2, k & 3
        fs = R.BFR + (k & 3) * 16
        if t4 == 2:
            tags = [f"b{st+1}"] if st < 7 else ["wp"]
            if k == ksigV: tags.append("vst")
            if k == 18: tags.append("pk")
            A(f"WAITV {','.join(tags)} L")
            if k == 18: poll_chk(0x02020202, "K")
            A("s_barrier")
            if k == ksigV: A(f"v_mov_b32 {v(R.FLD)}, 3")
        else:
            A(f"s_waitcnt lgkmcnt({7 if k < 31 else 0})")
        if k % 4 == 0: tick(A)
        rd = b_reads(k + 2) if k < 30 else []
        va = qv[(k - 1) * 9:k * 9] if 1 <= k < 30 else []
        adr = []
        if t4 == 1 and st < 7:
            d = hex((bslot(st + 1) - bslot(st)) & 0xffffffff)
            adr = [f"v_add_u32 {v(R.BXA+i)}, {d}, {v(R.BXA+i)}" for i in range(5)]
        mf = []
        for seg in range(3):
            acc = R.ACC + seg * 16
            c = "0" if k == 0 else v(acc, 16)
            if seg < 2: mf.append(f"{MF32} {v(acc,16)}, {a(fs + seg*4, 4)}, {a(fs + 12, 4)}, {c}")
            else: mf.append(f"{MF32} {v(acc,16)}, {a(fs + 12, 4)}, {a(fs + seg*4, 4)}, {c}")
        x0, x1 = split_vm(bvm[k], (sum(1 for t in bvm[k] if t.startswith("buffer")) + 1) // 2)
        A(mf[0]); [A(x) for x in rd[:4] + va[:2]]
        A(mf[1]); [A(x) for x in rd[4:] + x0 + va[2:5]]
        A(mf[2]); [A(x) for x in x1 + va[5:] + adr]
    stamp(A, fcfg, 4)
    tick(A)
    SC = 65536
    sL = s.T2
    A(f"v_bfe_u32 {v(T)}, {v(L)}, 4, 1\nv_mul_u32_u24 {v(T)}, 0x8000, {v(T)}\nv_lshl_or_b32 {v(T)}, {v(T)}, 16, {v(T)}")
    for i in range(8): A(f"v_lshl_or_b32 {v(R.WP+i)}, {v(R.WR+2*i+1)}, 16, {v(R.WR+2*i)}")
    for i in range(8): A(f"v_xor_b32 {v(R.WP+i)}, {v(T)}, {v(R.WP+i)}")
    A(f"s_mov_b32 s{sL}, {hex(LOG2E)}")
    A(f"s_and_b32 s{s.T0}, s{s.W}, 1\ns_lshl_b32 s{s.T0}, s{s.T0}, 13\ns_lshr_b32 s{s.T1}, s{s.W}, 1\ns_lshl_b32 s{s.T1}, s{s.T1}, 11\ns_add_u32 s{s.T0}, s{s.T0}, s{s.T1}\ns_add_u32 s{s.T0}, s{s.T0}, {SC}")
    A(f"v_and_b32 {v(T+2)}, 31, {v(L)}\nv_lshlrev_b32 {v(T+2)}, 6, {v(T+2)}\nv_lshrrev_b32 {v(T+3)}, 5, {v(L)}\nv_lshl_add_u32 {v(T+2)}, {v(T+3)}, 3, {v(T+2)}\nv_add_u32 {v(T+2)}, s{s.T0}, {v(T+2)}")
    A(f"s_lshr_b32 s{s.T0}, s{s.DST}, 2\ns_add_u32 s{s.T0}, s{s.T0}, {SC}\nv_add_u32 {v(T+3)}, s{s.T0}, {v(R.LANE16)}")
    for p in range(8):
        A(f"v_cvt_pk_bf16_f32 {v(R.QF+p)}, {v(R.ACC+2*p)}, {v(R.ACC+2*p+1)}")
        A(f"v_cvt_pk_bf16_f32 {v(R.KF+p)}, {v(R.ACC+16+2*p)}, {v(R.ACC+16+2*p+1)}")
    for p in range(8): A(f"v_cvt_pk_bf16_f32 {v(R.VF+p)}, {v(R.ACC+32+2*p)}, {v(R.ACC+32+2*p+1)}")
    for t in range(2): A(f"ds_write_b128 {v(T+3)}, {v(R.VF+t*4,4)} offset:{16384 + t*1024}")
    for i, (src, hh) in enumerate(((R.KF, 0), (R.KF, 1), (R.QF, 0), (R.QF, 1))):
        A(f"{MF32} {v(32+i*16,16)}, {v(R.WP+hh*4,4)}, {v(src+hh*4,4)}, 0")
    A(f"s_add_u32 s{s.SOFF}, s{s.DST2}, {SC}")
    A(f"v_bfe_u32 {v(T+4)}, {v(L)}, 2, 2\nv_lshrrev_b32 {v(T+5)}, 5, {v(L)}\nv_lshl_add_u32 {v(T+4)}, {v(T+5)}, 2, {v(T+4)}\nv_lshlrev_b32 {v(T+4)}, 6, {v(T+4)}")
    A(f"v_bfe_u32 {v(T+5)}, {v(L)}, 4, 1\nv_lshl_add_u32 {v(T+4)}, {v(T+5)}, 5, {v(T+4)}\nv_and_b32 {v(T+5)}, 3, {v(L)}\nv_lshl_add_u32 {v(T+4)}, {v(T+5)}, 3, {v(T+4)}\nv_add_u32 {v(T+4)}, s{s.SOFF}, {v(T+4)}")
    A(f"s_lshr_b32 s{s.SOFF}, s{s.W}, 1\ns_lshl_b32 s{s.SOFF}, s{s.SOFF}, 11\ns_and_b32 s{s.FLG}, s{s.W}, 1\ns_lshl_b32 s{s.FLG}, s{s.FLG}, 8\ns_add_u32 s{s.SOFF}, s{s.SOFF}, s{s.FLG}\ns_add_u32 s{s.SOFF}, s{s.SOFF}, {SC}")
    A(f"v_and_b32 {v(T+5)}, 0x2ff, {v(R.LANE16)}\nv_add_u32 {v(T+5)}, s{s.SOFF}, {v(T+5)}")
    for hh in range(2):
        for grp in range(2): softmax8(A, 32 + hh * 16 + grp * 8, R.PK + grp * 4, T, sL)
        for q in range(4): A(f"ds_write_b64 {v(T+2)}, {v(R.PK+q*2,2)} offset:{hh*4096 + q*16}")
    A(f"s_lshl_b32 s{s.T0}, s{s.RB}, 2\ns_and_b32 s{s.T1}, s{s.W}, 1\ns_lshl_b32 s{s.T1}, s{s.T1}, 1\ns_add_u32 s{s.T0}, s{s.T0}, s{s.T1}\ns_lshl_b32 s{s.T0}, s{s.T0}, 17")
    A(f"s_lshl_b32 s{s.T1}, s{s.H}, 12\ns_add_u32 s{s.T0}, s{s.T0}, s{s.T1}\ns_lshr_b32 s{s.T1}, s{s.W}, 1\ns_lshl_b32 s{s.T1}, s{s.T1}, 11\ns_add_u32 s{s.T0}, s{s.T0}, s{s.T1}")
    A(f"s_add_u32 s{s.T0}, s{s.T0}, {hex(WS_PHIQ)}\ns_add_u32 s{s.T1}, s{s.T0}, 0x20000")
    A("WAITV r0 L\ns_barrier")
    tick(A)
    for u in range(4):
        for rd in range(2): A(f"ds_read_b64_tr_b16 {v(u*4 + rd*2, 2)}, {v(T+4)} offset:{(16*u + 8*rd)*64}")
        A(f"ds_read_b128 {v(16 + u*4, 4)}, {v(T+5)} offset:{16384 + (u>>1)*4096 + (u&1)*1024}")
    A(f"v_add_u32 {v(att.R.KADDR)}, {3*32768}, {v(R.LANE16)}")
    for t in range(8): A(f"ds_read_b128 {a(att.R.KF + t*4, 4)}, {v(att.R.KADDR)} offset:{t*1024}")
    A(f"v_and_b32 {v(T+6)}, 16, {v(L)}\nv_cmp_ne_u32 vcc, 0, {v(T+6)}\nv_mov_b32 {v(T+6)}, 0x3f803f80")
    for hh in range(2):
        for grp in range(2):
            softmax8(A, 64 + hh * 16 + grp * 8, R.PK + hh * 8 + grp * 4, T, sL)
            A(f"buffer_store_dwordx4 {v(R.PK + hh*8 + grp*4, 4)}, {v(R.LANE16)}, s[{s.WS}:{s.WS+3}], s{s.T0 if hh == 0 else s.T1} offen offset:{grp*1024} sc1 ; @bo")
            if hh == 0 and grp == 0:
                A("s_waitcnt lgkmcnt(0)\ns_barrier")
                for i in range(16): A(f"v_cndmask_b32 {v(16+i)}, {v(16+i)}, {v(T+6)}, vcc")
                A(f"s_add_u32 s{s.SOFF}, s{s.DST}, 0x10000\nv_add_u32 {v(att.R.VADDR)}, s{s.SOFF}, {v(R.LANE16)}")
                for u in range(4): A(f"{MF32} {v(32,16)}, {v(u*4,4)}, {v(16+u*4,4)}, " + ("0" if u == 0 else v(32, 16)))
                for f in range(8): A(f"ds_write_b128 {v(att.R.VADDR)}, {a(att.R.Q + f*4, 4)} offset:{f*1024}")
    A(f"s_lshl_b32 s{s.T0}, s{s.RB}, 2\ns_add_u32 s{s.T0}, s{s.T0}, s{s.W}\ns_lshl_b32 s{s.T0}, s{s.T0}, 5\ns_add_u32 s{s.T0}, s{s.T0}, s{s.H}\ns_lshl_b32 s{s.T0}, s{s.T0}, 12\ns_add_u32 s{s.T0}, s{s.T0}, {hex(WS_KVP)}")
    for q in range(4):
        A(f"buffer_store_dwordx4 {v(32+q*4,4)}, {v(R.LANE16)}, s[{s.WS}:{s.WS+3}], s{s.T0} offen offset:{q*1024} sc1 ; @bo")
    A(f"s_cmp_eq_u32 s2, 0\ns_cbranch_scc0 KA_nz")
    A(f"v_mov_b32 v0, 0\nv_mov_b32 v1, 0\nv_mov_b32 v2, 0\nv_mov_b32 v3, 0\ns_lshl_b32 s{s.T0}, s{s.W}, 11\ns_add_u32 s{s.T0}, s{s.T0}, {hex(60 << 20)}")
    A(f"buffer_store_dwordx4 v[0:3], {v(R.LANE16)}, s[{s.WS}:{s.WS+3}], s{s.T0} offen ; @opt\nbuffer_store_dwordx4 v[0:3], {v(R.LANE16)}, s[{s.WS}:{s.WS+3}], s{s.T0} offen offset:1024 ; @opt")
    A.label("KA_nz")
    A(f"v_accvgpr_write_b32 a255, {v(R.FLV)}")
    A(f"s_lshl_b32 s{s.REM}, s{s.I}, 2\ns_add_u32 s{s.REM}, s{s.REM}, 4")
    A(f"s_mov_b32 s{s.T}, {hex(cfg.get('thresh', 0x42800000))}")
    stamp(A, fcfg, 5)
    if cfg.get("ticks"):
        A("s_waitcnt lgkmcnt(0)"); tick(A); A("s_waitcnt lgkmcnt(0)"); tick(A)
        A(f"s_lshl_b32 s50, s2, 2\ns_add_u32 s50, s50, s{s.W}\ns_lshl_b32 s50, s50, 8\ns_add_u32 s50, s50, {hex(WS_DBG + (4 << 20))}")
        A(f"v_lshlrev_b32 v146, 2, {v(L)}\nbuffer_store_dword v{R.TK}, v146, s[{s.WS}:{s.WS+3}], s50 offen ; @opt\ns_waitcnt vmcnt(0)")
    A0.lines += resolve_waits(A.lines)
    A0._lab = max(A0._lab, 2000)
    late = []
    if npf < len(plan):
        late = [f"s_lshl_b32 s{s.T2}, s2, 2", f"s_add_u32 s{s.T2}, s{s.T2}, s{s.W}", f"s_mov_b32 s75, 0x00020000", f"v_lshlrev_b32 {v(att.R.TMP)}, 3, {v(L)}"]
        late += [f"s_mov_b32 s72, s{ptr(5)}", f"s_and_b32 s73, s{ptr(5)+1}, 0xffff", f"s_mov_b32 s74, {4<<20}", f"s_lshl_b32 s{s.T0}, s{s.T2}, 12"]
        late += [f"buffer_load_dword a254, {v(R.LANE16)}, s[72:75], s{s.T0} offen offset:{j*1024}" for j in range(4)]
        late += [f"s_mov_b32 s72, s{ptr(9)}", f"s_and_b32 s73, s{ptr(9)+1}, 0xffff", f"s_mov_b32 s74, {512*1024}", f"s_lshl_b32 s{s.T0}, s{s.T2}, 9"]
        late += [f"buffer_load_dword a254, {v(att.R.TMP)}, s[72:75], s{s.T0} offen"]
    att.attention(A0, acfg, fcfg, late)
    if cfg.get("stamps") and acfg is not cfg:
        A0("s_waitcnt vmcnt(0)"); stamp(A0, cfg, 7); stamp_flush(A0, cfg, s.WS, s.W, R.LANE, 1)
    A0.label("KA_end")
    A0("s_endpgm")
```

```python
import sys, json
from gen_common import *
import gen_ka, gen_k3
cfg = json.loads(sys.argv[2]) if len(sys.argv) > 2 else {}
ref = open("concat_heads__compressed_kv_cla__linear_kernel_hedgehog__prompt.s.ref").read().split("\n")
A = Asm()
for ln in ref:
    if ln.startswith(";") and "@launch" not in ln and "Override" not in ln and "grid=ceil" not in ln: A.raw(ln)
    if not ln.startswith(";"): break
A.raw("; @launch kernel=ka_kernel grid=(256,1,1) block=(256,1,1) lds=163840")
A.raw("; @launch kernel=k3_kernel grid=(256,1,1) block=(256,1,1) lds=147456")
A.raw('.amdgcn_target "amdgcn-amd-amdhsa--gfx950"\n.text')
gen_ka.ka(A, cfg); gen_k3.k3(A, cfg)
check_hazards(A.lines)
A.raw('.section .rodata,"a"')
A.raw(".p2align 6"); A.raw(kernel_desc("ka_kernel", 512, 256))
A.raw(".p2align 6"); A.raw(kernel_desc("k3_kernel", 208, 128))
txt = "\n".join(l.strip() if l.startswith("    ") else l for l in A.text().split("\n"))
open(sys.argv[1], "w").write(txt)
```

```python
from gen_common import *
import gen_att as att
from gen_att import weave2, pk_scalar, dma_half
from gen_b import softmax8, LOG2E

class R:
    XV = 128; WV = 132; XC = 136; WC = 138; TK = 147; CT = 148
    BWV = 156; BXA = 158; BWA = 162; PHV = 163; FLV = 164; FLD = 165; PLV = 166
    PFV = 168
    ACC = 176
    WR = 224
    T = 240
    LANE16 = 252; LANE = 253; SCL = 254
    GFR = 128
    BFR = 128
    PK = 96; QF = 112; KF = 120; VF = 148; WP = 168

class SG(att.SG):
    C = 8; WK = 12; WV = 16
    RB = 22; DST2 = 31; OUT = 32; PF = 44; CO = 48; WO = 49
    BX = 64; BW = 68; BP = 72
    BXO = 26; BWO = 27; PFO = 28; PFO2 = 25
    PTR = 76

def ptr(i): return SG.PTR + 2 * i

def resolve_waits(lines):
    out = []; seq = []
    for ln in lines:
        t = ln.strip()
        if t.startswith("WAITV"):
            parts = t.split()
            tags = parts[1].split(",")
            last = max((i for i, g in enumerate(seq) if g in tags), default=None)
            assert last is not None, t
            n = min(len(seq) - 1 - last, 63)
            out.append(f"    s_waitcnt vmcnt({n})" + (f" lgkmcnt({parts[2][1:] or 0})" if len(parts) > 2 else ""))
            continue
        if t.startswith(("buffer_", "global_")):
            tag = t.split("@")[1].strip() if "@" in t else ""
            if tag != "opt": seq.append(tag)
            ln = ln.split(";")[0].rstrip()
        out.append(ln)
    return out

def tagged(lines, tag):
    return [l + f" ; @{tag}" if l.startswith("buffer") else l for l in lines]

def bslot(st): return (st % 5) * 32768

def b_stage(st):
    s = SG
    L = [f"s_lshr_b32 s{s.T1}, s{s.DST}, 2", f"s_add_u32 m0, s{s.T1}, {bslot(st)}", f"s_add_u32 s{s.SOFF}, s{s.BXO}, {st*128}"]
    for j in range(2): L.append(f"buffer_load_dwordx4 {v(R.XV+j)}, s[{s.BX}:{s.BX+3}], s{s.SOFF} offen offset:{j*1024} lds")
    for seg in range(3):
        L.append(f"s_add_u32 m0, s{s.T1}, {bslot(st) + 8192 + seg*8192}")
        L.append(f"s_add_u32 s{s.SOFF}, s{s.BWO}, {st*64*3072 + seg*1024}")
        for j in range(2): L.append(f"buffer_load_dwordx4 {v(R.BWV+j)}, s[{s.BW}:{s.BW+3}], s{s.SOFF} offen offset:{j*1024} lds")
    return tagged(L, f"b{st}")

QBUF = 49152
def g_stage(n):
    s = SG
    gi, st = n >> 3, n & 7
    buf = (n % 3) * QBUF
    L = []
    if n == 16:
        L += [f"s_mov_b32 s{s.C}, s{ptr(0)}", f"s_and_b32 s{s.C+1}, s{ptr(0)+1}, 0xffff", f"s_mov_b32 s{s.WK}, s{ptr(2)}", f"s_and_b32 s{s.WK+1}, s{ptr(2)+1}, 0xffff"]
    for blk in range(2):
        L.append(f"s_add_u32 m0, s{s.DST}, {buf + blk*4096}")
        if gi < 2: L.append(f"s_add_u32 s{s.SOFF}, s{s.CO}, {st*128 + blk*32768}")
        else: L.append(f"s_add_u32 s{s.SOFF}, s{s.XA_ + blk}, {st*128}")
        for j in range(4): L.append(f"buffer_load_dwordx4 {v(R.XV+j)}, s[{s.C}:{s.C+3}], s{s.SOFF} offen offset:{j*1024} lds")
    sr = s.WV if gi == 1 else s.WK
    L.append(f"s_add_u32 m0, s{s.DST2}, {buf + 32768}")
    L.append(f"s_add_u32 s{s.SOFF}, s{s.WO}, {st*64*8192}")
    for j in range(4): L.append(f"buffer_load_dwordx4 {v(R.WV+j)}, s[{sr}:{sr+3}], s{s.SOFF} offen offset:{j*1024} lds")
    return tagged(L, f"g{n}")

def split_vm(L, nfirst):
    c = 0
    for i, t in enumerate(L):
        if t.startswith("buffer"):
            c += 1
            if c == nfirst: return L[:i + 1], L[i + 1:]
    return L, []

def addr_delta(d):
    m = hex(d & 0xffffffff)
    return [f"v_add_u32 {v(R.XC+i)}, {m}, {v(R.XC+i)}" for i in range(10)]

def conv(isV, f):
    s = SG
    if isV:
        t = R.CT
        V = [f"v_accvgpr_read_b32 {v(t+i)}, {a(f*8+i)}" for i in (4, 5, 6, 7, 0, 1, 2, 3)]
    else:
        t = f * 8; V = []
    V += [f"v_cvt_pk_bf16_f32 {v(t+p)}, {v(t+2*p)}, {v(t+2*p+1)}" for p in range(4)]
    S = [f"s_add_u32 s{s.FLG}, s{s.OUT}, {(f >> 3) * 16384 + isV * 8192 + ((f >> 2) & 1) * 4096}",
         f"buffer_store_dwordx4 {v(t,4)}, {v(R.LANE16)}, s[{s.WS}:{s.WS+3}], s{s.FLG} offen offset:{(f&3)*1024} sc1"]
    return V, S

def b_reads(k):
    t4 = k & 3; fs = R.BFR + (k & 3) * 16
    Ls = [f"ds_read_b128 {a(fs + 12, 4)}, {v(R.BXA+t4)}"]
    for seg in range(3):
        for rd in range(2):
            Ls.append(f"ds_read_b64_tr_b16 {a(fs + seg*4 + rd*2, 2)}, {v(R.BWA)} offset:{seg*8192 + (16*t4 + 4*rd)*128}")
    return Ls

class Tick:
    def __init__(self, on): self.on = on; self.n = 0
    def __call__(self, A):
        if not self.on or self.n > 64: return
        if self.n > 0: A(f"v_writelane_b32 v{R.TK}, s{52 + 2*((self.n-1)&1)}, {self.n-1}")
        A(f"s_memrealtime s[{52 + 2*(self.n&1)}:{53 + 2*(self.n&1)}]")
        self.n += 1

def ka(A0, cfg, name="ka_kernel"):
    s = SG
    tick = Tick(cfg.get("ticks"))
    fcfg = cfg if cfg.get("stampset", "front") == "front" else dict(cfg, stamps=0)
    acfg = cfg if cfg.get("stampset", "front") != "front" else dict(cfg, stamps=0)
    kernel_header(A0, name)
    A = Asm(); A._lab = 1000
    A("s_cmp_ge_u32 s2, 256\ns_cbranch_scc1 KA_end")
    A(f"s_load_dwordx16 s[{s.PTR}:{s.PTR+15}], s[0:1], 0\ns_load_dwordx4 s[{s.PTR+16}:{s.PTR+19}], s[0:1], 64\ns_load_dwordx4 s[52:55], s[0:1], 88")
    L = R.LANE; T = R.T
    A(f"v_lshrrev_b32 {v(T)}, 6, v0\nv_and_b32 {v(L)}, 63, v0\nv_lshlrev_b32 {v(R.LANE16)}, 4, {v(L)}")
    A(f"v_readfirstlane_b32 s{s.W}, {v(T)}")
    A(f"s_and_b32 s{s.H}, s2, 7\ns_lshl_b32 s{s.H}, s{s.H}, 2\ns_bfe_u32 s{s.T0}, s2, 0x20003\ns_add_u32 s{s.H}, s{s.H}, s{s.T0}")
    A(f"s_lshr_b32 s{s.RB}, s2, 5")
    A(f"s_lshl_b32 s{s.DST}, s{s.W}, 13\ns_lshl_b32 s{s.DST2}, s{s.W}, 12")
    A(f"s_lshl_b32 s{s.CO}, s{s.RB}, 18\ns_lshl_b32 s{s.T0}, s{s.W}, 16\ns_add_u32 s{s.CO}, s{s.CO}, s{s.T0}")
    A(f"s_lshl_b32 s{s.WO}, s{s.H}, 8\ns_lshl_b32 s{s.T0}, s{s.W}, 17\ns_add_u32 s{s.WO}, s{s.WO}, s{s.T0}")
    A(f"v_lshrrev_b32 {v(T)}, 4, {v(L)}\nv_and_b32 {v(T+1)}, 7, {v(L)}\nv_xor_b32 {v(T)}, {v(T)}, {v(T+1)}\nv_lshlrev_b32 {v(T)}, 4, {v(T)}")
    A(f"v_lshrrev_b32 {v(T+1)}, 3, {v(L)}\nv_lshlrev_b32 {v(T+1)}, 10, {v(T+1)}\nv_add_u32 {v(R.XV)}, {v(T)}, {v(T+1)}")
    A(f"v_xor_b32 {v(T)}, 64, {v(R.XV)}")
    A(f"v_add_u32 {v(R.XV+1)}, {7168}, {v(T)}\nv_add_u32 {v(R.XV+2)}, {7168*2}, {v(R.XV)}\nv_add_u32 {v(R.XV+3)}, {7168*3}, {v(T)}")
    A(f"v_lshrrev_b32 {v(T)}, 4, {v(L)}\nv_lshlrev_b32 {v(T+1)}, 1, {v(T)}\nv_and_b32 {v(T+2)}, 15, {v(L)}\nv_xor_b32 {v(T+1)}, {v(T+1)}, {v(T+2)}")
    A(f"v_lshlrev_b32 {v(T+1)}, 4, {v(T+1)}\nv_lshlrev_b32 {v(T)}, 13, {v(T)}\nv_add_u32 {v(R.WV)}, {v(T)}, {v(T+1)}")
    A(f"v_xor_b32 {v(T)}, 128, {v(R.WV)}")
    A(f"v_add_u32 {v(R.WV+1)}, {31744}, {v(R.WV)}\nv_add_u32 {v(R.WV+2)}, {31744*2}, {v(T)}\nv_add_u32 {v(R.WV+3)}, {31744*3}, {v(T)}")
    A("s_waitcnt lgkmcnt(0)")
    srd(A, s.C, ptr(1), 2048 * 512 * 2); srd(A, s.WK, ptr(3), 512 * 4096 * 2); srd(A, s.WV, ptr(4), 512 * 4096 * 2); srd(A, s.WS, 54, WS_BYTES)
    A(f"s_mov_b32 s{s.REM}, s52\ns_mov_b32 s{s.T}, s53")
    stamp(A, cfg, 0)
    for n in range(3):
        for ln in g_stage(n): A(ln)
    if cfg.get("pf_code", 1):
        A(f"s_getpc_b64 s[50:51]")
        A.label("KA_pc")
        A(f"s_lshr_b32 s3, s2, 3\ns_lshl_b32 s3, s3, 2\ns_add_u32 s3, s3, s{s.W}\ns_lshl_b32 s3, s3, 10\ns_min_u32 s3, s3, K3_end-KA_pc-1024")
        A(f"s_add_u32 s50, s50, s3\ns_addc_u32 s51, s51, 0\nv_mov_b32 {v(T+1)}, s51\nv_add_co_u32 {v(T)}, vcc, s50, {v(R.LANE16)}\ns_nop 1\nv_addc_co_u32 {v(T+1)}, vcc, 0, {v(T+1)}, vcc")
        A(f"global_load_dword {v(R.PFV+2)}, {v(T,2)}, off ; @pf")
    srd(A, s.BX, ptr(6), 2048 * 512 * 2); srd(A, s.BW, ptr(7), 512 * 1536 * 2); srd(A, s.BP, ptr(8), 32 * 256 * 2)
    A(f"v_and_b32 {v(T)}, 15, {v(L)}\nv_lshrrev_b32 {v(T+1)}, 1, {v(T)}\nv_lshrrev_b32 {v(T+2)}, 4, {v(L)}\nv_xor_b32 {v(T+1)}, {v(T+1)}, {v(T+2)}")
    A(f"v_lshlrev_b32 {v(T+1)}, 4, {v(T+1)}\nv_lshlrev_b32 {v(T)}, 7, {v(T)}\nv_add3_u32 {v(R.XC)}, {v(T)}, {v(T+1)}, s{s.DST}")
    A(f"v_xor_b32 {v(R.XC+1)}, 64, {v(R.XC)}")
    A(f"v_bfe_u32 {v(T)}, {v(L)}, 2, 2")
    A(f"v_lshrrev_b32 {v(T+1)}, 4, {v(L)}\nv_lshlrev_b32 {v(T+1)}, 3, {v(T+1)}\nv_add_u32 {v(T+1)}, {v(T+1)}, {v(T)}\nv_lshlrev_b32 {v(T+1)}, 8, {v(T+1)}")
    A(f"v_bfe_u32 {v(T)}, {v(L)}, 2, 3\nv_lshlrev_b32 {v(T)}, 5, {v(T)}\nv_add_u32 {v(T+1)}, {v(T+1)}, {v(T)}")
    A(f"v_and_b32 {v(T)}, 3, {v(L)}\nv_lshlrev_b32 {v(T)}, 3, {v(T)}\nv_add_u32 {v(T+1)}, {v(T+1)}, {v(T)}\nv_add_u32 {v(R.WC)}, 0x8000, {v(T+1)}")
    for dt in range(1, 8): A(f"v_xor_b32 {v(R.WC+dt)}, {dt<<5}, {v(R.WC)}")
    A(f"s_lshl_b32 s{s.OUT}, s{s.H}, 20\ns_lshl_b32 s{s.T0}, s{s.RB}, 17\ns_add_u32 s{s.OUT}, s{s.OUT}, s{s.T0}\ns_lshl_b32 s{s.T0}, s{s.W}, 15\ns_add_u32 s{s.OUT}, s{s.OUT}, s{s.T0}")
    A(f"s_sub_u32 s{s.BA}, 15, s{s.I}")
    A(f"s_lshl_b32 s{s.XA_}, s{s.BA}, 17\ns_add_u32 s{s.XA_}, s{s.XA_}, s{s.T0}\ns_lshl_b32 s{s.XB_}, s{s.I}, 17\ns_add_u32 s{s.XB_}, s{s.XB_}, s{s.T0}")
    A(f"s_lshl_b32 s{s.BXO}, s{s.H}, 16\ns_lshl_b32 s{s.T0}, s{s.W}, 14\ns_add_u32 s{s.BXO}, s{s.BXO}, s{s.T0}")
    A(f"s_mul_i32 s{s.BWO}, s{s.W}, {16*3072}\ns_lshl_b32 s{s.T0}, s{s.RB}, 7\ns_add_u32 s{s.BWO}, s{s.BWO}, s{s.T0}")
    A(f"v_bfe_u32 {v(T)}, {v(L)}, 4, 1\nv_lshlrev_b32 {v(T)}, 2, {v(T)}\nv_and_b32 {v(T+1)}, 7, {v(L)}\nv_xor_b32 {v(T)}, {v(T)}, {v(T+1)}\nv_lshlrev_b32 {v(T)}, 4, {v(T)}")
    A(f"v_lshrrev_b32 {v(T+1)}, 3, {v(L)}\nv_mul_u32_u24 {v(T+1)}, 3072, {v(T+1)}\nv_add_u32 {v(R.BWV)}, {v(T)}, {v(T+1)}\nv_add_u32 {v(R.BWV+1)}, {8*3072-1024}, {v(R.BWV)}")
    A(f"s_lshr_b32 s{s.T0}, s{s.W}, 1\ns_lshl_b32 s{s.T0}, s{s.T0}, 12")
    A(f"v_and_b32 {v(T)}, 31, {v(L)}\nv_bfe_u32 {v(T+1)}, {v(L)}, 1, 3\nv_lshrrev_b32 {v(T+2)}, 5, {v(L)}\nv_xor_b32 {v(T+1)}, {v(T+1)}, {v(T+2)}")
    A(f"v_lshlrev_b32 {v(T+1)}, 4, {v(T+1)}\nv_lshlrev_b32 {v(T)}, 7, {v(T)}\nv_add3_u32 {v(R.BXA)}, {v(T)}, {v(T+1)}, s{s.T0}")
    for t4 in range(1, 4): A(f"v_xor_b32 {v(R.BXA+t4)}, {t4<<5}, {v(R.BXA)}")
    A(f"s_and_b32 s{s.T0}, s{s.W}, 1")
    A(f"v_bfe_u32 {v(T)}, {v(L)}, 2, 2\nv_lshrrev_b32 {v(T+1)}, 5, {v(L)}\nv_lshl_add_u32 {v(T)}, {v(T+1)}, 3, {v(T)}\nv_lshlrev_b32 {v(T)}, 7, {v(T)}")
    A(f"v_bfe_u32 {v(T+1)}, {v(L)}, 3, 1\nv_xor_b32 {v(T+1)}, s{s.T0}, {v(T+1)}\nv_lshl_add_u32 {v(T)}, {v(T+1)}, 6, {v(T)}")
    A(f"v_bfe_u32 {v(T+1)}, {v(L)}, 4, 1\nv_lshl_add_u32 {v(T)}, {v(T+1)}, 5, {v(T)}")
    A(f"v_and_b32 {v(T+1)}, 3, {v(L)}\nv_lshl_add_u32 {v(T)}, {v(T+1)}, 3, {v(T)}\nv_add_u32 {v(R.BWA)}, 0x2000, {v(T)}")
    A(f"v_and_b32 {v(T)}, 15, {v(L)}\nv_lshlrev_b32 {v(T)}, 1, {v(T)}\nv_lshrrev_b32 {v(T+1)}, 5, {v(L)}\nv_lshl_add_u32 {v(R.PHV)}, {v(T+1)}, 7, {v(T)}")
    A(f"v_mov_b32 {v(R.SCL)}, 0x3e0293ee")
    A(f"s_lshl_b32 s{s.T0}, s{s.H}, 3\ns_add_u32 s{s.T1}, s{s.T0}, s{s.RB}\ns_cmp_eq_u32 s{s.W}, 0\ns_cselect_b32 s{s.T1}, s{s.T1}, 0x1000\ns_cselect_b32 s{s.T0}, s{s.T0}, 0x1000")
    A(f"v_mov_b32 {v(R.FLV)}, 0x1000\nv_writelane_b32 {v(R.FLV)}, s{s.T1}, 0\nv_mov_b32 v146, s{s.T0}")
    A(f"s_lshl_b32 s{s.PFO}, s2, 2\ns_add_u32 s{s.PFO}, s{s.PFO}, s{s.W}\ns_mov_b32 s{s.PF+3}, 0x00020000")
    P = R.PFV
    A(f"v_mul_u32_u24 {v(P)}, 24, {v(L)}\nv_lshlrev_b32 {v(P+1)}, 3, {v(L)}")
    plan = []
    own = ((1, 2 << 20, 2), (3, 4 << 20, 4)) if cfg.get("pf_own") else ()
    for pi, nbytes, n in own + ((4, 4 << 20, 4), (0, 2 << 20, 2), (2, 4 << 20, 4), (6, 2 << 20, 2), (7, 1536 * 1024, 1), (5, 4 << 20, 4), (9, 512 * 1024, 1)):
        for j in range(n):
            vo = R.LANE16 if nbytes >= (2 << 20) else (P if pi == 7 else P + 1)
            pre = [f"s_mov_b32 s{s.PF}, s{ptr(pi)}", f"s_and_b32 s{s.PF+1}, s{ptr(pi)+1}, 0xffff", f"s_mov_b32 s{s.PF+2}, {nbytes}", f"s_mul_i32 s{s.PFO2}, s{s.PFO}, {nbytes // 1024}"] if j == 0 else []
            plan.append(pre + [f"buffer_load_dword {v(P+2)}, {v(vo)}, s[{s.PF}:{s.PF+3}], s{s.PFO2} offen offset:{j*1024} ; @pf"])
    pf0 = cfg.get("pf0", 1)
    if not cfg.get("pf", 1): plan = []
    dbg_srd = [f"s_mov_b32 s{s.PF}, s{s.REM}", f"s_and_b32 s{s.PF+1}, s{s.T}, 0xffff", f"s_mov_b32 s{s.PF+2}, 256"]
    def signal(val): return [f"buffer_store_byte {v(R.FLD)}, {v(R.FLV)}, s[{s.PF}:{s.PF+3}], 0 offen sc1 ; @sig"]
    poll_ld = lambda tag: [f"buffer_load_dwordx2 {v(R.PLV,2)}, v146, s[{s.PF}:{s.PF+3}], 0 offen sc1 ; @{tag}"]
    def poll_chk(mask, tag):
        chk = f"v_and_b32 {v(R.PLV)}, {v(R.PLV)}, {v(R.PLV+1)}\nv_and_b32 {v(R.PLV)}, {hex(mask)}, {v(R.PLV)}\nv_cmp_eq_u32 vcc, {hex(mask)}, {v(R.PLV)}"
        A(f"s_cmp_eq_u32 s{s.W}, 0\ns_cbranch_scc0 KA_rdy{tag}")
        A(chk + f"\ns_mov_b32 s{s.T0}, 0\ns_nop 3\ns_cbranch_vccnz KA_rdy{tag}")
        A.label(f"KA_poll{tag}")
        A(f"s_sleep 4\nbuffer_load_dwordx2 {v(R.PLV,2)}, v146, s[{s.PF}:{s.PF+3}], 0 offen sc1 ; @opt\ns_waitcnt vmcnt(0)")
        A(chk + f"\ns_add_u32 s{s.T0}, s{s.T0}, 1\ns_nop 3\ns_cbranch_vccnz KA_rdy{tag}\ns_cmp_lt_u32 s{s.T0}, 0x40000\ns_cbranch_scc1 KA_poll{tag}")
        A.label(f"KA_rdy{tag}")
    wphi = [f"s_lshl_b32 s{s.PFO}, s{s.RB}, 11", f"s_and_b32 s{s.T2}, s{s.W}, 1", f"s_lshl_b32 s{s.T2}, s{s.T2}, 10", f"s_add_u32 s{s.PFO}, s{s.PFO}, s{s.T2}"]
    for hh in range(2):
        for e, d in enumerate((0, 1, 2, 3, 8, 9, 10, 11)):
            wphi.append(f"buffer_load_ushort {v(R.WR + hh*8 + e)}, {v(R.PHV)}, s[{s.BP}:{s.BP+3}], s{s.PFO} offen offset:{hh*512 + d*32} ; @wp")
    def g_reads(k):
        t2 = k & 1; fs = R.GFR + (k & 1) * 48
        Ls = [f"ds_read_b128 {a(fs + 32 + rt*4, 4)}, {v(R.XC+t2)} offset:{rt*2048}" for rt in range(4)]
        for dt in range(8):
            for rd in range(2): Ls.append(f"ds_read_b64_tr_b16 {a(fs + dt*4 + rd*2, 2)}, {v(R.WC+dt)} offset:{(32*t2 + 4*rd)*256}")
        return Ls
    vm = {k: [] for k in range(49)}
    for n in range(21):
        h0, h1 = split_vm(g_stage(n + 3), 6)
        vm[2 * n + 1] += h0; vm[2 * n + 2] += h1
    npf = cfg.get("npf", 13); ppk = cfg.get("pf_per_k", 1)
    npre = cfg.get("pf_pre", 0)
    for p in plan[:npre]:
        for x in p: A(x)
    for i, p in enumerate(plan[npre:npf]): vm[pf0 + i // ppk] += p
    vm[40] = dbg_srd + vm[40]
    vlast = cfg.get("v_last", 47)
    vk = [32 + (f * (vlast - 31)) // 16 for f in range(16)]
    h0, h1 = split_vm(wphi, 8)
    vm[43] += b_stage(0); vm[44] += h0; vm[45] += b_stage(1); vm[46] += b_stage(2); vm[47] += b_stage(3); vm[48] += b_stage(4)
    A("WAITV g0\ns_barrier")
    for ln in g_reads(0): A(ln)
    for k in range(48):
        n, t2 = k >> 1, k & 1
        gi = k >> 4
        fs = R.GFR + (k & 1) * 48
        tailv = []
        if t2 == 1:
            tags = [f"g{n+1}"] if n < 23 else ["b0"]
            A(f"WAITV {','.join(tags)} L\ns_barrier")
        else:
            A("s_waitcnt lgkmcnt(0)")
            if n < 23: tailv = addr_delta(((n + 1) % 3 - n % 3) * QBUF)
        if k % 2 == 0: tick(A)
        if k in (16, 32): stamp(A, fcfg, k // 16)
        post = []
        if gi == 1:
            V, S = conv(0, k & 15); tailv = V + tailv; post = S
        if gi == 2:
            fl = [f for f in range(16) if vk[f] == k]
            for j, f in enumerate(fl):
                V, S = conv(1, f)
                if j == 0: tailv = V + tailv; post = S
                else: post = post + V + S
        mf = []
        for dt in range(8):
            for rt in range(4):
                W_, X_ = a(fs + dt * 4, 4), a(fs + 32 + rt * 4, 4)
                if gi == 1:
                    acc = a((((rt >> 1) * 8 + dt) * 2 + (rt & 1)) * 4, 4); ops = f"{X_}, {W_}"
                else:
                    acc = v((rt * 8 + dt) * 4, 4); ops = f"{W_}, {X_}"
                mf.append(f"{MF16} {acc}, {ops}, " + ("0" if k % 16 == 0 else acc))
        rd = g_reads(k + 1) if k < 47 else b_reads(0) + b_reads(1)
        for b in weave2(mf, rd, vm[k], tailv, first=2): A(b)
        for x in post: A(x)
    stamp(A, fcfg, 3)
    srd(A, s.KV, s.WS, WS_BYTES)
    A(f"s_and_b32 s{s.KP}, s{s.W}, 1\ns_lshl_b32 s{s.T0}, s{s.KP}, 14\ns_lshr_b32 s{s.CO}, s{s.W}, 1\ns_lshl_b32 s{s.T2}, s{s.CO}, 13")
    A(f"s_lshl_b32 s{s.SRC}, s{s.H}, 20\ns_add_u32 s{s.WQO}, s{s.BA}, 1\ns_lshl_b32 s{s.WQO}, s{s.WQO}, 16\ns_add_u32 s{s.WQO}, s{s.WQO}, s{s.SRC}")
    A(f"s_add_u32 s{s.SRC}, s{s.SRC}, s{s.T0}\ns_add_u32 s{s.SRC}, s{s.SRC}, s{s.T2}")
    A(f"s_cmp_eq_u32 s{s.CO}, 1\ns_cselect_b32 s{s.KV+2}, 0, s{s.WQO}\ns_lshl_b32 s{s.CO}, s{s.CO}, 15\ns_lshl_b32 s{s.KP}, s{s.KP}, 13")
    ring = lambda slot, tag: tagged(dma_half(cfg, 0, slot_imm=slot * 32768) + dma_half(cfg, 1), tag)
    undo = f"s_sub_u32 s{s.SRC}, s{s.SRC}, s{s.CO}"
    bvm = {k: [] for k in range(33)}
    bvm[0] += vm[48]; bvm[1] += h1
    for st in range(3):
        x0, x1 = split_vm(b_stage(st + 5), 4)
        bvm[4 * st + 2] += x0; bvm[4 * st + 3] += x1
    kchk = cfg.get("b_chk", 30)
    bvm[cfg.get("b_poll", 22)] += poll_ld("pk")
    rings = [ring(3, "r0") + [undo], ring(4, "r1") + [undo, f"s_mov_b32 s{s.KV+2}, s{s.WQO}"], ring(0, "r2"), ring(1, "r3")]
    kk = kchk
    for r, kmin in zip(rings, (18, 18, 22, 26)):
        kk = max(kk, kmin)
        x0, x1 = split_vm(r, 4)
        bvm[min(kk, 32)] += x0; bvm[min(kk + 1, 32)] += x1
        kk += 2
    ksigV = cfg.get("b_sigV", 10)
    bvm[ksigV] = signal(3) + bvm[ksigV]
    qv = []
    for f in range(16):
        b = f * 8
        qv += [f"v_mul_f32 {v(b+i)}, {v(R.SCL)}, {v(b+i)}" for i in range(8)]
        qv += [f"v_cvt_pk_bf16_f32 {v(b+p)}, {v(b+2*p)}, {v(b+2*p+1)}" for p in range(4)]
        qv += [f"v_accvgpr_write_b32 {a(att.R.Q + f*4 + p)}, {v(b+p)}" for p in range(4)]
    for k in range(32):
        st, t4 = k >> 2, k & 3
        fs = R.BFR + (k & 3) * 16
        if t4 == 2:
            tags = [f"b{st+1}"] if st < 7 else ["wp"]
            if k == ksigV: tags.append("vst")
            if k == kchk: tags.append("pk")
            A(f"WAITV {','.join(tags)} L")
            if k == kchk: poll_chk(0x02020202, "K")
            A("s_barrier")
            if k == ksigV: A(f"v_mov_b32 {v(R.FLD)}, 3")
        else:
            A(f"s_waitcnt lgkmcnt({7 if k < 31 else 0})")
        if k % 4 == 0: tick(A)
        rd = b_reads(k + 2) if k < 30 else []
        va = qv[(k - 1) * 9:k * 9] if 1 <= k < 30 else []
        adr = []
        if t4 == 1 and st < 7:
            d = hex((bslot(st + 1) - bslot(st)) & 0xffffffff)
            adr = [f"v_add_u32 {v(R.BXA+i)}, {d}, {v(R.BXA+i)}" for i in range(5)]
        mf = []
        for seg in range(3):
            acc = R.ACC + seg * 16
            c = "0" if k == 0 else v(acc, 16)
            if seg < 2: mf.append(f"{MF32} {v(acc,16)}, {a(fs + seg*4, 4)}, {a(fs + 12, 4)}, {c}")
            else: mf.append(f"{MF32} {v(acc,16)}, {a(fs + 12, 4)}, {a(fs + seg*4, 4)}, {c}")
        x0, x1 = split_vm(bvm[k], (sum(1 for t in bvm[k] if t.startswith("buffer")) + 1) // 2)
        A(mf[0]); [A(x) for x in rd[:4] + va[:2]]
        A(mf[1]); [A(x) for x in rd[4:] + x0 + va[2:5]]
        A(mf[2]); [A(x) for x in x1 + va[5:] + adr]
    stamp(A, fcfg, 4)
    tick(A)
    for x in bvm[32]: A(x)
    SC = 65536
    sL = s.T2
    A(f"v_bfe_u32 {v(T)}, {v(L)}, 4, 1\nv_mul_u32_u24 {v(T)}, 0x8000, {v(T)}\nv_lshl_or_b32 {v(T)}, {v(T)}, 16, {v(T)}")
    for i in range(8): A(f"v_lshl_or_b32 {v(R.WP+i)}, {v(R.WR+2*i+1)}, 16, {v(R.WR+2*i)}")
    for i in range(8): A(f"v_xor_b32 {v(R.WP+i)}, {v(T)}, {v(R.WP+i)}")
    A(f"s_mov_b32 s{sL}, {hex(LOG2E)}")
    A(f"s_and_b32 s{s.T0}, s{s.W}, 1\ns_lshl_b32 s{s.T0}, s{s.T0}, 13\ns_lshr_b32 s{s.T1}, s{s.W}, 1\ns_lshl_b32 s{s.T1}, s{s.T1}, 11\ns_add_u32 s{s.T0}, s{s.T0}, s{s.T1}\ns_add_u32 s{s.T0}, s{s.T0}, {SC}")
    A(f"v_and_b32 {v(T+2)}, 31, {v(L)}\nv_lshlrev_b32 {v(T+2)}, 6, {v(T+2)}\nv_lshrrev_b32 {v(T+3)}, 5, {v(L)}\nv_lshl_add_u32 {v(T+2)}, {v(T+3)}, 3, {v(T+2)}\nv_add_u32 {v(T+2)}, s{s.T0}, {v(T+2)}")
    A(f"s_lshr_b32 s{s.T0}, s{s.DST}, 2\ns_add_u32 s{s.T0}, s{s.T0}, {SC}\nv_add_u32 {v(T+3)}, s{s.T0}, {v(R.LANE16)}")
    for p in range(8):
        A(f"v_cvt_pk_bf16_f32 {v(R.QF+p)}, {v(R.ACC+2*p)}, {v(R.ACC+2*p+1)}")
        A(f"v_cvt_pk_bf16_f32 {v(R.KF+p)}, {v(R.ACC+16+2*p)}, {v(R.ACC+16+2*p+1)}")
    for p in range(8): A(f"v_cvt_pk_bf16_f32 {v(R.VF+p)}, {v(R.ACC+32+2*p)}, {v(R.ACC+32+2*p+1)}")
    for t in range(2): A(f"ds_write_b128 {v(T+3)}, {v(R.VF+t*4,4)} offset:{16384 + t*1024}")
    for i, (src, hh) in enumerate(((R.KF, 0), (R.KF, 1), (R.QF, 0), (R.QF, 1))):
        A(f"{MF32} {v(32+i*16,16)}, {v(R.WP+hh*4,4)}, {v(src+hh*4,4)}, 0")
    A(f"s_add_u32 s{s.SOFF}, s{s.DST2}, {SC}")
    A(f"v_bfe_u32 {v(T+4)}, {v(L)}, 2, 2\nv_lshrrev_b32 {v(T+5)}, 5, {v(L)}\nv_lshl_add_u32 {v(T+4)}, {v(T+5)}, 2, {v(T+4)}\nv_lshlrev_b32 {v(T+4)}, 6, {v(T+4)}")
    A(f"v_bfe_u32 {v(T+5)}, {v(L)}, 4, 1\nv_lshl_add_u32 {v(T+4)}, {v(T+5)}, 5, {v(T+4)}\nv_and_b32 {v(T+5)}, 3, {v(L)}\nv_lshl_add_u32 {v(T+4)}, {v(T+5)}, 3, {v(T+4)}\nv_add_u32 {v(T+4)}, s{s.SOFF}, {v(T+4)}")
    A(f"s_lshr_b32 s{s.SOFF}, s{s.W}, 1\ns_lshl_b32 s{s.SOFF}, s{s.SOFF}, 11\ns_and_b32 s{s.FLG}, s{s.W}, 1\ns_lshl_b32 s{s.FLG}, s{s.FLG}, 8\ns_add_u32 s{s.SOFF}, s{s.SOFF}, s{s.FLG}\ns_add_u32 s{s.SOFF}, s{s.SOFF}, {SC}")
    A(f"v_and_b32 {v(T+5)}, 0x2ff, {v(R.LANE16)}\nv_add_u32 {v(T+5)}, s{s.SOFF}, {v(T+5)}")
    for hh in range(2):
        for grp in range(2): softmax8(A, 32 + hh * 16 + grp * 8, R.PK + grp * 4, T, sL)
        for q in range(4): A(f"ds_write_b64 {v(T+2)}, {v(R.PK+q*2,2)} offset:{hh*4096 + q*16}")
    A(f"s_lshl_b32 s{s.T0}, s{s.RB}, 2\ns_and_b32 s{s.T1}, s{s.W}, 1\ns_lshl_b32 s{s.T1}, s{s.T1}, 1\ns_add_u32 s{s.T0}, s{s.T0}, s{s.T1}\ns_lshl_b32 s{s.T0}, s{s.T0}, 17")
    A(f"s_lshl_b32 s{s.T1}, s{s.H}, 12\ns_add_u32 s{s.T0}, s{s.T0}, s{s.T1}\ns_lshr_b32 s{s.T1}, s{s.W}, 1\ns_lshl_b32 s{s.T1}, s{s.T1}, 11\ns_add_u32 s{s.T0}, s{s.T0}, s{s.T1}")
    A(f"s_add_u32 s{s.T0}, s{s.T0}, {hex(WS_PHIQ)}\ns_add_u32 s{s.T1}, s{s.T0}, 0x20000")
    A("WAITV r0 L\ns_barrier")
    tick(A)
    for u in range(4):
        for rd in range(2): A(f"ds_read_b64_tr_b16 {v(u*4 + rd*2, 2)}, {v(T+4)} offset:{(16*u + 8*rd)*64}")
        A(f"ds_read_b128 {v(16 + u*4, 4)}, {v(T+5)} offset:{16384 + (u>>1)*4096 + (u&1)*1024}")
    A(f"v_add_u32 {v(att.R.KADDR)}, {3*32768}, {v(R.LANE16)}")
    for t in range(8): A(f"ds_read_b128 {a(att.R.KF + t*4, 4)}, {v(att.R.KADDR)} offset:{t*1024}")
    A(f"v_and_b32 {v(T+6)}, 16, {v(L)}\nv_cmp_ne_u32 vcc, 0, {v(T+6)}\nv_mov_b32 {v(T+6)}, 0x3f803f80")
    for hh in range(2):
        for grp in range(2):
            softmax8(A, 64 + hh * 16 + grp * 8, R.PK + hh * 8 + grp * 4, T, sL)
            A(f"buffer_store_dwordx4 {v(R.PK + hh*8 + grp*4, 4)}, {v(R.LANE16)}, s[{s.WS}:{s.WS+3}], s{s.T0 if hh == 0 else s.T1} offen offset:{grp*1024} sc1 ; @bo")
            if hh == 0 and grp == 0:
                A("s_waitcnt lgkmcnt(0)\ns_barrier")
                for i in range(16): A(f"v_cndmask_b32 {v(16+i)}, {v(16+i)}, {v(T+6)}, vcc")
                A(f"s_add_u32 s{s.SOFF}, s{s.DST}, 0x10000\nv_add_u32 {v(att.R.VADDR)}, s{s.SOFF}, {v(R.LANE16)}")
                for u in range(4): A(f"{MF32} {v(32,16)}, {v(u*4,4)}, {v(16+u*4,4)}, " + ("0" if u == 0 else v(32, 16)))
                for f in range(8): A(f"ds_write_b128 {v(att.R.VADDR)}, {a(att.R.Q + f*4, 4)} offset:{f*1024}")
    A(f"s_lshl_b32 s{s.T0}, s{s.RB}, 2\ns_add_u32 s{s.T0}, s{s.T0}, s{s.W}\ns_lshl_b32 s{s.T0}, s{s.T0}, 5\ns_add_u32 s{s.T0}, s{s.T0}, s{s.H}\ns_lshl_b32 s{s.T0}, s{s.T0}, 12\ns_add_u32 s{s.T0}, s{s.T0}, {hex(WS_KVP)}")
    for q in range(4):
        A(f"buffer_store_dwordx4 {v(32+q*4,4)}, {v(R.LANE16)}, s[{s.WS}:{s.WS+3}], s{s.T0} offen offset:{q*1024} sc1 ; @bo")
    A(f"s_cmp_eq_u32 s2, 0\ns_cbranch_scc0 KA_nz")
    A(f"v_mov_b32 v0, 0\nv_mov_b32 v1, 0\nv_mov_b32 v2, 0\nv_mov_b32 v3, 0\ns_lshl_b32 s{s.T0}, s{s.W}, 11\ns_add_u32 s{s.T0}, s{s.T0}, {hex(60 << 20)}")
    A(f"buffer_store_dwordx4 v[0:3], {v(R.LANE16)}, s[{s.WS}:{s.WS+3}], s{s.T0} offen ; @opt\nbuffer_store_dwordx4 v[0:3], {v(R.LANE16)}, s[{s.WS}:{s.WS+3}], s{s.T0} offen offset:1024 ; @opt")
    A.label("KA_nz")
    A(f"v_accvgpr_write_b32 a255, {v(R.FLV)}")
    A(f"s_lshl_b32 s{s.REM}, s{s.I}, 2\ns_add_u32 s{s.REM}, s{s.REM}, 4")
    A(f"s_mov_b32 s{s.T}, {hex(cfg.get('thresh', 0x42800000))}")
    stamp(A, fcfg, 5)
    if cfg.get("ticks"):
        A("s_waitcnt lgkmcnt(0)"); tick(A); A("s_waitcnt lgkmcnt(0)"); tick(A)
        A(f"s_lshl_b32 s50, s2, 2\ns_add_u32 s50, s50, s{s.W}\ns_lshl_b32 s50, s50, 8\ns_add_u32 s50, s50, {hex(WS_DBG + (4 << 20))}")
        A(f"v_lshlrev_b32 v146, 2, {v(L)}\nbuffer_store_dword v{R.TK}, v146, s[{s.WS}:{s.WS+3}], s50 offen ; @opt\ns_waitcnt vmcnt(0)")
    A0.lines += resolve_waits(A.lines)
    A0._lab = max(A0._lab, 2000)
    late = []
    if npf < len(plan):
        late = [f"s_lshl_b32 s{s.T2}, s2, 2", f"s_add_u32 s{s.T2}, s{s.T2}, s{s.W}", f"s_mov_b32 s75, 0x00020000", f"v_lshlrev_b32 {v(att.R.TMP)}, 3, {v(L)}"]
        late += [f"s_mov_b32 s72, s{ptr(5)}", f"s_and_b32 s73, s{ptr(5)+1}, 0xffff", f"s_mov_b32 s74, {4<<20}", f"s_lshl_b32 s{s.T0}, s{s.T2}, 12"]
        late += [f"buffer_load_dword a254, {v(R.LANE16)}, s[72:75], s{s.T0} offen offset:{j*1024}" for j in range(4)]
        late += [f"s_mov_b32 s72, s{ptr(9)}", f"s_and_b32 s73, s{ptr(9)+1}, 0xffff", f"s_mov_b32 s74, {512*1024}", f"s_lshl_b32 s{s.T0}, s{s.T2}, 9"]
        late += [f"buffer_load_dword a254, {v(att.R.TMP)}, s[72:75], s{s.T0} offen"]
    att.attention(A0, acfg, fcfg, late)
    if cfg.get("stamps") and acfg is not cfg:
        A0("s_waitcnt vmcnt(0)"); stamp(A0, cfg, 7); stamp_flush(A0, cfg, s.WS, s.W, R.LANE, 1)
    A0.label("KA_end")
    A0("s_endpgm")
```

```python
from gen_common import *
from gen_att import weave2

WS_PART = 64 << 20
WS_FLAG = 60 << 20

class R:
    FR = 0
    WV = 64
    BV = 68
    WA = 72
    WB = 76
    CA = 78
    WC = 80
    CC = 84
    LANE16 = 85; LANE = 86; T = 88
    SUM = 0
    BACC = 64

class SG:
    WS = 4; WO = 8; WB = 12; OUT = 16
    W = 20; SL = 21; RB = 22; CB = 23; DST = 24; SOFF = 25; CO = 26; WOO = 27; OFO = 28; WBO = 29; T0 = 30; T1 = 31
    RT = 32; CT = 33; PO = 34; FO = 35; ROT = 36; CUR = 37

NSLOT = 4
def sl(n): return (n % NSLOT) * 32768

def k3(A, cfg, name="k3_kernel"):
    s = SG
    kernel_header(A, name)
    A("s_cmp_ge_u32 s2, 256\ns_cbranch_scc1 K3_end")
    A("s_load_dwordx2 s[44:45], s[0:1], 40\ns_load_dwordx4 s[76:79], s[0:1], 72\ns_load_dwordx2 s[48:49], s[0:1], 96")
    L = R.LANE; T = R.T
    A(f"v_lshrrev_b32 {v(T)}, 6, v0\nv_and_b32 {v(L)}, 63, v0\nv_lshlrev_b32 {v(R.LANE16)}, 4, {v(L)}")
    A(f"v_readfirstlane_b32 s{s.W}, {v(T)}")
    A(f"s_bfe_u32 s{s.SL}, s2, 0x20001\ns_and_b32 s{s.RB}, s2, 1\ns_lshl_b32 s{s.RB}, s{s.RB}, 3\ns_lshr_b32 s{s.T0}, s2, 5\ns_add_u32 s{s.RB}, s{s.RB}, s{s.T0}\ns_bfe_u32 s{s.CB}, s2, 0x20003")
    A(f"s_and_b32 s{s.RT}, s2, 7\ns_lshl_b32 s{s.RT}, s{s.RT}, 2\ns_add_u32 s{s.RT}, s{s.RT}, s{s.CB}\ns_lshr_b32 s{s.CT}, s2, 5")
    A(f"s_lshl_b32 s{s.DST}, s{s.W}, 12")
    if cfg.get("rot3", 0): A(f"s_lshl_b32 s{s.ROT}, s{s.CB}, 1\ns_add_u32 s{s.ROT}, s{s.ROT}, s{s.CT}\ns_lshl_b32 s{s.ROT}, s{s.ROT}, 12")
    else: A(f"s_mov_b32 s{s.ROT}, 0")
    A(f"s_lshl_b32 s{s.CO}, s{s.RB}, 20\ns_lshl_b32 s{s.T0}, s{s.W}, 18\ns_add_u32 s{s.CO}, s{s.CO}, s{s.T0}\ns_lshl_b32 s{s.T0}, s{s.SL}, 15\ns_add_u32 s{s.CO}, s{s.CO}, s{s.T0}\ns_add_u32 s{s.CO}, s{s.CO}, {hex(WS_CTX)}")
    A(f"s_lshl_b32 s{s.WOO}, s{s.SL}, 20\ns_lshl_b32 s{s.T0}, s{s.W}, 14\ns_add_u32 s{s.WOO}, s{s.WOO}, s{s.T0}\ns_lshl_b32 s{s.T0}, s{s.CB}, 8\ns_add_u32 s{s.WOO}, s{s.WOO}, s{s.T0}")
    A(f"s_lshl_b32 s{s.OFO}, s{s.RT}, 16\ns_lshl_b32 s{s.T0}, s{s.W}, 14\ns_add_u32 s{s.OFO}, s{s.OFO}, s{s.T0}\ns_add_u32 s{s.OFO}, s{s.OFO}, {hex(WS_OF)}")
    A(f"s_lshl_b32 s{s.WBO}, s{s.W}, 15\ns_lshl_b32 s{s.T0}, s{s.CT}, 7\ns_add_u32 s{s.WBO}, s{s.WBO}, s{s.T0}")
    A(f"v_lshrrev_b32 {v(T)}, 4, {v(L)}\nv_lshlrev_b32 {v(T+1)}, 1, {v(T)}\nv_and_b32 {v(T+2)}, 15, {v(L)}\nv_xor_b32 {v(T+1)}, {v(T+1)}, {v(T+2)}\nv_lshlrev_b32 {v(T+1)}, 4, {v(T+1)}")
    A(f"v_lshl_add_u32 {v(R.WV)}, {v(T)}, 10, {v(T+1)}\nv_xor_b32 {v(T)}, 128, {v(R.WV)}")
    A(f"v_add_u32 {v(R.WV+1)}, 3072, {v(T)}\nv_add_u32 {v(R.WV+2)}, {3072*2}, {v(R.WV)}\nv_add_u32 {v(R.WV+3)}, {3072*3}, {v(T)}")
    A("s_waitcnt lgkmcnt(0)")
    srd(A, s.WO, 44, 4096 * 512 * 2); srd(A, s.WB, 76, 512 * 512 * 2); srd(A, s.OUT, 78, 2048 * 1024 * 2); srd(A, s.WS, 48, WS_BYTES)
    def stage(n):
        Ls = []
        if n < 16:
            Ls.append(f"s_add_u32 s{s.CUR}, s{s.ROT}, {n*2048}\ns_and_b32 s{s.CUR}, s{s.CUR}, 0x7fff\ns_add_u32 m0, s{s.DST}, {sl(n)}")
            Ls.append(f"s_add_u32 s{s.SOFF}, s{s.CO}, s{s.CUR}")
            for j in range(2): Ls.append(f"buffer_load_dwordx4 {v(R.LANE16)}, s[{s.WS}:{s.WS+3}], s{s.SOFF} offen offset:{j*1024} lds")
            Ls.append(f"s_add_u32 s{s.SOFF}, s{s.SOFF}, {131072 - 2048}")
            for j in range(2, 4): Ls.append(f"buffer_load_dwordx4 {v(R.LANE16)}, s[{s.WS}:{s.WS+3}], s{s.SOFF} offen offset:{j*1024} lds")
            Ls.append(f"s_lshl_b32 s{s.CUR}, s{s.CUR}, 5\ns_add_u32 m0, s{s.DST}, {sl(n) + 16384}")
            Ls.append(f"s_add_u32 s{s.SOFF}, s{s.WOO}, s{s.CUR}")
            for j in range(4): Ls.append(f"buffer_load_dwordx4 {v(R.WV+j)}, s[{s.WO}:{s.WO+3}], s{s.SOFF} offen offset:{j*1024} lds")
        else:
            b = n - 16
            Ls.append(f"s_add_u32 m0, s{s.DST}, {sl(n)}")
            Ls.append(f"s_add_u32 s{s.SOFF}, s{s.OFO}, {b*4096}")
            for j in range(4): Ls.append(f"buffer_load_dwordx4 {v(R.LANE16)}, s[{s.WS}:{s.WS+3}], s{s.SOFF} offen offset:{j*1024} lds")
            Ls.append(f"s_add_u32 m0, s{s.DST}, {sl(n) + 16384}")
            Ls.append(f"s_add_u32 s{s.SOFF}, s{s.WBO}, {b*131072}")
            for j in range(4): Ls.append(f"buffer_load_dwordx4 {v(R.BV+j)}, s[{s.WB}:{s.WB+3}], s{s.SOFF} offen offset:{j*1024} lds")
        return Ls
    stamp(A, cfg, 0)
    for n in range(NSLOT):
        for ln in stage(n): A(ln)
    A(f"v_lshrrev_b32 {v(T)}, 4, {v(L)}\nv_lshlrev_b32 {v(T)}, 1, {v(T)}\nv_and_b32 {v(T+1)}, 7, {v(L)}\nv_xor_b32 {v(T)}, {v(T)}, {v(T+1)}\nv_lshlrev_b32 {v(T)}, 4, {v(T)}")
    A(f"v_lshrrev_b32 {v(T+1)}, 3, {v(L)}\nv_lshl_add_u32 {v(R.BV)}, {v(T+1)}, 10, {v(T)}")
    for j in range(1, 4): A(f"v_add_u32 {v(R.BV+j)}, {7168*j}, {v(R.BV)}")
    A(f"s_lshr_b32 s{s.T0}, s{s.W}, 1\ns_lshl_b32 s{s.T0}, s{s.T0}, 7")
    A(f"v_lshrrev_b32 {v(T)}, 2, {v(L)}\nv_lshlrev_b32 {v(T)}, 8, {v(T)}\nv_bfe_u32 {v(T+1)}, {v(L)}, 2, 3\nv_lshl_add_u32 {v(T)}, {v(T+1)}, 5, {v(T)}")
    A(f"v_and_b32 {v(T+1)}, 3, {v(L)}\nv_lshl_add_u32 {v(T)}, {v(T+1)}, 3, {v(T)}\nv_xor_b32 {v(T)}, s{s.T0}, {v(T)}\nv_add_u32 {v(R.WA)}, 0x4000, {v(T)}")
    for c in range(1, 4): A(f"v_xor_b32 {v(R.WA+c)}, {c<<5}, {v(R.WA)}")
    A(f"s_and_b32 s{s.T0}, s{s.W}, 1\ns_lshl_b32 s{s.T0}, s{s.T0}, 13\nv_add_u32 {v(R.CA)}, s{s.T0}, {v(R.LANE16)}")
    A(f"s_lshr_b32 s{s.T0}, s{s.W}, 1\ns_lshl_b32 s{s.T0}, s{s.T0}, 6")
    A(f"v_bfe_u32 {v(T)}, {v(L)}, 2, 3\nv_lshlrev_b32 {v(T)}, 7, {v(T)}\nv_lshrrev_b32 {v(T+1)}, 5, {v(L)}\nv_lshl_add_u32 {v(T)}, {v(T+1)}, 11, {v(T)}")
    A(f"v_bfe_u32 {v(T+1)}, {v(L)}, 3, 2\nv_lshl_add_u32 {v(T)}, {v(T+1)}, 5, {v(T)}\nv_and_b32 {v(T+1)}, 3, {v(L)}\nv_lshl_add_u32 {v(T)}, {v(T+1)}, 3, {v(T)}")
    A(f"v_xor_b32 {v(T)}, s{s.T0}, {v(T)}\nv_add_u32 {v(R.WB)}, 0x4000, {v(T)}\nv_xor_b32 {v(R.WB+1)}, 32, {v(R.WB)}")
    A(f"s_lshl_b32 s{s.T0}, s{s.RB}, 2\ns_add_u32 s{s.T0}, s{s.T0}, s{s.CB}\ns_lshl_b32 s{s.FO}, s{s.T0}, 7\ns_add_u32 s{s.FO}, s{s.FO}, {hex(WS_FLAG)}")
    A(f"s_lshl_b32 s{s.PO}, s{s.T0}, 17\ns_add_u32 s{s.PO}, s{s.PO}, {hex(WS_PART)}")
    def addr(n):
        if n < 16: return [f"v_add_u32 {v(R.WC+c)}, {sl(n)}, {v(R.WA+c)}" for c in range(4)] + [f"v_add_u32 {v(R.CC)}, {sl(n)}, {v(R.CA)}"]
        return [f"v_add_u32 {v(R.WC+c)}, {sl(n)}, {v(R.WB+c)}" for c in range(2)] + [f"v_add_u32 {v(R.CC)}, {sl(n)}, {v(R.CA)}"]
    def reads(k):
        t2 = k & 1; fs = R.FR + (k & 1) * 32
        Ls = []
        for i in range(4):
            Ls.append(f"ds_read_b128 {v(fs + 16 + i*4, 4)}, {v(R.CC)} offset:{i*2048 + t2*1024}")
            for rd in range(2):
                Ls.append(f"ds_read_b64_tr_b16 {v(fs + i*4 + rd*2, 2)}, {v(R.WC+i)} offset:{(32*t2 + 16*rd)*256}")
        return Ls
    for ln in addr(0): A(ln)
    A(f"s_waitcnt vmcnt({8*(NSLOT-1)})\ns_barrier")
    for ln in reads(0): A(ln)
    for k in range(32):
        st, t2 = k >> 1, k & 1
        fs = R.FR + (k & 1) * 32
        tailv = []; vm = []
        if t2 == 1:
            if st < 15: A(f"s_waitcnt vmcnt({8*(NSLOT-2)}) lgkmcnt(0)")
            else: A("s_waitcnt lgkmcnt(0)")
            A("s_barrier")
            vm = stage(st + NSLOT)[:7 if st + NSLOT < 16 else 6]
        else:
            A("s_waitcnt lgkmcnt(0)")
            if st < 15: tailv = addr(st + 1)
            if st >= 1: vm = stage(st - 1 + NSLOT)[7 if st - 1 + NSLOT < 16 else 6:]
        if k == 31: vm = stage(st + NSLOT)
        mf = []
        for c in range(4):
            for rt in range(4):
                acc = (rt * 4 + c) * 4
                cc = "0" if k == 0 else a(acc, 4)
                mf.append(f"{MF16} {a(acc,4)}, {v(fs + c*4, 4)}, {v(fs + 16 + rt*4, 4)}, {cc}")
        for b in weave2(mf, reads(k + 1) if k < 31 else [], vm, tailv, first=2): A(b)
    stamp(A, cfg, 1)
    A(f"s_lshl_b32 s{s.T0}, s{s.W}, 15\ns_lshl_b32 s{s.T1}, s{s.SL}, 13\ns_add_u32 s{s.T0}, s{s.T0}, s{s.T1}\ns_add_u32 s{s.T0}, s{s.T0}, s{s.PO}\ns_add_u32 s{s.T1}, s{s.T0}, 0x1000")
    for ln in addr(16): A(ln)
    A(f"v_add_u32 {v(T)}, 0x20000, {v(R.LANE16)}")
    A(f"s_cmp_eq_u32 s{s.W}, s{s.SL}\ns_cbranch_scc1 K3_own")
    for f in range(8):
        tb = (f & 3) * 12
        for i in range(8): A(f"v_accvgpr_read_b32 {v(tb+i)}, {a(f*8+i)}")
        for p in range(4): A(f"v_cvt_pk_bf16_f32 {v(tb+8+p)}, {v(tb+2*p)}, {v(tb+2*p+1)}")
        A(f"buffer_store_dwordx4 {v(tb+8,4)}, {v(R.LANE16)}, s[{s.WS}:{s.WS+3}], s{s.T0 if f < 4 else s.T1} offen offset:{(f&3)*1024} sc1")
    A("s_waitcnt vmcnt(8)\ns_branch K3_pub")
    A.label("K3_own")
    for i in range(16): A(f"ds_write_b128 {v(T)}, {a(i*4,4)} offset:{i*1024}")
    A("s_waitcnt vmcnt(0)")
    A.label("K3_pub")
    A("s_barrier")
    stamp(A, cfg, 2)
    def breads(k):
        b, t4 = k >> 2, k & 3; fs = R.FR + (k & 3) * 16
        Ls = []
        for i in range(2):
            Ls.append(f"ds_read_b128 {v(fs + 8 + i*4, 4)}, {v(R.CC)} offset:{i*4096 + t4*1024}")
            for rd in range(2):
                Ls.append(f"ds_read_b64_tr_b16 {v(fs + i*4 + rd*2, 2)}, {v(R.WC+i)} offset:{(32*t4 + 8*rd)*128}")
        return Ls
    for ln in breads(0) + breads(1): A(ln)
    for k in range(16):
        fs = R.FR + (k & 3) * 16
        if k + 2 < 16:
            if (k + 2) % 4 == 0:
                for ln in addr(16 + (k + 2) // 4): A(ln)
            for ln in breads(k + 2): A(ln)
        A(f"s_waitcnt lgkmcnt({12 if k + 2 < 16 else (6 if k == 14 else 0)})")
        for c in range(2):
            for rt in range(2):
                acc = R.BACC + (rt * 2 + c) * 4
                cc = "0" if k == 0 else a(acc, 4)
                A(f"{MF16} {a(acc,4)}, {v(fs + c*4, 4)}, {v(fs + 8 + rt*4, 4)}, {cc}")
    A("s_waitcnt vmcnt(0) lgkmcnt(0)\ns_barrier")
    A(f"s_cmp_eq_u32 s{s.W}, 0\ns_cbranch_scc0 K3_nf")
    A(f"s_lshl_b32 s{s.T0}, s{s.SL}, 2\ns_add_u32 s{s.T0}, s{s.T0}, s{s.FO}\nv_mov_b32 {v(T)}, 1\nv_mov_b32 {v(T+1)}, 0")
    A(f"s_mov_b64 exec, 1\nbuffer_store_dword {v(T)}, {v(T+1)}, s[{s.WS}:{s.WS+3}], s{s.T0} offen sc1\ns_mov_b64 exec, -1")
    A.label("K3_nf")
    A(f"v_and_b32 {v(T)}, 15, {v(L)}\nv_lshlrev_b32 {v(T)}, 11, {v(T)}\nv_lshrrev_b32 {v(T+1)}, 4, {v(L)}\nv_lshl_add_u32 {v(T+2)}, {v(T+1)}, 3, {v(T)}")
    A(f"v_lshl_add_u32 {v(T+3)}, {v(T+1)}, 5, {v(T)}")
    A(f"s_lshl_b32 s{s.T0}, s{s.RT}, 17\ns_and_b32 s{s.T1}, s{s.W}, 1\ns_lshl_b32 s{s.T1}, s{s.T1}, 16\ns_add_u32 s{s.T0}, s{s.T0}, s{s.T1}")
    A(f"s_lshl_b32 s{s.T1}, s{s.CT}, 7\ns_add_u32 s{s.T0}, s{s.T0}, s{s.T1}\ns_lshr_b32 s{s.T1}, s{s.W}, 1\ns_lshl_b32 s{s.T1}, s{s.T1}, 6\ns_add_u32 s{s.T0}, s{s.T0}, s{s.T1}\ns_add_u32 s{s.T1}, s{s.T0}, 0x8000")
    for i in range(16): A(f"v_accvgpr_read_b32 {v(i)}, {a(R.BACC+i)}")
    for p in range(8): A(f"v_cvt_pk_bf16_f32 {v(16+p)}, {v(2*p)}, {v(2*p+1)}")
    for rt in range(2):
        for c in range(2):
            A(f"buffer_store_dwordx2 {v(16 + (rt*2+c)*2, 2)}, {v(T+2)}, s[{s.OUT}:{s.OUT+3}], s{s.T0 if rt == 0 else s.T1} offen offset:{1024 + c*32}")
    stamp(A, cfg, 3)
    A(f"s_add_u32 s{s.T1}, s{s.DST}, 0x20000\nv_add_u32 {v(T)}, s{s.T1}, {v(R.LANE16)}")
    for c in range(4): A(f"ds_read_b128 {v(48+c*4,4)}, {v(T)} offset:{c*1024}")
    A(f"v_mov_b32 {v(T+1)}, 0\ns_mov_b32 s{s.T1}, 0")
    A.label("K3_poll")
    A(f"buffer_load_dwordx4 {v(T+4,4)}, {v(T+1)}, s[{s.WS}:{s.WS+3}], s{s.FO} offen sc1")
    A("s_waitcnt vmcnt(0)")
    A(f"v_and_b32 {v(T+4)}, {v(T+4)}, {v(T+5)}\nv_and_b32 {v(T+6)}, {v(T+6)}, {v(T+7)}\nv_and_b32 {v(T+4)}, {v(T+4)}, {v(T+6)}")
    A(f"v_cmp_eq_u32 vcc, 1, {v(T+4)}\ns_nop 4\ns_cbranch_vccnz K3_go\ns_sleep 2\ns_add_u32 s{s.T1}, s{s.T1}, 1\ns_cmp_lt_u32 s{s.T1}, 0x40000\ns_cbranch_scc1 K3_poll")
    A.label("K3_go")
    stamp(A, cfg, 4)
    A(f"s_lshl_b32 s{s.T0}, s{s.SL}, 15\ns_add_u32 s{s.T0}, s{s.T0}, s{s.PO}\ns_lshl_b32 s{s.T1}, s{s.W}, 11\ns_add_u32 s{s.T0}, s{s.T0}, s{s.T1}")
    for j in range(1, 4):
        A(f"s_add_u32 s{s.T1}, s{s.SL}, {j}\ns_and_b32 s{s.T1}, s{s.T1}, 3\ns_lshl_b32 s{s.T1}, s{s.T1}, 13\ns_add_u32 s{s.T1}, s{s.T1}, s{s.T0}")
        for u in range(2):
            A(f"buffer_load_dwordx4 {v(16 + (j-1)*8 + u*4, 4)}, {v(R.LANE16)}, s[{s.WS}:{s.WS+3}], s{s.T1} offen offset:{u*1024} sc1")
    A(f"s_lshl_b32 s{s.T0}, s{s.RB}, 18\ns_and_b32 s{s.T1}, s{s.SL}, 1\ns_lshl_b32 s{s.T1}, s{s.T1}, 17\ns_add_u32 s{s.T0}, s{s.T0}, s{s.T1}\ns_lshl_b32 s{s.T1}, s{s.W}, 15\ns_add_u32 s{s.T0}, s{s.T0}, s{s.T1}")
    A(f"s_lshl_b32 s{s.T1}, s{s.CB}, 8\ns_add_u32 s{s.T0}, s{s.T0}, s{s.T1}\ns_lshr_b32 s{s.T1}, s{s.SL}, 1\ns_lshl_b32 s{s.T1}, s{s.T1}, 7\ns_add_u32 s{s.T0}, s{s.T0}, s{s.T1}")
    A("s_waitcnt lgkmcnt(0)")
    for j in range(3):
        A(f"s_waitcnt vmcnt({4 - 2*j})")
        for p in range(8):
            r = 16 + j * 8 + p
            A(f"v_lshlrev_b32 {v(40)}, 16, {v(r)}\nv_and_b32 {v(41)}, 0xffff0000, {v(r)}\nv_pk_add_f32 {v(48+2*p,2)}, {v(48+2*p,2)}, {v(40,2)}")
    for p in range(8): A(f"v_cvt_pk_bf16_f32 {v(16+p)}, {v(48+2*p)}, {v(48+2*p+1)}")
    for c in range(4):
        A(f"buffer_store_dwordx2 {v(16+c*2,2)}, {v(T+2)}, s[{s.OUT}:{s.OUT+3}], s{s.T0} offen offset:{c*32}")
    if cfg.get("stamps"): A("s_waitcnt vmcnt(0)")
    stamp(A, cfg, 7)
    stamp_flush(A, cfg, s.WS, s.W, R.LANE, 2)
    if cfg.get("dbgout"):
        A("s_waitcnt vmcnt(0)\ns_cmp_eq_u32 s2, 0\ns_cbranch_scc0 K3_end\ns_cmp_eq_u32 s20, 0\ns_cbranch_scc0 K3_end")
        A("s_load_dwordx2 s[40:41], s[0:1], 88\ns_waitcnt lgkmcnt(0)")
        srd(A, 40, 40, 256)
        A(f"s_mov_b32 s50, {hex(WS_DBG + (1 << 20) + 256)}\nbuffer_load_dword v3, v2, s[{s.WS}:{s.WS+3}], s50 offen sc1\ns_waitcnt vmcnt(0)")
        A("s_mov_b64 exec, 0xff\nbuffer_store_dword v3, v2, s[40:43], 0 offen\nbuffer_store_dword v1, v2, s[40:43], 0 offen offset:32\ns_waitcnt vmcnt(0)")
    A.label("K3_end")
    A("s_endpgm")
```

```python
from gen_common import *

class R:
    S = 0; P = 64; NEGM = 80; O = 112
    M = 240
    MX = 244
    TMP = 248
    KADDR = 250; VADDR = 251; LANE16 = 252; LANE = 253; NINF = 254; MXA = 255
    XV = 128; WV = 132; XA = 136; WA = 140; XC = 148; WC = 152; T2 = 160
    KF = 0; VF = 32; Q = 64; QN = 128
    LS = 160
    ONES = 176
    FR = 160

class SG:
    WS = 4; X = 8; WQ = 12; KV = 16
    W = 20; H = 21; I = 22; BA = 23; KP = 24
    SRC = 25; SL0 = 26; SL1 = 27; SL2 = 28; DST = 29; SOFF = 30
    REM = 33; T = 34; TE = 35; NI = 36; T0 = 37; T1 = 38; T2 = 39; XA_ = 40; XB_ = 41; WQO = 42; FLG = 43
    MASK = 64

def Sreg(buf, qt, kt=0): return R.S + buf * 32 + (qt * 2 + kt) * 4
def Nreg(qt, kt=0): return R.NEGM + (qt * 2 + kt) * 4
def Preg(qt): return R.P + qt * 4
def Oreg(qt, dt=0): return R.O + (qt * 8 + dt) * 4
def Qreg(qt, t=0): return R.Q + (qt * 4 + t) * 4
def MXr(qs): return R.MX + 2 * qs

def dma_half(cfg, half, slot_sg=None, slot_imm=None):
    s = SG
    L = []
    if half == 0:
        L.append(f"s_add_u32 m0, s{s.DST}, " + (f"s{slot_sg}" if slot_sg is not None else str(slot_imm)))
        L.append(f"s_add_u32 s{s.SOFF}, s{s.SRC}, 0x1000")
        for j in range(4):
            L.append(f"buffer_load_dwordx4 {v(R.LANE16)}, s[{s.KV}:{s.KV+3}], s{s.SRC} offen offset:{j*1024} sc1 lds")
    else:
        L.append(f"s_add_u32 m0, m0, 0x1000")
        L.append(f"s_add_u32 s{s.SRC}, s{s.SRC}, 0x8000")
        for j in range(4):
            L.append(f"buffer_load_dwordx4 {v(R.LANE16)}, s[{s.KV}:{s.KV+3}], s{s.SOFF} offen offset:{j*1024} sc1 lds")
    return L

def rot_slots():
    s = SG
    return [f"s_mov_b32 s{s.SL2}, s{s.SL1}", f"s_mov_b32 s{s.SL1}, s{s.SL0}", f"s_add_u32 s{s.SL0}, s{s.SL0}, 0x8000",
            f"s_cmp_eq_u32 s{s.SL0}, 0x28000", f"s_cselect_b32 s{s.SL0}, 0, s{s.SL0}"]

def rem_ops(lim):
    s = SG
    return [f"s_sub_u32 s{s.REM}, s{s.REM}, 1", f"s_cmp_le_u32 s{s.REM}, {lim}", f"s_cselect_b32 s{s.TE}, s{s.NI}, s{s.T}"]

def period(cfg, cur, voff, dma, salu, vaddr, do_qk=True, do_pv=True):
    s = SG
    nxt = 1 - cur
    PVW = 9
    NS = 32 + 4 * PVW
    mf = []
    for kt in range(2):
        for t in range(4):
            for qt in range(4):
                d = Sreg(nxt, qt, kt)
                c = v(Nreg(qt, kt), 4) if t == 0 else v(d, 4)
                mf.append(f"{MF16} {v(d,4)}, {a(R.KF + (kt*4+t)*4, 4)}, {a(Qreg(qt,t), 4)}, {c}" if do_qk else "s_nop 0")
    for qt in range(4):
        for dt in range(8):
            o = Oreg(qt, dt)
            mf.append(f"{MF16} {v(o,4)}, {a(R.VF + dt*4, 4)}, {v(Preg(qt),4)}, {v(o,4)}" if do_pv else None)
        mf.append(f"{MF16} {a(R.LS+qt*4,4)}, {a(R.ONES, 4)}, {v(Preg(qt),4)}, {a(R.LS+qt*4,4)}" if do_pv else None)
    ops = []
    if do_pv:
        n = 0
        espan = cfg.get("espan", 56) if do_qk else 40
        for qt in range(4):
            dl_cvt = 32 + PVW * qt - 3
            base = Sreg(cur, qt)
            for p in range(4):
                dle = n * espan // 16
                n += 1
                e0 = Op(f"v_exp_f32 {v(base+2*p)}, {v(base+2*p)}", dl=dle, hard=dl_cvt - 2)
                e1 = Op(f"v_exp_f32 {v(base+2*p+1)}, {v(base+2*p+1)}", dl=dle + 1, hard=dl_cvt - 1)
                cv = Op(f"v_cvt_pk_bf16_f32 {v(Preg(qt)+p)}, {v(base+2*p)}, {v(base+2*p+1)}", dl=dle + 3, hard=dl_cvt, after=[e0, e1])
                ops += [e0, e1, cv]
    prev = None
    if do_pv:
        for i in range(8):
            g = i * 3
            o = Op(f"ds_read_b128 {a(R.VF + i*4, 4)}, {v(R.VADDR)} offset:{voff + i*1024}", rel=g, dl=g + 2, hard=26, after=[prev])
            ops.append(o); prev = o
    if do_qk:
        for t in range(8):
            g = (cfg.get("k_first", 28) + t * 4) if do_pv else 4 * t + 4
            o = Op(f"ds_read_b128 {a(R.KF + t*4, 4)}, {v(R.KADDR)} offset:{t*1024}", rel=g, dl=g + 3, hard=NS - 5, after=[prev])
            ops.append(o); prev = o
    lastds = prev
    prev = None
    nd = sum(1 for t in dma if t.startswith("buffer"))
    k = 0
    firstm0 = None; m0op = None
    for txt in dma:
        g = cfg.get("dma_first", 2) + k * cfg.get("dma_span", 60) // max(nd, 1)
        if txt.startswith("s_"):
            o = Op(txt, rel=max(0, g - 3), dl=g, later=[prev] if (prev and prev.cat == "m") else [], after=[prev])
            if txt.split()[1].startswith("m0"): m0op = o
            if firstm0 is None: firstm0 = o
        else:
            o = Op(txt, rel=g, dl=g + 3, after=[prev], later=[m0op]); k += 1
        ops.append(o); prev = o
    sp = None
    i = 0
    while i < len(salu):
        if salu[i].startswith("s_cmp"):
            txt = salu[i] + "\n" + salu[i + 1]; i += 2
        else:
            txt = salu[i]; i += 1
        o = Op(txt, rel=4, dl=50, after=[sp, firstm0])
        if "\n" in txt: o.glue = 4
        ops.append(o); sp = o
    if do_qk:
        for txt in vaddr:
            ops.append(Op(txt, rel=NS - 10, dl=NS - 2, after=[lastds, sp]))
        prevm = [None, None]
        n = 0
        for kt in range(2):
            mrel = (22 if kt == 0 else 38) if do_pv else 40
            for qt in range(4):
                for hh in range(2):
                    qs = qt >> 1
                    b = Sreg(nxt, qt, kt) + 2 * hh
                    dl = cfg.get('mx_dl', 50) + n; n += 1
                    if prevm[qs] is None: o = Op(f"v_max_f32 {v(MXr(qs))}, {v(b)}, {v(b+1)}", rel=mrel, dl=dl)
                    else: o = Op(f"v_max3_f32 {v(MXr(qs))}, {v(MXr(qs))}, {v(b)}, {v(b+1)}", rel=mrel, dl=dl, after=[prevm[qs]])
                    ops.append(o); prevm[qs] = o
        o = Op(f"v_max_f32 {v(R.MXA)}, {v(MXr(0))}, {v(MXr(1))}", dl=NS - 2, after=prevm)
        ops.append(o)
        ops.append(Op(f"v_cmp_nge_f32 vcc, s{s.TE}, {v(R.MXA)}", dl=NS - 2, after=[o, sp]))
    pre = {}
    if not do_pv: pre[40] = ["s_nop 7"]
    body = schedule(mf, ops, budget=cfg.get("budget", 8), pre=pre, reserve={31: 4, NS - 1: 8}, verbose=cfg.get("verbose"))
    lines = []
    for b in body: lines += b.split("\n")
    return auto_lgkm(lines, lookback=cfg.get("lookback", 12))

def rowred(A, reg, tmp, op):
    A(f"v_mov_b32 {v(tmp)}, {v(reg)}\ns_nop 1\nv_permlane16_swap_b32 {v(reg)}, {v(tmp)}\n{op} {v(reg)}, {v(reg)}, {v(tmp)}")
    A(f"v_mov_b32 {v(tmp)}, {v(reg)}\ns_nop 1\nv_permlane32_swap_b32 {v(reg)}, {v(tmp)}\n{op} {v(reg)}, {v(reg)}, {v(tmp)}")

def rowmax(A, nxt, qt, mx):
    b = Sreg(nxt, qt)
    A(f"v_max3_f32 {v(mx)}, {v(b)}, {v(b+1)}, {v(b+2)}\nv_max3_f32 {v(mx)}, {v(mx)}, {v(b+3)}, {v(b+4)}")
    A(f"v_max3_f32 {v(mx)}, {v(mx)}, {v(b+5)}, {v(b+6)}\nv_max_f32 {v(mx)}, {v(mx)}, {v(b+7)}")
    rowred(A, mx, R.TMP, "v_max_f32")

def apply_mask(A, qs, sD):
    s = SG
    ld, le = A.newlabel("Lmd"), A.newlabel("Lme")
    A(f"s_cmp_lt_i32 s{sD}, 0\ns_cbranch_scc1 {le}")
    A(f"s_cmp_eq_i32 s{sD}, 0\ns_cbranch_scc1 {ld}")
    for r in range(16): A(f"v_mov_b32 {v(Nreg(2*qs)+r)}, {v(R.NINF)}")
    A(f"s_branch {le}")
    A.label(ld)
    for r in range(4):
        A(f"v_cndmask_b32 {v(Nreg(2*qs,0)+r)}, {v(Nreg(2*qs,0)+r)}, {v(R.NINF)}, s[{s.MASK+2*r}:{s.MASK+2*r+1}]")
        A(f"v_mov_b32 {v(Nreg(2*qs,1)+r)}, {v(R.NINF)}")
        A(f"v_cndmask_b32 {v(Nreg(2*qs+1,1)+r)}, {v(Nreg(2*qs+1,1)+r)}, {v(R.NINF)}, s[{s.MASK+2*r}:{s.MASK+2*r+1}]")
    A.label(le)

def pk_scalar(op, A, base, n, sc):
    for i in range(0, n, 2):
        A(f"{op} {v(base+i,2)}, {v(base+i,2)}, {v(sc,2)} op_sel_hi:[1,0]")

def slow_path(A, nxt, slots=(0, 1)):
    A("s_nop 7")
    mx = R.MX
    for qs in slots:
        for qt in (2 * qs, 2 * qs + 1):
            rowmax(A, nxt, qt, mx)
            A(f"v_ceil_f32 {v(mx)}, {v(mx)}\nv_max_f32 {v(mx)}, 0, {v(mx)}")
            A(f"v_add_f32 {v(R.M+qt)}, {v(R.M+qt)}, {v(mx)}\nv_sub_f32 {v(mx)}, 0, {v(mx)}")
            pk_scalar("v_pk_add_f32", A, Sreg(nxt, qt), 8, mx)
            A(f"v_exp_f32 {v(mx)}, {v(mx)}")
            A(f"v_sub_f32 {v(R.TMP)}, 0, {v(R.M+qt)}")
            for i in range(8): A(f"v_mov_b32 {v(Nreg(qt)+i)}, {v(R.TMP)}")
            A(f"v_accvgpr_read_b32 {v(R.TMP)}, {a(R.LS+qt*4)}\nv_mul_f32 {v(R.TMP)}, {v(R.TMP)}, {v(mx)}")
            for i in range(4): A(f"v_accvgpr_write_b32 {a(R.LS+qt*4+i)}, {v(R.TMP)}")
            pk_scalar("v_pk_mul_f32", A, Oreg(qt), 32, mx)
    A("s_nop 1")

def init_path(A, nxt, qs):
    mx = MXr(1)
    for qt in (2 * qs, 2 * qs + 1):
        rowmax(A, nxt, qt, mx)
        A(f"v_max_f32 {v(mx)}, 0xf149f2ca, {v(mx)}")
        A(f"v_ceil_f32 {v(R.M+qt)}, {v(mx)}\nv_sub_f32 {v(mx)}, 0, {v(R.M+qt)}")
        pk_scalar("v_pk_add_f32", A, Sreg(nxt, qt), 8, mx)
        for i in range(8): A(f"v_mov_b32 {v(Nreg(qt)+i)}, {v(mx)}")
        for i in range(4): A(f"v_accvgpr_write_b32 {a(R.LS+qt*4+i)}, 0")
        for i in range(32): A(f"v_mov_b32 {v(Oreg(qt)+i)}, 0")

def ctx_addr(A, sblk):
    s = SG
    A(f"s_lshl_b32 s{s.T0}, s{sblk}, 2\ns_add_u32 s{s.T0}, s{s.T0}, s{s.W}\ns_lshl_b32 s{s.T0}, s{s.T0}, 18")
    A(f"s_lshl_b32 s{s.T1}, s{s.H}, 12\ns_add_u32 s{s.T0}, s{s.T0}, s{s.T1}\ns_add_u32 s{s.T0}, s{s.T0}, {hex(WS_CTX)}")
    A(f"s_add_u32 s{s.T1}, s{s.T0}, 0x20000")

def store_frag(A, f, src, dst):
    s = SG
    for p in range(4):
        A(f"v_cvt_pk_bf16_f32 {v(dst + p)}, {v(src+2*p)}, {v(src+2*p+1)}")
    A(f"buffer_store_dwordx4 {v(dst,4)}, {v(R.LANE16)}, s[{s.WS}:{s.WS+3}], s{s.T0 if f < 4 else s.T1} offen offset:{(f&3)*1024} sc1")

def epilogue_b(A):
    s = SG
    ctx_addr(A, s.I)
    A("s_nop 3")
    for q in range(2):
        A(f"v_accvgpr_read_b32 {v(R.TMP)}, {a(R.LS+(2+q)*4)}\ns_nop 0\nv_rcp_f32 {v(R.TMP)}, {v(R.TMP)}\ns_nop 0")
        for e in range(4):
            b = Oreg(2 + q) + e * 8
            pk_scalar("v_pk_mul_f32", A, b, 8, R.TMP)
            store_frag(A, q * 4 + e, b, 32 + (q * 4 + e) * 4)

def epilogue_a(A):
    s = SG
    A(f"s_mul_i32 s{s.T0}, s{s.W}, 17408\ns_xor_b32 s{s.T1}, s{s.W}, 1\ns_mul_i32 s{s.T1}, s{s.T1}, 17408")
    A(f"v_add_u32 {v(R.KADDR)}, s{s.T0}, {v(R.LANE16)}\nv_add_u32 {v(R.VADDR)}, s{s.T1}, {v(R.LANE16)}")
    A(f"v_mov_b32 v96, {v(R.M+2)}\nv_mov_b32 v97, {v(R.M+3)}\ns_nop 3")
    A(f"v_accvgpr_read_b32 v98, {a(R.LS+8)}\nv_accvgpr_read_b32 v99, {a(R.LS+12)}")
    A(f"v_accvgpr_read_b32 v100, {a(R.LS)}\nv_accvgpr_read_b32 v101, {a(R.LS+4)}")
    A("s_waitcnt vmcnt(0)\ns_barrier")
    A(f"ds_write_b128 {v(R.KADDR)}, v[96:99] offset:16384")
    for i in range(16):
        A(f"ds_write_b128 {v(R.KADDR)}, {v(Oreg(2)+i*4,4)} offset:{i*1024}")
    ctx_addr(A, s.BA)
    A("s_waitcnt lgkmcnt(0)\ns_barrier")
    A(f"ds_read_b128 v[96:99], {v(R.VADDR)} offset:16384")
    for i in range(16):
        A(f"ds_read_b128 {v(i*4,4)}, {v(R.VADDR)} offset:{i*1024}")
    A("s_waitcnt lgkmcnt(15)")
    for q in range(2):
        W0, W1 = 102 + q * 4, 104 + q * 4
        A(f"v_max_f32 {v(R.MXA)}, {v(R.M+q)}, v{96+q}")
        A(f"v_sub_f32 {v(W0)}, {v(R.M+q)}, {v(R.MXA)}\nv_sub_f32 {v(W1)}, v{96+q}, {v(R.MXA)}")
        A(f"v_exp_f32 {v(W0)}, {v(W0)}\nv_exp_f32 {v(W1)}, {v(W1)}\ns_nop 0")
        A(f"v_mul_f32 v{100+q}, v{100+q}, {v(W0)}\nv_fma_f32 v{100+q}, v{98+q}, {v(W1)}, v{100+q}")
        A(f"v_rcp_f32 v{100+q}, v{100+q}\ns_nop 0")
        A(f"v_mul_f32 {v(W0)}, {v(W0)}, v{100+q}\nv_mul_f32 {v(W1)}, {v(W1)}, v{100+q}")
    for f in range(8):
        q = f >> 2
        W0, W1 = 102 + q * 4, 104 + q * 4
        b = Oreg(0) + f * 8
        pk_scalar("v_pk_mul_f32", A, b, 8, W0)
        A(f"s_waitcnt lgkmcnt({14 - 2*f})")
        for i in range(0, 8, 2):
            A(f"v_pk_fma_f32 {v(b+i,2)}, {v(f*8+i,2)}, {v(W1,2)}, {v(b+i,2)} op_sel_hi:[1,0,1]")
        store_frag(A, f, b, 64 + f * 4)

def weave(mf, fill, budget=8):
    out = []
    fl = []
    for t in fill: fl += t.split("\n")
    i = 0
    for g in range(len(mf)):
        out.append(mf[g])
        used = 0; first = True
        while i < len(fl):
            t = fl[i]
            c = 8 if t.startswith("buffer") else (0 if (first and t.startswith("s_")) else 4)
            if t.startswith("buffer") and out[-1].startswith("s_add_u32 m0"): break
            if g < len(mf) - 1 and used + c > budget: break
            out.append(t); used += c; i += 1; first = False
    assert i == len(fl)
    return out

def weave2(mf, reads, vmem, valu=(), first=1, last=None):
    n = len(mf)
    last = n - 2 if last is None else last
    gaps = [[] for _ in range(n)]
    busy = [0] * n
    vm = []
    for t in vmem: vm += t.split("\n")
    nb = sum(1 for t in vm if t.startswith("buffer"))
    k = 0; pend = []; prevg = -1
    for t in vm:
        if t.startswith("buffer"):
            g = first + (k * (last - first + 1)) // max(nb, 1)
            g = max(g, prevg + 1 + (1 if pend else 0))
            g = min(g, n - 1)
            lo = prevg + 1
            for j, p in enumerate(pend):
                gg = max(lo, g - len(pend) + j)
                if gg >= g: gg = max(lo, g - 1)
                if gg >= g:
                    gaps[g].append(p);
                    if j == len(pend) - 1: gaps[g].append("s_nop 0")
                else: gaps[gg].append(p)
            pend = []
            gaps[g].append(t); busy[g] += 8; prevg = g; k += 1
        elif t == "s_nop 0": continue
        else: pend.append(t)
    for p in pend: gaps[min(prevg + 1, n - 1)].append(p)
    for g in range(n): busy[g] += 4 * max(0, sum(1 for t in gaps[g] if t.startswith("s_")) - 1)
    g = 0
    for t in reads:
        c = 8 if "b128" in t else 4
        while g < n - 1 and busy[g] + c > 8: g += 1
        gaps[g].append(t); busy[g] += c
    g = min(g + 1, n - 1)
    for t in valu:
        while g < n - 1 and busy[g] + 4 > 8: g += 1
        gaps[g].append(t); busy[g] += 4
    out = []
    for g in range(n):
        out.append(mf[g]); out += gaps[g]
    return out

def attention(A, cfg, fcfg, late=()):
    s = SG
    THRESH = cfg.get("thresh", 0x42800000)
    A(f"s_add_u32 s{s.T0}, s{s.DST}, 0x10000\ns_xor_b32 s{s.T1}, s{s.T0}, 0x2000")
    A(f"v_add_u32 {v(R.T2)}, s{s.T1}, {v(R.LANE16)}\nv_mov_b32 {v(R.NINF)}, 0xff800000")
    L = R.LANE; T = R.T2 + 1
    A(f"v_and_b32 {v(T)}, 15, {v(L)}\nv_lshrrev_b32 {v(T+1)}, 4, {v(L)}\nv_lshlrev_b32 {v(T+1)}, 2, {v(T+1)}\nv_sub_u32 {v(T)}, {v(T)}, {v(T+1)}")
    for r in range(4):
        A(f"v_cmp_gt_i32 s[{s.MASK+2*r}:{s.MASK+2*r+1}], {r}, {v(T)}")
    for i in range(32): A(f"v_mov_b32 {v(R.NEGM+i)}, 0")
    A(f"v_mov_b32 {v(R.TMP)}, 0x3f803f80")
    for i in range(4): A(f"v_accvgpr_write_b32 {a(R.ONES+i)}, {v(R.TMP)}")
    A(f"s_cmp_eq_u32 s{s.I}, 0\ns_cbranch_scc0 K2_nm0")
    A(f"s_sub_u32 s{s.T0}, 0, s{s.W}")
    apply_mask(A, 1, s.T0)
    A.label("K2_nm0")
    A("s_waitcnt lgkmcnt(0)\ns_barrier")
    for f in range(8): A(f"ds_read_b128 {a(R.QN + f*4, 4)}, {v(R.T2)} offset:{f*1024}")
    A(f"v_add_u32 {v(R.KADDR)}, {3*32768 + 8192}, {v(R.LANE16)}")
    A(f"s_mov_b32 s{s.SL0}, 0\ns_mov_b32 s{s.SL1}, {4*32768}\ns_mov_b32 s{s.SL2}, {3*32768}")
    A(f"s_mov_b32 s{s.NI}, 0x7fc00000\ns_mov_b32 s{s.TE}, s{s.T}")
    va = [f"v_add_u32 {v(R.KADDR)}, s{s.SL1}, {v(R.LANE16)}", f"v_mov_b32 {v(R.VADDR)}, {v(R.LANE16)}"]
    for ln in period(cfg, 1, 0, [], [], va, do_pv=False): A(ln)
    A("s_waitcnt vmcnt(0) lgkmcnt(0)\ns_barrier")
    A(f"v_accvgpr_read_b32 {v(R.TMP)}, a255\nv_mov_b32 {v(R.TMP+1)}, 1\ns_nop 0\nbuffer_store_dword {v(R.TMP+1)}, {v(R.TMP)}, s[{s.WS}:{s.WS+3}], 0 offen sc1")
    for t in dma_half(cfg, 0, slot_imm=2 * 32768) + dma_half(cfg, 1): A(t)
    for t in late: A(t)
    init_path(A, 0, 0)
    init_path(A, 0, 1)
    stamp(A, cfg, 2); stamp(A, fcfg, 6)
    A(f"s_cmp_le_u32 s{s.REM}, 5\ns_cbranch_scc1 K2_h1b")
    def rare(tag, nxt, lim, cont):
        A.label(f"K2_rare{tag}")
        A(f"v_cmp_lt_f32 vcc, s{s.T}, {v(R.MXA)}\ns_nop 4\ns_cbranch_vccz K2_rs{tag}")
        slow_path(A, nxt)
        A.label(f"K2_rs{tag}")
        A(f"s_cmp_le_u32 s{s.REM}, {lim}\ns_cbranch_scc0 {cont}")
    def mask_a(off):
        A(f"s_and_b32 s{s.T2}, s{s.W}, 1\ns_add_u32 s{s.T2}, s{s.T2}, {off}\ns_sub_u32 s{s.T0}, s{s.T2}, s{s.W}")
        apply_mask(A, 0, s.T0)
        A(f"s_xor_b32 s{s.T0}, s{s.W}, 1\ns_sub_u32 s{s.T0}, s{s.T2}, s{s.T0}")
        apply_mask(A, 1, s.T0)
    A.raw(".p2align 6")
    A.label("K2_loop1")
    chk = []
    sa = [f"s_add_u32 s{s.T0}, s{s.SL1}, 0x2000", f"s_add_u32 s{s.T1}, s{s.SL0}, s{s.KP}", f"s_cmp_eq_u32 s{s.REM}, 2",
          f"s_cselect_b32 s{s.T0}, s{s.T1}, s{s.T0}"] + rem_ops(5)
    va = [f"v_add_u32 {v(R.KADDR)}, s{s.T0}, {v(R.LANE16)}"]
    p = ["s_waitcnt vmcnt(16) lgkmcnt(0)", "s_barrier"] + period(cfg, 0, 16384, dma_half(cfg, 0, slot_sg=s.SL2), sa, va)
    chk += p
    for ln in p: A(ln)
    A("s_cbranch_vccnz K2_rare10")
    A.label("K2_c1a")
    va = [f"v_add_u32 {v(R.KADDR)}, s{s.SL1}, {v(R.LANE16)}", f"v_add_u32 {v(R.VADDR)}, s{s.SL0}, {v(R.LANE16)}"]
    p = ["s_waitcnt lgkmcnt(0)"] + period(cfg, 1, 16384 + 8192, dma_half(cfg, 1), rot_slots() + rem_ops(5), va)
    chk += p
    for ln in p: A(ln)
    A("s_cbranch_vccz K2_loop1")
    check_hazards(chk + chk)
    rare("11", 0, 5, "K2_loop1")
    A.label("K2_h1b")
    A(f"s_cmp_eq_u32 s{s.REM}, 0\ns_cbranch_scc1 K2_trans")
    A(f"s_sub_u32 s{s.T0}, 5, s{s.REM}\ns_sub_u32 s{s.T0}, s{s.T0}, s{s.W}")
    apply_mask(A, 1, s.T0)
    A(f"s_cmp_eq_u32 s{s.REM}, 2\ns_cbranch_scc0 K2_loop1")
    A(f"v_add_u32 {v(R.KADDR)}, s{s.KP}, {v(R.KADDR)}")
    A("s_branch K2_loop1")
    rare("10", 1, 5, "K2_c1a")
    A(f"s_cmp_eq_u32 s{s.REM}, 1\ns_cbranch_scc1 K2_swap")
    A(f"s_sub_u32 s{s.T0}, 5, s{s.REM}\ns_sub_u32 s{s.T0}, s{s.T0}, s{s.W}")
    apply_mask(A, 1, s.T0)
    A("s_branch K2_c1a")
    A.label("K2_swap")
    for i in range(32): A(f"v_accvgpr_mov_b32 {a(Qreg(2)+i)}, {a(R.QN+i)}")
    for i in range(16): A(f"v_mov_b32 {v(R.NEGM+16+i)}, 0")
    A(f"s_mov_b32 s{s.T}, 0x7f800000")
    A(f"s_cmp_eq_u32 s{s.I}, 7\ns_cbranch_scc0 K2_c1a")
    mask_a(0)
    A("s_branch K2_c1a")
    A.label("K2_trans")
    stamp(A, cfg, 3)
    epilogue_b(A)
    init_path(A, 0, 1)
    A(f"s_mov_b32 s{s.T}, {hex(THRESH)}")
    A(f"v_cmp_lt_f32 vcc, s{s.T}, {v(MXr(0))}")
    A(f"s_add_u32 s{s.T0}, s{s.SL0}, s{s.KP}\nv_add_u32 {v(R.KADDR)}, s{s.T0}, {v(R.LANE16)}\nv_mov_b32 {v(R.VADDR)}, {v(R.KADDR)}")
    A(f"s_lshl_b32 s{s.REM}, s{s.I}, 2\ns_sub_u32 s{s.REM}, 30, s{s.REM}")
    A("s_cbranch_vccz K2_t1")
    slow_path(A, 0, slots=(0,))
    A.label("K2_t1")
    stamp(A, cfg, 4)
    A(f"s_cmp_eq_u32 s{s.REM}, 2\ns_cbranch_scc1 K2_h2b")
    A.raw(".p2align 6")
    A.label("K2_loop2")
    chk = []
    sa = rot_slots() + [f"s_add_u32 s{s.T0}, s{s.SL0}, s{s.KP}"] + rem_ops(3)
    va = [f"v_add_u32 {v(R.KADDR)}, s{s.T0}, {v(R.LANE16)}", f"v_add_u32 {v(R.VADDR)}, s{s.T0}, {v(R.LANE16)}"]
    for cur in range(2):
        p = ["s_waitcnt vmcnt(16) lgkmcnt(0)", "s_barrier"] + period(cfg, cur, 16384, dma_half(cfg, 0, slot_sg=s.SL2) + dma_half(cfg, 1), sa, va)
        chk += p
        for ln in p: A(ln)
        if cur == 0:
            A("s_cbranch_vccnz K2_rare20")
            A.label("K2_c2a")
        else:
            A("s_cbranch_vccz K2_loop2")
    check_hazards(chk + chk)
    rare("21", 0, 3, "K2_loop2")
    A.label("K2_h2b")
    mask_a(2)
    A(f"s_lshr_b32 s{s.T0}, s{s.H}, 2\ns_lshl_b32 s{s.T0}, s{s.T0}, 7\ns_add_u32 s{s.T0}, s{s.T0}, {hex((60 << 20) + 12288)}\nv_and_b32 {v(R.TMP)}, 31, {v(R.LANE)}\nv_lshlrev_b32 {v(R.TMP)}, 2, {v(R.TMP)}")
    A(f"buffer_load_dword a253, {v(R.TMP)}, s[{s.WS}:{s.WS+3}], s{s.T0} offen sc1")
    A("s_branch K2_loop2")
    rare("20", 1, 3, "K2_c2a")
    A(f"s_cmp_eq_u32 s{s.REM}, 1\ns_cbranch_scc1 K2_tail")
    mask_a(0)
    A("s_branch K2_c2a")
    A.label("K2_tail")
    stamp(A, cfg, 5)
    A(f"s_lshr_b32 s{s.T0}, s{s.H}, 2\ns_lshl_b32 s{s.T0}, s{s.T0}, 7\ns_add_u32 s{s.T0}, s{s.T0}, {hex((60 << 20) + 12288)}\nv_and_b32 v0, 31, {v(R.LANE)}\nv_lshlrev_b32 v0, 2, v0\ns_mov_b32 s{s.T1}, 0")
    A("s_waitcnt vmcnt(8)\nv_accvgpr_read_b32 v1, a253")
    A.label("B2_poll")
    A(f"v_cmp_ne_u32 vcc, 1, v1\ns_add_u32 s{s.T1}, s{s.T1}, 1\ns_nop 3\ns_cbranch_vccz B2_go\ns_sleep 2")
    A(f"buffer_load_dword v1, v0, s[{s.WS}:{s.WS+3}], s{s.T0} offen sc1\ns_waitcnt vmcnt(0)\ns_cmp_lt_u32 s{s.T1}, 0x40000\ns_cbranch_scc1 B2_poll")
    A.label("B2_go")
```

```python
from gen_common import *

LOG2E = 0x3fb8aa3b

def crosshalf(A, reg, tmp, op):
    A(f"v_mov_b32 {v(tmp)}, {v(reg)}\ns_nop 1\nv_permlane32_swap_b32 {v(reg)}, {v(tmp)}\n{op} {v(reg)}, {v(reg)}, {v(tmp)}")

def softmax8(A, b, dst, t0, sL):
    m, t = t0, t0 + 1
    A(f"v_max3_f32 {v(m)}, {v(b)}, {v(b+1)}, {v(b+2)}\nv_max3_f32 {v(m)}, {v(m)}, {v(b+3)}, {v(b+4)}")
    A(f"v_max3_f32 {v(m)}, {v(m)}, {v(b+5)}, {v(b+6)}\nv_max_f32 {v(m)}, {v(m)}, {v(b+7)}")
    crosshalf(A, m, t, "v_max_f32")
    A(f"v_mul_f32 {v(m)}, s{sL}, {v(m)}")
    for i in range(8): A(f"v_fma_f32 {v(b+i)}, {v(b+i)}, s{sL}, -{v(m)}")
    for i in range(8): A(f"v_exp_f32 {v(b+i)}, {v(b+i)}")
    A(f"v_add_f32 {v(m)}, {v(b)}, {v(b+1)}\nv_add_f32 {v(t)}, {v(b+2)}, {v(b+3)}")
    A(f"v_add_f32 {v(m)}, {v(m)}, {v(b+4)}\nv_add_f32 {v(t)}, {v(t)}, {v(b+5)}")
    A(f"v_add_f32 {v(m)}, {v(m)}, {v(b+6)}\nv_add_f32 {v(t)}, {v(t)}, {v(b+7)}\nv_add_f32 {v(m)}, {v(m)}, {v(t)}")
    crosshalf(A, m, t, "v_add_f32")
    A(f"v_rcp_f32 {v(m)}, {v(m)}\ns_nop 0")
    for i in range(0, 8, 2): A(f"v_pk_mul_f32 {v(b+i,2)}, {v(b+i,2)}, {v(m,2)} op_sel_hi:[1,0]")
    for p in range(4): A(f"v_cvt_pk_bf16_f32 {v(dst+p)}, {v(b+2*p)}, {v(b+2*p+1)}")

class BR:
    BWV = 160
    XA = 162
    WA = 166
    XC = 168; WC = 172
    PHV = 173
    WP = 176
    T = 184
    WR = 208
    FR = 0
    ACC = 32
    D = 80
    PK = 96
    QF = 112; KF = 120; VF = 128

def slot(st): return ((st + 1) % 5) * 32768

def b_setup(A, R, s):
    L = R.LANE; T = BR.T
    A(f"s_mov_b32 s{s.RBB}, s{s.H}\ns_lshr_b32 s{s.HP}, s2, 5")
    A(f"s_lshl_b32 s{s.BXO}, s{s.RBB}, 16\ns_lshl_b32 s{s.T0}, s{s.W}, 14\ns_add_u32 s{s.BXO}, s{s.BXO}, s{s.T0}")
    A(f"s_mul_i32 s{s.BWO}, s{s.W}, {16*3072}\ns_lshl_b32 s{s.T0}, s{s.HP}, 7\ns_add_u32 s{s.BWO}, s{s.BWO}, s{s.T0}")
    A(f"v_bfe_u32 {v(T)}, {v(L)}, 4, 1\nv_lshlrev_b32 {v(T)}, 2, {v(T)}\nv_and_b32 {v(T+1)}, 7, {v(L)}\nv_xor_b32 {v(T)}, {v(T)}, {v(T+1)}\nv_lshlrev_b32 {v(T)}, 4, {v(T)}")
    A(f"v_lshrrev_b32 {v(T+1)}, 3, {v(L)}\nv_mul_u32_u24 {v(T+1)}, 3072, {v(T+1)}\nv_add_u32 {v(BR.BWV)}, {v(T)}, {v(T+1)}\nv_add_u32 {v(BR.BWV+1)}, {8*3072-1024}, {v(BR.BWV)}")
    A(f"s_lshr_b32 s{s.T0}, s{s.W}, 1\ns_lshl_b32 s{s.T0}, s{s.T0}, 12")
    A(f"v_and_b32 {v(T)}, 31, {v(L)}\nv_bfe_u32 {v(T+1)}, {v(L)}, 1, 3\nv_lshrrev_b32 {v(T+2)}, 5, {v(L)}\nv_xor_b32 {v(T+1)}, {v(T+1)}, {v(T+2)}")
    A(f"v_lshlrev_b32 {v(T+1)}, 4, {v(T+1)}\nv_lshlrev_b32 {v(T)}, 7, {v(T)}\nv_add3_u32 {v(BR.XA)}, {v(T)}, {v(T+1)}, s{s.T0}")
    for t4 in range(1, 4): A(f"v_xor_b32 {v(BR.XA+t4)}, {t4<<5}, {v(BR.XA)}")
    A(f"s_and_b32 s{s.T0}, s{s.W}, 1")
    A(f"v_bfe_u32 {v(T)}, {v(L)}, 2, 2\nv_lshrrev_b32 {v(T+1)}, 5, {v(L)}\nv_lshl_add_u32 {v(T)}, {v(T+1)}, 3, {v(T)}\nv_lshlrev_b32 {v(T)}, 7, {v(T)}")
    A(f"v_bfe_u32 {v(T+1)}, {v(L)}, 3, 1\nv_xor_b32 {v(T+1)}, s{s.T0}, {v(T+1)}\nv_lshl_add_u32 {v(T)}, {v(T+1)}, 6, {v(T)}")
    A(f"v_bfe_u32 {v(T+1)}, {v(L)}, 4, 1\nv_lshl_add_u32 {v(T)}, {v(T+1)}, 5, {v(T)}")
    A(f"v_and_b32 {v(T+1)}, 3, {v(L)}\nv_lshl_add_u32 {v(T)}, {v(T+1)}, 3, {v(T)}\nv_add_u32 {v(BR.WA)}, 0x2000, {v(T)}")
    A(f"v_and_b32 {v(T)}, 15, {v(L)}\nv_lshlrev_b32 {v(T)}, 1, {v(T)}\nv_lshrrev_b32 {v(T+1)}, 5, {v(L)}\nv_lshl_add_u32 {v(BR.PHV)}, {v(T+1)}, 7, {v(T)}")

def b_dma_stage(R, s, st):
    L = []
    L.append(f"s_lshr_b32 s{s.T1}, s{s.DST}, 2")
    L.append(f"s_add_u32 m0, s{s.T1}, {slot(st)}")
    L.append(f"s_add_u32 s{s.SOFF}, s{s.BXO}, {st*128}")
    for j in range(2):
        L.append(f"buffer_load_dwordx4 {v(R.XV+j)}, s[{s.BX}:{s.BX+3}], s{s.SOFF} offen offset:{j*1024} lds")
    for seg in range(3):
        L.append(f"s_add_u32 m0, s{s.T1}, {slot(st) + 8192 + seg*8192}")
        L.append(f"s_add_u32 s{s.SOFF}, s{s.BWO}, {st*64*3072 + seg*1024}")
        for j in range(2):
            L.append(f"buffer_load_dwordx4 {v(BR.BWV+j)}, s[{s.BW}:{s.BW+3}], s{s.SOFF} offen offset:{j*1024} lds")
    return L

def b_wphi_loads(R, s):
    L = [f"s_lshl_b32 s{s.T1}, s{s.HP}, 11", f"s_and_b32 s{s.T2}, s{s.W}, 1", f"s_lshl_b32 s{s.T2}, s{s.T2}, 10", f"s_add_u32 s{s.T1}, s{s.T1}, s{s.T2}"]
    for hh in range(2):
        for e, d in enumerate((0, 1, 2, 3, 8, 9, 10, 11)):
            L.append(f"buffer_load_ushort {v(BR.WR + hh*8 + e)}, {v(BR.PHV)}, s[{s.BP}:{s.BP+3}], s{s.T1} offen offset:{hh*512 + d*32}")
    return L

def b_part1(A, cfg, R, s):
    B = BR
    L = R.LANE
    def addr_stage(st):
        return [f"v_add_u32 {v(B.XC+i)}, {slot(st)}, {v(B.XA+i)}" for i in range(4)] + [f"v_add_u32 {v(B.WC)}, {slot(st)}, {v(B.WA)}"]
    def frag_reads(k):
        t4 = k & 3; fs = B.FR + (k & 1) * 16
        Ls = [f"ds_read_b128 {v(fs + 12, 4)}, {v(B.XC+t4)}"]
        for seg in range(3):
            for rd in range(2):
                Ls.append(f"ds_read_b64_tr_b16 {v(fs + seg*4 + rd*2, 2)}, {v(B.WC)} offset:{seg*8192 + (16*t4 + 4*rd)*128}")
        return Ls
    for ln in addr_stage(0): A(ln)
    A("s_waitcnt vmcnt(32)\ns_barrier")
    for ln in frag_reads(0): A(ln)
    for k in range(32):
        st, t4 = k >> 2, k & 3
        fs = B.FR + (k & 1) * 16
        fill = []
        if t4 == 3:
            need_bar = st <= 2 or 4 <= st <= 6 or st == 7
            if 4 <= st <= 6: A(f"s_waitcnt vmcnt({(6 - st) * 8}) lgkmcnt(0)")
            else: A("s_waitcnt lgkmcnt(0)")
            if need_bar: A("s_barrier")
            if st < 7: fill += addr_stage(st + 1)
        else:
            A("s_waitcnt lgkmcnt(0)")
        if k < 31: fill += frag_reads(k + 1)
        if t4 == 3 and st <= 2: fill += b_dma_stage(R, s, st + 5)
        mf = []
        for seg in range(3):
            acc = B.ACC + seg * 16
            c = "0" if k == 0 else v(acc, 16)
            if seg < 2: mf.append(f"{MF32} {v(acc,16)}, {v(fs + seg*4, 4)}, {v(fs + 12, 4)}, {c}")
            else: mf.append(f"{MF32} {v(acc,16)}, {v(fs + 12, 4)}, {v(fs + seg*4, 4)}, {c}")
        n = len(fill)
        cut = [min(n, 7), min(n, 12)]
        A(mf[0]); [A(x) for x in fill[:cut[0]]]
        A(mf[1]); [A(x) for x in fill[cut[0]:cut[1]]]
        A(mf[2]); [A(x) for x in fill[cut[1]:]]
    stamp(A, cfg, 3)
    T = B.T
    sL = s.T2
    A(f"v_bfe_u32 {v(T)}, {v(L)}, 4, 1\nv_mul_u32_u24 {v(T)}, 0x8000, {v(T)}\nv_lshl_or_b32 {v(T)}, {v(T)}, 16, {v(T)}")
    for i in range(8): A(f"v_lshl_or_b32 {v(B.WP+i)}, {v(B.WR+2*i+1)}, 16, {v(B.WR+2*i)}")
    for i in range(8): A(f"v_xor_b32 {v(B.WP+i)}, {v(T)}, {v(B.WP+i)}")
    A(f"s_mov_b32 s{sL}, {hex(LOG2E)}")
    A(f"s_and_b32 s{s.T0}, s{s.W}, 1\ns_lshl_b32 s{s.T0}, s{s.T0}, 13\ns_lshr_b32 s{s.T1}, s{s.W}, 1\ns_lshl_b32 s{s.T1}, s{s.T1}, 11\ns_add_u32 s{s.T0}, s{s.T0}, s{s.T1}")
    A(f"v_and_b32 {v(T+2)}, 31, {v(L)}\nv_lshlrev_b32 {v(T+2)}, 6, {v(T+2)}\nv_lshrrev_b32 {v(T+3)}, 5, {v(L)}\nv_lshl_add_u32 {v(T+2)}, {v(T+3)}, 3, {v(T+2)}\nv_add_u32 {v(T+2)}, s{s.T0}, {v(T+2)}")
    A(f"s_lshr_b32 s{s.T0}, s{s.DST}, 2\nv_add_u32 {v(T+3)}, s{s.T0}, {v(R.LANE16)}")
    for p in range(8):
        A(f"v_cvt_pk_bf16_f32 {v(B.QF+p)}, {v(B.ACC+2*p)}, {v(B.ACC+2*p+1)}")
        A(f"v_cvt_pk_bf16_f32 {v(B.KF+p)}, {v(B.ACC+16+2*p)}, {v(B.ACC+16+2*p+1)}")
    for p in range(8):
        A(f"v_cvt_pk_bf16_f32 {v(B.VF+p)}, {v(B.ACC+32+2*p)}, {v(B.ACC+32+2*p+1)}")
    for t in range(2): A(f"ds_write_b128 {v(T+3)}, {v(B.VF+t*4,4)} offset:{16384 + t*1024}")
    for i, (src, hh) in enumerate(((B.KF, 0), (B.KF, 1), (B.QF, 0), (B.QF, 1))):
        A(f"{MF32} {v(32+i*16,16)}, {v(B.WP+hh*4,4)}, {v(src+hh*4,4)}, 0")
    A(f"s_lshl_b32 s{s.T0}, s{s.HP}, 2\ns_and_b32 s{s.T1}, s{s.W}, 1\ns_lshl_b32 s{s.T1}, s{s.T1}, 1\ns_add_u32 s{s.T0}, s{s.T0}, s{s.T1}\ns_lshl_b32 s{s.T0}, s{s.T0}, 17")
    A(f"s_lshl_b32 s{s.T1}, s{s.RBB}, 12\ns_add_u32 s{s.T0}, s{s.T0}, s{s.T1}\ns_lshr_b32 s{s.T1}, s{s.W}, 1\ns_lshl_b32 s{s.T1}, s{s.T1}, 11\ns_add_u32 s{s.T0}, s{s.T0}, s{s.T1}")
    A(f"s_add_u32 s{s.T0}, s{s.T0}, {hex(WS_PHIQ)}\ns_add_u32 s{s.T1}, s{s.T0}, 0x20000")
    for hh in range(2):
        for grp in range(2):
            softmax8(A, 32 + hh * 16 + grp * 8, B.PK + grp * 4, T, sL)
        for q in range(4):
            A(f"ds_write_b64 {v(T+2)}, {v(B.PK+q*2,2)} offset:{hh*4096 + q*16}")
    A("s_waitcnt lgkmcnt(0)\ns_barrier")
    A(f"s_lshr_b32 s{s.SOFF}, s{s.DST}, 1")
    A(f"v_bfe_u32 {v(T+4)}, {v(L)}, 2, 2\nv_lshrrev_b32 {v(T+5)}, 5, {v(L)}\nv_lshl_add_u32 {v(T+4)}, {v(T+5)}, 2, {v(T+4)}\nv_lshlrev_b32 {v(T+4)}, 6, {v(T+4)}")
    A(f"v_bfe_u32 {v(T+5)}, {v(L)}, 4, 1\nv_lshl_add_u32 {v(T+4)}, {v(T+5)}, 5, {v(T+4)}\nv_and_b32 {v(T+5)}, 3, {v(L)}\nv_lshl_add_u32 {v(T+4)}, {v(T+5)}, 3, {v(T+4)}\nv_add_u32 {v(T+4)}, s{s.SOFF}, {v(T+4)}")
    A(f"s_lshr_b32 s{s.SOFF}, s{s.W}, 1\ns_lshl_b32 s{s.SOFF}, s{s.SOFF}, 11\ns_and_b32 s{s.CO}, s{s.W}, 1\ns_lshl_b32 s{s.CO}, s{s.CO}, 8\ns_add_u32 s{s.SOFF}, s{s.SOFF}, s{s.CO}")
    A(f"v_and_b32 {v(T+5)}, 0x2ff, {v(R.LANE16)}\nv_add_u32 {v(T+5)}, s{s.SOFF}, {v(T+5)}")
    for u in range(4):
        for rd in range(2):
            A(f"ds_read_b64_tr_b16 {v(u*4 + rd*2, 2)}, {v(T+4)} offset:{(16*u + 8*rd)*64}")
        A(f"ds_read_b128 {v(16 + u*4, 4)}, {v(T+5)} offset:{16384 + (u>>1)*4096 + (u&1)*1024}")
    A(f"v_and_b32 {v(T+6)}, 16, {v(L)}\nv_cmp_ne_u32 vcc, 0, {v(T+6)}\nv_mov_b32 {v(T+6)}, 0x3f803f80")
    for hh in range(2):
        for grp in range(2):
            softmax8(A, 64 + hh * 16 + grp * 8, B.PK + hh * 8 + grp * 4, T, sL)
            A(f"buffer_store_dwordx4 {v(B.PK + hh*8 + grp*4, 4)}, {v(R.LANE16)}, s[{s.WS}:{s.WS+3}], s{s.T0 if hh == 0 else s.T1} offen offset:{grp*1024}")
    A("s_waitcnt lgkmcnt(0)")
    for i in range(16): A(f"v_cndmask_b32 {v(16+i)}, {v(16+i)}, {v(T+6)}, vcc")
    A("s_nop 1")
    for u in range(4):
        A(f"{MF32} {v(32,16)}, {v(u*4,4)}, {v(16+u*4,4)}, " + ("0" if u == 0 else v(32, 16)))
    A(f"s_lshl_b32 s{s.T0}, s{s.HP}, 2\ns_add_u32 s{s.T0}, s{s.T0}, s{s.W}\ns_lshl_b32 s{s.T0}, s{s.T0}, 5\ns_add_u32 s{s.T0}, s{s.T0}, s{s.RBB}\ns_lshl_b32 s{s.T0}, s{s.T0}, 12\ns_add_u32 s{s.T0}, s{s.T0}, {hex(WS_KVP)}")
    A("s_nop 7")
    for q in range(4):
        A(f"buffer_store_dwordx4 {v(32+q*4,4)}, {v(R.LANE16)}, s[{s.WS}:{s.WS+3}], s{s.T0} offen offset:{q*1024}")
    stamp(A, cfg, 4)

def b_part2(A, cfg, R, s):
    L = R.LANE
    T = 200
    A(f"s_lshr_b32 s{s.T0}, s{s.H}, 2\ns_lshl_b32 s{s.T0}, s{s.T0}, 7\ns_add_u32 s{s.T0}, s{s.T0}, {hex((60 << 20) + 12288)}\nv_and_b32 {v(T)}, 31, {v(L)}\nv_lshlrev_b32 {v(T)}, 2, {v(T)}\ns_mov_b32 s{s.T1}, 0")
    A.label("B2_poll")
    A(f"buffer_load_dword {v(T+1)}, {v(T)}, s[{s.WS}:{s.WS+3}], s{s.T0} offen sc1\ns_waitcnt vmcnt(0)")
    A(f"v_cmp_ne_u32 vcc, 1, {v(T+1)}\ns_add_u32 s{s.T1}, s{s.T1}, 1\ns_nop 3\ns_cbranch_vccz B2_go\ns_sleep 2\ns_cmp_lt_u32 s{s.T1}, 0x40000\ns_cbranch_scc1 B2_poll")
    A.label("B2_go")
    A(f"s_lshl_b32 s{s.T0}, s{s.H}, 17\ns_lshl_b32 s{s.T1}, s{s.W}, 15\ns_add_u32 s{s.T0}, s{s.T0}, s{s.T1}\ns_add_u32 s{s.T0}, s{s.T0}, {hex(WS_KVP)}")
    for p in range(8):
        for q in range(4):
            A(f"buffer_load_dwordx4 {v(p*16 + q*4, 4)}, {v(R.LANE16)}, s[{s.WS}:{s.WS+3}], s{s.T0} offen offset:{q*1024} sc1")
        A(f"s_add_u32 s{s.T0}, s{s.T0}, 0x1000")
    A(f"s_lshl_b32 s{s.T0}, s{s.H}, 17\ns_lshl_b32 s{s.T1}, s{s.I}, 14\ns_add_u32 s{s.T0}, s{s.T0}, s{s.T1}\ns_lshl_b32 s{s.T1}, s{s.W}, 12\ns_add_u32 s{s.T0}, s{s.T0}, s{s.T1}\ns_add_u32 s{s.T0}, s{s.T0}, {hex(WS_PHIQ)}")
    for q in range(4):
        A(f"buffer_load_dwordx4 {v(128 + q*4, 4)}, {v(R.LANE16)}, s[{s.WS}:{s.WS+3}], s{s.T0} offen offset:{q*1024} sc1")
    A(f"s_lshl_b32 s{s.T1}, s{s.W}, 12\ns_add_u32 s{s.T1}, s{s.T1}, 0x18000\nv_add_u32 {v(T)}, s{s.T1}, {v(R.LANE16)}\nv_add_u32 {v(T+1)}, 0x18000, {v(R.LANE16)}")
    A(f"v_bfe_u32 {v(T+2)}, {v(L)}, 4, 1\nv_lshlrev_b32 {v(T+2)}, 14, {v(T+2)}\nv_and_b32 {v(T+3)}, 15, {v(L)}\nv_lshl_add_u32 {v(T+2)}, {v(T+3)}, 4, {v(T+2)}")
    A(f"v_lshrrev_b32 {v(T+3)}, 5, {v(L)}\nv_lshl_add_u32 {v(T+2)}, {v(T+3)}, 8, {v(T+2)}")
    A(f"s_lshl_b32 s{s.T0}, s{s.I}, 18\ns_lshl_b32 s{s.T1}, s{s.W}, 16\ns_add_u32 s{s.T0}, s{s.T0}, s{s.T1}\ns_lshl_b32 s{s.T1}, s{s.H}, 9\ns_add_u32 s{s.T0}, s{s.T0}, s{s.T1}\ns_add_u32 s{s.T0}, s{s.T0}, {hex(WS_OF)}")
    A(f"s_add_u32 s{s.T1}, s{s.T0}, 0x8000")
    for p in range(1, 8):
        A(f"s_waitcnt vmcnt({4 + (7-p)*4})")
        for i in range(0, 16, 2): A(f"v_pk_add_f32 {v(i,2)}, {v(i,2)}, {v(p*16+i,2)}")
    for q in range(4): A(f"ds_write_b128 {v(T)}, {v(q*4,4)} offset:{q*1024}")
    A("s_waitcnt lgkmcnt(0)\ns_barrier")
    for i in range(16): A(f"ds_read_b128 {v(i*4,4)}, {v(T+1)} offset:{i*1024}")
    A("s_waitcnt lgkmcnt(0) vmcnt(0)")
    for i in range(0, 16, 2):
        A(f"v_pk_add_f32 {v(i,2)}, {v(i,2)}, {v(16+i,2)}\nv_pk_add_f32 {v(32+i,2)}, {v(32+i,2)}, {v(48+i,2)}")
    for i in range(0, 16, 2): A(f"v_pk_add_f32 {v(i,2)}, {v(i,2)}, {v(32+i,2)}")
    for p in range(8): A(f"v_cvt_pk_bf16_f32 {v(16+p)}, {v(2*p)}, {v(2*p+1)}")
    A("s_nop 1")
    for t in range(2):
        A(f"{MF32} {v(32+t*16,16)}, {v(16,4)}, {v(128+t*8,4)}, 0")
    for t in range(2):
        A(f"{MF32} {v(32+t*16,16)}, {v(20,4)}, {v(128+t*8+4,4)}, {v(32+t*16,16)}")
    A("s_nop 15")
    for t in range(2):
        b = 32 + t * 16
        A(f"v_add_f32 {v(b+8)}, 0x358637bd, {v(b+8)}\nv_rcp_f32 {v(b+8)}, {v(b+8)}\ns_nop 0")
        for i in range(0, 8, 2): A(f"v_pk_mul_f32 {v(b+i,2)}, {v(b+i,2)}, {v(b+8,2)} op_sel_hi:[1,0]")
        for p in range(4): A(f"v_cvt_pk_bf16_f32 {v(b+12+p)}, {v(b+2*p)}, {v(b+2*p+1)}")
        A(f"buffer_store_dwordx4 {v(b+12,4)}, {v(T+2)}, s[{s.WS}:{s.WS+3}], s{s.T0 if t == 0 else s.T1} offen")
```

```python
from gen_common import *
import gen_att as att
from gen_att import weave2, pk_scalar, Oreg, ctx_addr

WS_PART = 64 << 20
WS_FLAG = 60 << 20
F_B = 12288; F_OF = 13312; F_CTX = 16384
OOB = 0x7ffffff0

class R:
    FR = 0; WV = 208; BV = 212; WA = 216; WB = 220; CA = 222; WC = 224; CC = 228; PA = 229; PV = 230; ONE = 231; T = 232
    FA = 240; FO = 241; PB = 242
    LANE16 = 252; LANE = 253; BACC = 64

class SG(att.SG):
    WO = 8; WB = 12; OUT = 16
    SL = 64; RB = 65; CB = 66; D4 = 31; CO = 67; WOO = 68; OFO = 69; WBO = 70; RT = 71; CT = 72; PO = 73; FO = 74
    PTR = 76

NSLOT = 4
def sl(n): return (n % NSLOT) * 32768
def tagged(lines, tag): return [l + f" ; @{tag}" if l.startswith("buffer") else l for l in lines]

def spin(A, tag, ld, chk, tmp):
    A(chk + f"\ns_mov_b32 s{tmp}, 0\ns_nop 3\ns_cbranch_vccz BK_rdy{tag}")
    A.label(f"BK_poll{tag}")
    A(f"s_sleep 1\n{ld} ; @opt\ns_waitcnt vmcnt(0)")
    A(chk + f"\ns_add_u32 s{tmp}, s{tmp}, 1\ns_nop 3\ns_cbranch_vccz BK_rdy{tag}\ns_cmp_lt_u32 s{tmp}, 0x40000\ns_cbranch_scc1 BK_poll{tag}")
    A.label(f"BK_rdy{tag}")

def back(A, cfg):
    s = SG; AR = att.R
    L = R.LANE; T = R.T
    XB = 77824
    A("s_load_dwordx2 s[40:41], s[0:1], 80")
    A("s_waitcnt vmcnt(16) lgkmcnt(0)\ns_barrier")
    for ln in att.period(cfg, 1, 16384, [], [], [], do_qk=False): A(ln)
    stamp(A, cfg, 1)
    A(f"s_mul_i32 s{s.T0}, s{s.W}, 17408\ns_xor_b32 s{s.T1}, s{s.W}, 1\ns_mul_i32 s{s.T1}, s{s.T1}, 17408\ns_add_u32 s{s.T0}, s{s.T0}, {XB}\ns_add_u32 s{s.T1}, s{s.T1}, {XB}")
    A(f"v_add_u32 {v(AR.KADDR)}, s{s.T0}, {v(R.LANE16)}\nv_add_u32 {v(AR.VADDR)}, s{s.T1}, {v(R.LANE16)}")
    A(f"v_mov_b32 v96, {v(AR.M+2)}\nv_mov_b32 v97, {v(AR.M+3)}")
    A(f"s_lshr_b32 s{s.T0}, s{s.H}, 3\ns_lshl_b32 s{s.T0}, s{s.T0}, 11\ns_and_b32 s{s.T1}, s{s.H}, 7\ns_lshl_b32 s{s.T1}, s{s.T1}, 2\ns_add_u32 s{s.T0}, s{s.T0}, s{s.T1}\ns_add_u32 s{s.T0}, s{s.T0}, {hex(WS_FLAG + F_CTX)}")
    A(f"s_cmp_eq_u32 s{s.W}, 0\ns_cselect_b32 s{s.T0}, s{s.T0}, {hex(OOB - 0x10000)}\nv_mov_b32 v110, {hex(OOB - 0x10000)}\nv_writelane_b32 v110, s{s.T0}, 0\nv_mov_b32 v111, 1")
    A(f"s_lshl_b32 s{s.SL}, s{s.I}, 7\ns_lshl_b32 s{s.RB}, s{s.BA}, 7")
    A(f"v_accvgpr_read_b32 v98, {a(AR.LS+8)}\nv_accvgpr_read_b32 v99, {a(AR.LS+12)}")
    A(f"v_accvgpr_read_b32 v100, {a(AR.LS)}\nv_accvgpr_read_b32 v101, {a(AR.LS+4)}")
    A("s_waitcnt vmcnt(0)\ns_barrier")
    A(f"buffer_store_dword v111, v110, s[{s.WS}:{s.WS+3}], s{s.SL} offen sc1 ; @sig")
    A(f"ds_write_b128 {v(AR.KADDR)}, v[96:99] offset:16384")
    for i in range(16): A(f"ds_write_b128 {v(AR.KADDR)}, {v(Oreg(2)+i*4,4)} offset:{i*1024}")
    ctx_addr(A, s.BA)
    A("s_waitcnt lgkmcnt(0)\ns_barrier")
    A(f"ds_read_b128 v[96:99], {v(AR.VADDR)} offset:16384")
    for i in range(16): A(f"ds_read_b128 {v(i*4,4)}, {v(AR.VADDR)} offset:{i*1024}")
    A("s_waitcnt lgkmcnt(15)")
    for q in range(2):
        W0, W1 = 102 + q * 4, 104 + q * 4
        A(f"v_max_f32 {v(AR.MXA)}, {v(AR.M+q)}, v{96+q}")
        A(f"v_sub_f32 {v(W0)}, {v(AR.M+q)}, {v(AR.MXA)}\nv_sub_f32 {v(W1)}, v{96+q}, {v(AR.MXA)}")
        A(f"v_exp_f32 {v(W0)}, {v(W0)}\nv_exp_f32 {v(W1)}, {v(W1)}\ns_nop 0")
        A(f"v_mul_f32 v{100+q}, v{100+q}, {v(W0)}\nv_fma_f32 v{100+q}, v{98+q}, {v(W1)}, v{100+q}")
        A(f"v_rcp_f32 v{100+q}, v{100+q}\ns_nop 0")
        A(f"v_mul_f32 {v(W0)}, {v(W0)}, v{100+q}\nv_mul_f32 {v(W1)}, {v(W1)}, v{100+q}")
    for f in range(8):
        q = f >> 2
        W0, W1 = 102 + q * 4, 104 + q * 4
        b = Oreg(0) + f * 8
        pk_scalar("v_pk_mul_f32", A, b, 8, W0)
        A(f"s_waitcnt lgkmcnt({14 - 2*f})")
        for i in range(0, 8, 2):
            A(f"v_pk_fma_f32 {v(b+i,2)}, {v(f*8+i,2)}, {v(W1,2)}, {v(b+i,2)} op_sel_hi:[1,0,1]")
        dst = 64 + f * 4
        for p in range(4): A(f"v_cvt_pk_bf16_f32 {v(dst + p)}, {v(b+2*p)}, {v(b+2*p+1)}")
        A(f"buffer_store_dwordx4 {v(dst,4)}, {v(R.LANE16)}, s[{s.WS}:{s.WS+3}], s{s.T0 if f < 4 else s.T1} offen offset:{(f&3)*1024} sc1 ; @cs")
    A(f"v_add_u32 {v(R.FA)}, s{s.RB}, v110\nv_mov_b32 {v(R.ONE)}, 1")
    stamp(A, cfg, 2)
    T2 = 200
    A(f"s_lshl_b32 s{s.T0}, s{s.H}, 17\ns_lshl_b32 s{s.T1}, s{s.W}, 15\ns_add_u32 s{s.T0}, s{s.T0}, s{s.T1}\ns_add_u32 s{s.T0}, s{s.T0}, {hex(WS_KVP)}")
    for p in range(8):
        for q in range(4):
            A(f"buffer_load_dwordx4 {v(p*16 + q*4, 4)}, {v(R.LANE16)}, s[{s.WS}:{s.WS+3}], s{s.T0} offen offset:{q*1024} sc1 ; @kp{p}")
        A(f"s_add_u32 s{s.T0}, s{s.T0}, 0x1000")
    A(f"s_lshl_b32 s{s.T0}, s{s.H}, 17\ns_lshl_b32 s{s.T1}, s{s.I}, 14\ns_add_u32 s{s.T0}, s{s.T0}, s{s.T1}\ns_add_u32 s{s.T0}, s{s.T0}, s{s.D4}\ns_add_u32 s{s.T0}, s{s.T0}, {hex(WS_PHIQ)}")
    for q in range(4):
        A(f"buffer_load_dwordx4 {v(128 + q*4, 4)}, {v(R.LANE16)}, s[{s.WS}:{s.WS+3}], s{s.T0} offen offset:{q*1024} sc1 ; @ph")
    A("WAITV cs\ns_barrier")
    A(f"buffer_store_dword {v(R.ONE)}, {v(R.FA)}, s[{s.WS}:{s.WS+3}], 0 offen sc1 ; @sig")
    A(f"s_bfe_u32 s{s.SL}, s2, 0x20001\ns_and_b32 s{s.RB}, s2, 1\ns_lshl_b32 s{s.RB}, s{s.RB}, 3\ns_add_u32 s{s.RB}, s{s.RB}, s{s.I}\ns_bfe_u32 s{s.CB}, s2, 0x20003")
    A(f"s_mov_b32 s{s.RT}, s{s.H}\ns_mov_b32 s{s.CT}, s{s.I}")
    A(f"s_lshl_b32 s{s.CO}, s{s.RB}, 20\ns_lshl_b32 s{s.T0}, s{s.W}, 18\ns_add_u32 s{s.CO}, s{s.CO}, s{s.T0}\ns_lshl_b32 s{s.T0}, s{s.SL}, 15\ns_add_u32 s{s.CO}, s{s.CO}, s{s.T0}\ns_add_u32 s{s.CO}, s{s.CO}, {hex(WS_CTX)}")
    A(f"s_lshl_b32 s{s.WOO}, s{s.SL}, 20\ns_lshl_b32 s{s.T0}, s{s.W}, 14\ns_add_u32 s{s.WOO}, s{s.WOO}, s{s.T0}\ns_lshl_b32 s{s.T0}, s{s.CB}, 8\ns_add_u32 s{s.WOO}, s{s.WOO}, s{s.T0}")
    A(f"s_lshl_b32 s{s.OFO}, s{s.RT}, 16\ns_lshl_b32 s{s.T0}, s{s.W}, 14\ns_add_u32 s{s.OFO}, s{s.OFO}, s{s.T0}\ns_add_u32 s{s.OFO}, s{s.OFO}, {hex(WS_OF)}")
    A(f"s_lshl_b32 s{s.WBO}, s{s.W}, 15\ns_lshl_b32 s{s.T0}, s{s.CT}, 7\ns_add_u32 s{s.WBO}, s{s.WBO}, s{s.T0}")
    A(f"v_lshrrev_b32 {v(T)}, 4, {v(L)}\nv_lshlrev_b32 {v(T+1)}, 1, {v(T)}\nv_and_b32 {v(T+2)}, 15, {v(L)}\nv_xor_b32 {v(T+1)}, {v(T+1)}, {v(T+2)}\nv_lshlrev_b32 {v(T+1)}, 4, {v(T+1)}")
    A(f"v_lshl_add_u32 {v(R.WV)}, {v(T)}, 10, {v(T+1)}\nv_xor_b32 {v(T)}, 128, {v(R.WV)}")
    A(f"v_add_u32 {v(R.WV+1)}, 3072, {v(T)}\nv_add_u32 {v(R.WV+2)}, {3072*2}, {v(R.WV)}\nv_add_u32 {v(R.WV+3)}, {3072*3}, {v(T)}")
    srd(A, s.WO, s.PTR + 10, 4096 * 512 * 2); srd(A, s.WB, s.PTR + 18, 512 * 512 * 2); srd(A, s.OUT, 40, 2048 * 1024 * 2)
    def st_c(n):
        Ls = [f"s_add_u32 m0, s{s.D4}, {sl(n)}"]
        if n < 16:
            Ls.append(f"s_add_u32 s{s.SOFF}, s{s.CO}, {n*2048}")
            for j in range(2): Ls.append(f"buffer_load_dwordx4 {v(R.LANE16)}, s[{s.WS}:{s.WS+3}], s{s.SOFF} offen offset:{j*1024} sc1 lds")
            Ls.append(f"s_add_u32 s{s.SOFF}, s{s.CO}, {n*2048 + 131072 - 2048}")
            for j in range(2, 4): Ls.append(f"buffer_load_dwordx4 {v(R.LANE16)}, s[{s.WS}:{s.WS+3}], s{s.SOFF} offen offset:{j*1024} sc1 lds")
        else:
            Ls.append(f"s_add_u32 s{s.SOFF}, s{s.OFO}, {(n-16)*4096}")
            for j in range(4): Ls.append(f"buffer_load_dwordx4 {v(R.LANE16)}, s[{s.WS}:{s.WS+3}], s{s.SOFF} offen offset:{j*1024} sc1 lds")
        return tagged(Ls, f"s{n}")
    def st_w(n):
        Ls = [f"s_add_u32 m0, s{s.D4}, {sl(n) + 16384}"]
        if n < 16:
            Ls.append(f"s_add_u32 s{s.SOFF}, s{s.WOO}, {n*65536}")
            for j in range(4): Ls.append(f"buffer_load_dwordx4 {v(R.WV+j)}, s[{s.WO}:{s.WO+3}], s{s.SOFF} offen offset:{j*1024} lds")
        else:
            Ls.append(f"s_add_u32 s{s.SOFF}, s{s.WBO}, {(n-16)*131072}")
            for j in range(4): Ls.append(f"buffer_load_dwordx4 {v(R.BV+j)}, s[{s.WB}:{s.WB+3}], s{s.SOFF} offen offset:{j*1024} lds")
        return tagged(Ls, f"s{n}")
    for n in range(NSLOT):
        for ln in st_w(n): A(ln)
    A(f"s_lshl_b32 s{s.T0}, s{s.SL}, 4\ns_add_u32 s{s.T0}, s{s.T0}, s{s.RB}\ns_lshl_b32 s{s.T0}, s{s.T0}, 7\ns_add_u32 s{s.T0}, s{s.T0}, {hex(WS_FLAG + F_CTX)}")
    A(f"v_and_b32 {v(T)}, 7, {v(L)}\nv_lshl_add_u32 {v(R.PA)}, {v(T)}, 2, s{s.T0}")
    A(f"s_and_b32 s{s.T0}, s2, 7\ns_lshl_b32 s{s.T0}, s{s.T0}, 7\ns_add_u32 s{s.T0}, s{s.T0}, {hex(WS_FLAG + F_OF)}\nv_and_b32 {v(T)}, 31, {v(L)}\nv_lshl_add_u32 {v(R.PB)}, {v(T)}, 2, s{s.T0}")
    A(f"s_lshl_b32 s{s.T0}, s{s.I}, 7\ns_lshl_b32 s{s.T1}, s{s.H}, 2\ns_add_u32 s{s.T0}, s{s.T0}, s{s.T1}\ns_add_u32 s{s.T0}, s{s.T0}, {hex(WS_FLAG + F_OF)}")
    A(f"s_cmp_eq_u32 s{s.W}, 0\ns_cselect_b32 s{s.T0}, s{s.T0}, {hex(OOB)}\nv_mov_b32 {v(R.FO)}, {hex(OOB)}\nv_writelane_b32 {v(R.FO)}, s{s.T0}, 0")
    A(f"v_lshrrev_b32 {v(T)}, 4, {v(L)}\nv_lshlrev_b32 {v(T)}, 1, {v(T)}\nv_and_b32 {v(T+1)}, 7, {v(L)}\nv_xor_b32 {v(T)}, {v(T)}, {v(T+1)}\nv_lshlrev_b32 {v(T)}, 4, {v(T)}")
    A(f"v_lshrrev_b32 {v(T+1)}, 3, {v(L)}\nv_lshl_add_u32 {v(R.BV)}, {v(T+1)}, 10, {v(T)}")
    for j in range(1, 4): A(f"v_add_u32 {v(R.BV+j)}, {7168*j}, {v(R.BV)}")
    A(f"s_lshr_b32 s{s.T0}, s{s.W}, 1\ns_lshl_b32 s{s.T0}, s{s.T0}, 7")
    A(f"v_lshrrev_b32 {v(T)}, 2, {v(L)}\nv_lshlrev_b32 {v(T)}, 8, {v(T)}\nv_bfe_u32 {v(T+1)}, {v(L)}, 2, 3\nv_lshl_add_u32 {v(T)}, {v(T+1)}, 5, {v(T)}")
    A(f"v_and_b32 {v(T+1)}, 3, {v(L)}\nv_lshl_add_u32 {v(T)}, {v(T+1)}, 3, {v(T)}\nv_xor_b32 {v(T)}, s{s.T0}, {v(T)}\nv_add_u32 {v(R.WA)}, 0x4000, {v(T)}")
    for c in range(1, 4): A(f"v_xor_b32 {v(R.WA+c)}, {c<<5}, {v(R.WA)}")
    A(f"s_and_b32 s{s.T0}, s{s.W}, 1\ns_lshl_b32 s{s.T0}, s{s.T0}, 13\nv_add_u32 {v(R.CA)}, s{s.T0}, {v(R.LANE16)}")
    A(f"s_lshr_b32 s{s.T0}, s{s.W}, 1\ns_lshl_b32 s{s.T0}, s{s.T0}, 6")
    A(f"v_bfe_u32 {v(T)}, {v(L)}, 2, 3\nv_lshlrev_b32 {v(T)}, 7, {v(T)}\nv_lshrrev_b32 {v(T+1)}, 5, {v(L)}\nv_lshl_add_u32 {v(T)}, {v(T+1)}, 11, {v(T)}")
    A(f"v_bfe_u32 {v(T+1)}, {v(L)}, 3, 2\nv_lshl_add_u32 {v(T)}, {v(T+1)}, 5, {v(T)}\nv_and_b32 {v(T+1)}, 3, {v(L)}\nv_lshl_add_u32 {v(T)}, {v(T+1)}, 3, {v(T)}")
    A(f"v_xor_b32 {v(T)}, s{s.T0}, {v(T)}\nv_add_u32 {v(R.WB)}, 0x4000, {v(T)}\nv_xor_b32 {v(R.WB+1)}, 32, {v(R.WB)}")
    A(f"s_lshl_b32 s{s.T0}, s{s.RB}, 2\ns_add_u32 s{s.T0}, s{s.T0}, s{s.CB}\ns_lshl_b32 s{s.FO}, s{s.T0}, 7\ns_add_u32 s{s.FO}, s{s.FO}, {hex(WS_FLAG)}")
    A(f"s_lshl_b32 s{s.PO}, s{s.T0}, 17\ns_add_u32 s{s.PO}, s{s.PO}, {hex(WS_PART)}")
    pa_ld = f"buffer_load_dword {v(R.PV)}, {v(R.PA)}, s[{s.WS}:{s.WS+3}], 0 offen sc1"
    pb_ld = f"buffer_load_dword {v(R.PV)}, {v(R.PB)}, s[{s.WS}:{s.WS+3}], 0 offen sc1"
    chk = f"v_cmp_ne_u32 vcc, 1, {v(R.PV)}"
    SC = 147456
    A(f"s_add_u32 s{s.T1}, s{s.D4}, {SC}\nv_add_u32 {v(T2)}, s{s.T1}, {v(R.LANE16)}\nv_add_u32 {v(T2+1)}, {SC}, {v(R.LANE16)}")
    A(f"v_bfe_u32 {v(T2+2)}, {v(L)}, 4, 1\nv_lshlrev_b32 {v(T2+2)}, 14, {v(T2+2)}\nv_and_b32 {v(T2+3)}, 15, {v(L)}\nv_lshl_add_u32 {v(T2+2)}, {v(T2+3)}, 4, {v(T2+2)}")
    A(f"v_lshrrev_b32 {v(T2+3)}, 5, {v(L)}\nv_lshl_add_u32 {v(T2+2)}, {v(T2+3)}, 8, {v(T2+2)}")
    A(f"s_lshl_b32 s{s.T0}, s{s.I}, 18\ns_lshl_b32 s{s.T1}, s{s.W}, 16\ns_add_u32 s{s.T0}, s{s.T0}, s{s.T1}\ns_lshl_b32 s{s.T1}, s{s.H}, 9\ns_add_u32 s{s.T0}, s{s.T0}, s{s.T1}\ns_add_u32 s{s.T0}, s{s.T0}, {hex(WS_OF)}")
    A(f"s_add_u32 s{s.T1}, s{s.T0}, 0x8000")
    for p in range(1, 8):
        A(f"WAITV kp{p}")
        for i in range(0, 16, 2): A(f"v_pk_add_f32 {v(i,2)}, {v(i,2)}, {v(p*16+i,2)}")
    for q in range(4): A(f"ds_write_b128 {v(T2)}, {v(q*4,4)} offset:{q*1024}")
    A(pa_ld + " ; @pa")
    A("s_waitcnt lgkmcnt(0)\ns_barrier")
    for i in range(16): A(f"ds_read_b128 {v(i*4,4)}, {v(T2+1)} offset:{i*1024}")
    A("WAITV ph L")
    for i in range(0, 16, 2):
        A(f"v_pk_add_f32 {v(i,2)}, {v(i,2)}, {v(16+i,2)}\nv_pk_add_f32 {v(32+i,2)}, {v(32+i,2)}, {v(48+i,2)}")
    for i in range(0, 16, 2): A(f"v_pk_add_f32 {v(i,2)}, {v(i,2)}, {v(32+i,2)}")
    for p in range(8): A(f"v_cvt_pk_bf16_f32 {v(16+p)}, {v(2*p)}, {v(2*p+1)}")
    A("s_nop 1")
    for t in range(2): A(f"{MF32} {v(32+t*16,16)}, {v(16,4)}, {v(128+t*8,4)}, 0")
    for t in range(2): A(f"{MF32} {v(32+t*16,16)}, {v(20,4)}, {v(128+t*8+4,4)}, {v(32+t*16,16)}")
    A("s_nop 15")
    for t in range(2):
        b = 32 + t * 16
        A(f"v_add_f32 {v(b+8)}, 0x358637bd, {v(b+8)}\nv_rcp_f32 {v(b+8)}, {v(b+8)}\ns_nop 0")
        for i in range(0, 8, 2): A(f"v_pk_mul_f32 {v(b+i,2)}, {v(b+i,2)}, {v(b+8,2)} op_sel_hi:[1,0]")
        for p in range(4): A(f"v_cvt_pk_bf16_f32 {v(b+12+p)}, {v(b+2*p)}, {v(b+2*p+1)}")
        A(f"buffer_store_dwordx4 {v(b+12,4)}, {v(T2+2)}, s[{s.WS}:{s.WS+3}], s{s.T0 if t == 0 else s.T1} offen sc1 ; @of")
    stamp(A, cfg, 3)
    A("WAITV pa")
    spin(A, "A", pa_ld, chk, s.T0)
    stamp(A, cfg, 4)
    for n in range(NSLOT):
        for ln in st_c(n): A(ln)
    def addr(n):
        if n < 16: return [f"v_add_u32 {v(R.WC+c)}, {sl(n)}, {v(R.WA+c)}" for c in range(4)] + [f"v_add_u32 {v(R.CC)}, {sl(n)}, {v(R.CA)}"]
        return [f"v_add_u32 {v(R.WC+c)}, {sl(n)}, {v(R.WB+c)}" for c in range(2)] + [f"v_add_u32 {v(R.CC)}, {sl(n)}, {v(R.CA)}"]
    def reads(k):
        t2 = k & 1; fs = R.FR + (k & 1) * 32
        Ls = []
        for i in range(4):
            Ls.append(f"ds_read_b128 {v(fs + 16 + i*4, 4)}, {v(R.CC)} offset:{i*2048 + t2*1024}")
            for rd in range(2): Ls.append(f"ds_read_b64_tr_b16 {v(fs + i*4 + rd*2, 2)}, {v(R.WC+i)} offset:{(32*t2 + 16*rd)*256}")
        return Ls
    for ln in addr(0): A(ln)
    A("WAITV s0\ns_barrier")
    A(f"buffer_store_dword {v(R.ONE)}, {v(R.FO)}, s[{s.WS}:{s.WS+3}], 0 offen sc1 ; @sig")
    for ln in reads(0): A(ln)
    for k in range(32):
        st, t2 = k >> 1, k & 1
        fs = R.FR + (k & 1) * 32
        tailv = []; vm = []
        if t2 == 1:
            tags = [f"s{st+1}"] if st < 15 else []
            if k == 25: tags.append("pb")
            A(f"WAITV {','.join(tags)} L" if tags else "s_waitcnt lgkmcnt(0)")
            if k == 25: spin(A, "B", pb_ld, chk, s.T0)
            A("s_barrier")
            vm = st_c(st + NSLOT)
        else:
            A("s_waitcnt lgkmcnt(0)")
            if st < 15: tailv = addr(st + 1)
            if st >= 1: vm = st_w(st - 1 + NSLOT)
        if k == 31: vm = vm + st_w(19)
        if k == 20: vm = vm + [pb_ld + " ; @pb"]
        mf = []
        for c in range(4):
            for rt in range(4):
                acc = (rt * 4 + c) * 4
                mf.append(f"{MF16} {a(acc,4)}, {v(fs + c*4, 4)}, {v(fs + 16 + rt*4, 4)}, " + ("0" if k == 0 else a(acc, 4)))
        for b in weave2(mf, reads(k + 1) if k < 31 else [], vm, tailv, first=2): A(b)
    stamp(A, cfg, 5)
    A(f"s_lshl_b32 s{s.T0}, s{s.W}, 15\ns_lshl_b32 s{s.T1}, s{s.SL}, 13\ns_add_u32 s{s.T0}, s{s.T0}, s{s.T1}\ns_add_u32 s{s.T0}, s{s.T0}, s{s.PO}\ns_add_u32 s{s.T1}, s{s.T0}, 0x1000")
    for ln in addr(16): A(ln)
    A(f"v_add_u32 {v(T)}, 0x20000, {v(R.LANE16)}")
    A(f"s_cmp_eq_u32 s{s.W}, s{s.SL}\ns_cbranch_scc1 K3_own")
    for f in range(8):
        tb = (f & 3) * 12
        for i in range(8): A(f"v_accvgpr_read_b32 {v(tb+i)}, {a(f*8+i)}")
        for p in range(4): A(f"v_cvt_pk_bf16_f32 {v(tb+8+p)}, {v(tb+2*p)}, {v(tb+2*p+1)}")
        A(f"buffer_store_dwordx4 {v(tb+8,4)}, {v(R.LANE16)}, s[{s.WS}:{s.WS+3}], s{s.T0 if f < 4 else s.T1} offen offset:{(f&3)*1024} sc1 ; @opt")
    A("s_waitcnt vmcnt(8)\ns_branch K3_pub")
    A.label("K3_own")
    for i in range(16): A(f"ds_write_b128 {v(T)}, {a(i*4,4)} offset:{i*1024}")
    A("s_waitcnt vmcnt(0)")
    A.label("K3_pub")
    A("s_barrier")
    def breads(k):
        t4 = k & 3; fs = R.FR + (k & 3) * 16
        Ls = []
        for i in range(2):
            Ls.append(f"ds_read_b128 {v(fs + 8 + i*4, 4)}, {v(R.CC)} offset:{i*4096 + t4*1024}")
            for rd in range(2): Ls.append(f"ds_read_b64_tr_b16 {v(fs + i*4 + rd*2, 2)}, {v(R.WC+i)} offset:{(32*t4 + 8*rd)*128}")
        return Ls
    A("s_waitcnt lgkmcnt(0)")
    for ln in breads(0) + breads(1): A(ln)
    for k in range(16):
        fs = R.FR + (k & 3) * 16
        if k + 2 < 16:
            if (k + 2) % 4 == 0:
                for ln in addr(16 + (k + 2) // 4): A(ln)
            for ln in breads(k + 2): A(ln)
        A(f"s_waitcnt lgkmcnt({12 if k + 2 < 16 else (6 if k == 14 else 0)})")
        for c in range(2):
            for rt in range(2):
                acc = R.BACC + (rt * 2 + c) * 4
                A(f"{MF16} {a(acc,4)}, {v(fs + c*4, 4)}, {v(fs + 8 + rt*4, 4)}, " + ("0" if k == 0 else a(acc, 4)))
    A(f"s_lshl_b32 s{s.T0}, s{s.SL}, 2\ns_add_u32 s{s.T0}, s{s.T0}, s{s.FO}\ns_cmp_eq_u32 s{s.W}, 0\ns_cselect_b32 s{s.T0}, s{s.T0}, {hex(OOB)}\nv_mov_b32 {v(T+1)}, {hex(OOB)}\nv_writelane_b32 {v(T+1)}, s{s.T0}, 0")
    A("s_waitcnt vmcnt(0) lgkmcnt(0)\ns_barrier")
    A(f"buffer_store_dword {v(R.ONE)}, {v(T+1)}, s[{s.WS}:{s.WS+3}], 0 offen sc1")
    A(f"v_and_b32 {v(T)}, 15, {v(L)}\nv_lshlrev_b32 {v(T)}, 11, {v(T)}\nv_lshrrev_b32 {v(T+3)}, 4, {v(L)}\nv_lshl_add_u32 {v(T+2)}, {v(T+3)}, 3, {v(T)}")
    A(f"s_lshl_b32 s{s.T0}, s{s.RT}, 17\ns_and_b32 s{s.T1}, s{s.W}, 1\ns_lshl_b32 s{s.T1}, s{s.T1}, 16\ns_add_u32 s{s.T0}, s{s.T0}, s{s.T1}")
    A(f"s_lshl_b32 s{s.T1}, s{s.CT}, 7\ns_add_u32 s{s.T0}, s{s.T0}, s{s.T1}\ns_lshr_b32 s{s.T1}, s{s.W}, 1\ns_lshl_b32 s{s.T1}, s{s.T1}, 6\ns_add_u32 s{s.T0}, s{s.T0}, s{s.T1}\ns_add_u32 s{s.T1}, s{s.T0}, 0x8000")
    A(f"v_and_b32 {v(R.PA)}, 3, {v(L)}\nv_lshl_add_u32 {v(R.PA)}, {v(R.PA)}, 2, s{s.FO}")
    A(pa_ld)
    for i in range(16): A(f"v_accvgpr_read_b32 {v(i)}, {a(R.BACC+i)}")
    for p in range(8): A(f"v_cvt_pk_bf16_f32 {v(16+p)}, {v(2*p)}, {v(2*p+1)}")
    for rt in range(2):
        for c in range(2):
            A(f"buffer_store_dwordx2 {v(16 + (rt*2+c)*2, 2)}, {v(T+2)}, s[{s.OUT}:{s.OUT+3}], s{s.T0 if rt == 0 else s.T1} offen offset:{1024 + c*32}")
    A(f"s_add_u32 s{s.T1}, s{s.D4}, 0x20000\nv_add_u32 {v(T)}, s{s.T1}, {v(R.LANE16)}")
    for c in range(4): A(f"ds_read_b128 {v(48+c*4,4)}, {v(T)} offset:{c*1024}")
    A("s_waitcnt vmcnt(4)")
    spin(A, "P", pa_ld, chk, s.T1)
    stamp(A, cfg, 6)
    A(f"s_lshl_b32 s{s.T0}, s{s.SL}, 15\ns_add_u32 s{s.T0}, s{s.T0}, s{s.PO}\ns_lshl_b32 s{s.T1}, s{s.W}, 11\ns_add_u32 s{s.T0}, s{s.T0}, s{s.T1}")
    for j in range(1, 4):
        A(f"s_add_u32 s{s.T1}, s{s.SL}, {j}\ns_and_b32 s{s.T1}, s{s.T1}, 3\ns_lshl_b32 s{s.T1}, s{s.T1}, 13\ns_add_u32 s{s.T1}, s{s.T1}, s{s.T0}")
        for u in range(2):
            A(f"buffer_load_dwordx4 {v(64 + (j-1)*8 + u*4, 4)}, {v(R.LANE16)}, s[{s.WS}:{s.WS+3}], s{s.T1} offen offset:{u*1024} sc1")
    A(f"s_lshl_b32 s{s.T0}, s{s.RB}, 18\ns_and_b32 s{s.T1}, s{s.SL}, 1\ns_lshl_b32 s{s.T1}, s{s.T1}, 17\ns_add_u32 s{s.T0}, s{s.T0}, s{s.T1}\ns_lshl_b32 s{s.T1}, s{s.W}, 15\ns_add_u32 s{s.T0}, s{s.T0}, s{s.T1}")
    A(f"s_lshl_b32 s{s.T1}, s{s.CB}, 8\ns_add_u32 s{s.T0}, s{s.T0}, s{s.T1}\ns_lshr_b32 s{s.T1}, s{s.SL}, 1\ns_lshl_b32 s{s.T1}, s{s.T1}, 7\ns_add_u32 s{s.T0}, s{s.T0}, s{s.T1}")
    A("s_waitcnt lgkmcnt(0)")
    for j in range(3):
        A(f"s_waitcnt vmcnt({4 - 2*j})")
        for p in range(8):
            r = 64 + j * 8 + p
            A(f"v_lshlrev_b32 {v(40)}, 16, {v(r)}\nv_and_b32 {v(41)}, 0xffff0000, {v(r)}\nv_pk_add_f32 {v(48+2*p,2)}, {v(48+2*p,2)}, {v(40,2)}")
    for p in range(8): A(f"v_cvt_pk_bf16_f32 {v(24+p)}, {v(48+2*p)}, {v(48+2*p+1)}")
    for c in range(4):
        A(f"buffer_store_dwordx2 {v(24+c*2,2)}, {v(T+2)}, s[{s.OUT}:{s.OUT+3}], s{s.T0} offen offset:{c*32}")
```

```python
from gen_common import *
import gen_att as att
from gen_att import weave2, pk_scalar, dma_half
from gen_b import softmax8, LOG2E
WS_FLAG = 60 << 20
OOB = 0x7ffffff0

class R:
    XV = 128; WV = 132; XC = 136; WC = 138; TK = 147; CT = 148
    BWV = 156; BXA = 158; BWA = 162; PHV = 163; FLV = 164; FLD = 165; PLV = 166
    PFV = 168; DZV = 173
    ACC = 176
    WR = 224
    T = 240
    LANE16 = 252; LANE = 253; SCL = 254
    GFR = 128
    BFR = 128
    PK = 96; QF = 112; KF = 120; VF = 148; WP = 168

class SG(att.SG):
    C = 8; WK = 12; WV = 16
    RB = 22; DST2 = 31; OUT = 32; PF = 44; CO = 48; WO = 49
    BX = 64; BW = 68; BP = 72
    BXO = 26; BWO = 27; PFO = 28; PFO2 = 25
    PTR = 76; DB = 96

def ptr(i): return SG.PTR + 2 * i

def resolve_waits(lines):
    out = []; seq = []
    for ln in lines:
        t = ln.strip()
        if t.startswith("WAITV"):
            parts = t.split()
            tags = parts[1].split(",")
            last = max((i for i, g in enumerate(seq) if g in tags), default=None)
            assert last is not None, t
            n = min(len(seq) - 1 - last, 63)
            out.append(f"    s_waitcnt vmcnt({n})" + (f" lgkmcnt({parts[2][1:] or 0})" if len(parts) > 2 else ""))
            continue
        if t.startswith(("buffer_", "global_")):
            tag = t.split("@")[1].strip() if "@" in t else ""
            if tag != "opt": seq.append(tag)
            ln = ln.split(";")[0].rstrip()
        out.append(ln)
    return out

def tagged(lines, tag):
    return [l + f" ; @{tag}" if l.startswith("buffer") else l for l in lines]

def bslot(st): return (st % 5) * 32768

def b_stage(st):
    s = SG
    L = [f"s_lshr_b32 s{s.T1}, s{s.DST}, 2", f"s_add_u32 m0, s{s.T1}, {bslot(st)}", f"s_add_u32 s{s.SOFF}, s{s.BXO}, {st*128}"]
    for j in range(2): L.append(f"buffer_load_dwordx4 {v(R.XV+j)}, s[{s.BX}:{s.BX+3}], s{s.SOFF} offen offset:{j*1024} lds")
    for seg in range(3):
        L.append(f"s_add_u32 m0, s{s.T1}, {bslot(st) + 8192 + seg*8192}")
        L.append(f"s_add_u32 s{s.SOFF}, s{s.BWO}, {st*64*3072 + seg*1024}")
        for j in range(2): L.append(f"buffer_load_dwordx4 {v(R.BWV+j)}, s[{s.BW}:{s.BW+3}], s{s.SOFF} offen offset:{j*1024} lds")
    return tagged(L, f"b{st}")

QBUF = 49152
def g_stage(n):
    s = SG
    gi, st = n >> 3, n & 7
    buf = (n % 3) * QBUF
    L = []
    if n == 16:
        L += [f"s_mov_b32 s{s.C}, s{ptr(0)}", f"s_and_b32 s{s.C+1}, s{ptr(0)+1}, 0xffff", f"s_mov_b32 s{s.WK}, s{ptr(2)}", f"s_and_b32 s{s.WK+1}, s{ptr(2)+1}, 0xffff"]
    for blk in range(2):
        L.append(f"s_add_u32 m0, s{s.DST}, {buf + blk*4096}")
        if gi < 2: L.append(f"s_add_u32 s{s.SOFF}, s{s.CO}, {st*128 + blk*32768}")
        else: L.append(f"s_add_u32 s{s.SOFF}, s{s.XA_ + blk}, {st*128}")
        for j in range(4): L.append(f"buffer_load_dwordx4 {v(R.XV+j)}, s[{s.C}:{s.C+3}], s{s.SOFF} offen offset:{j*1024} lds")
    sr = s.WV if gi == 1 else s.WK
    L.append(f"s_add_u32 m0, s{s.DST2}, {buf + 32768}")
    L.append(f"s_add_u32 s{s.SOFF}, s{s.WO}, {st*64*8192}")
    for j in range(4): L.append(f"buffer_load_dwordx4 {v(R.WV+j)}, s[{sr}:{sr+3}], s{s.SOFF} offen offset:{j*1024} lds")
    return tagged(L, f"g{n}")

def split_vm(L, nfirst):
    c = 0
    for i, t in enumerate(L):
        if t.startswith("buffer"):
            c += 1
            if c == nfirst: return L[:i + 1], L[i + 1:]
    return L, []

def addr_delta(d):
    m = hex(d & 0xffffffff)
    return [f"v_add_u32 {v(R.XC+i)}, {m}, {v(R.XC+i)}" for i in range(10)]

def conv(isV, f):
    s = SG
    if isV:
        t = R.CT
        V = [f"v_accvgpr_read_b32 {v(t+i)}, {a(f*8+i)}" for i in (4, 5, 6, 7, 0, 1, 2, 3)]
    else:
        t = f * 8; V = []
    V += [f"v_cvt_pk_bf16_f32 {v(t+p)}, {v(t+2*p)}, {v(t+2*p+1)}" for p in range(4)]
    S = [f"s_add_u32 s{s.FLG}, s{s.OUT}, {(f >> 3) * 16384 + isV * 8192 + ((f >> 2) & 1) * 4096}",
         f"buffer_store_dwordx4 {v(t,4)}, {v(R.LANE16)}, s[{s.WS}:{s.WS+3}], s{s.FLG} offen offset:{(f&3)*1024} sc1"]
    return V, S

def b_reads(k):
    t4 = k & 3; fs = R.BFR + (k & 3) * 16
    Ls = [f"ds_read_b128 {a(fs + 12, 4)}, {v(R.BXA+t4)}"]
    for seg in range(3):
        for rd in range(2):
            Ls.append(f"ds_read_b64_tr_b16 {a(fs + seg*4 + rd*2, 2)}, {v(R.BWA)} offset:{seg*8192 + (16*t4 + 4*rd)*128}")
    return Ls

class Tick:
    def __init__(self, on): self.on = on; self.n = 0
    def __call__(self, A):
        if not self.on or self.n > 64: return
        if self.n > 0: A(f"v_writelane_b32 v{R.TK}, s{52 + 2*((self.n-1)&1)}, {self.n-1}")
        A(f"s_memrealtime s[{52 + 2*(self.n&1)}:{53 + 2*(self.n&1)}]")
        self.n += 1

def ka(A0, cfg, name="ka_kernel"):
    s = SG
    tick = Tick(cfg.get("ticks"))
    fcfg = cfg if cfg.get("stampset", "front") == "front" else dict(cfg, stamps=0)
    acfg = cfg if cfg.get("stampset", "front") == "att" else dict(cfg, stamps=0)
    bcfg = cfg if cfg.get("stampset", "front") == "back" else dict(cfg, stamps=0)
    kernel_header(A0, name)
    A = Asm(); A._lab = 1000
    A("s_cmp_ge_u32 s2, 256\ns_cbranch_scc1 KA_end")
    A(f"s_load_dwordx16 s[{s.PTR}:{s.PTR+15}], s[0:1], 0\ns_load_dwordx4 s[{s.PTR+16}:{s.PTR+19}], s[0:1], 64\ns_load_dwordx4 s[52:55], s[0:1], 88")
    L = R.LANE; T = R.T
    A(f"v_lshrrev_b32 {v(T)}, 6, v0\nv_and_b32 {v(L)}, 63, v0\nv_lshlrev_b32 {v(R.LANE16)}, 4, {v(L)}")
    A(f"v_readfirstlane_b32 s{s.W}, {v(T)}")
    A(f"s_and_b32 s{s.H}, s2, 7\ns_lshl_b32 s{s.H}, s{s.H}, 2\ns_bfe_u32 s{s.T0}, s2, 0x20003\ns_add_u32 s{s.H}, s{s.H}, s{s.T0}")
    A(f"s_lshr_b32 s{s.RB}, s2, 5")
    A(f"s_lshl_b32 s{s.DST}, s{s.W}, 13\ns_lshl_b32 s{s.DST2}, s{s.W}, 12")
    A(f"s_lshl_b32 s{s.CO}, s{s.RB}, 18\ns_lshl_b32 s{s.T0}, s{s.W}, 16\ns_add_u32 s{s.CO}, s{s.CO}, s{s.T0}")
    A(f"s_lshl_b32 s{s.WO}, s{s.H}, 8\ns_lshl_b32 s{s.T0}, s{s.W}, 17\ns_add_u32 s{s.WO}, s{s.WO}, s{s.T0}")
    A(f"v_lshrrev_b32 {v(T)}, 4, {v(L)}\nv_and_b32 {v(T+1)}, 7, {v(L)}\nv_xor_b32 {v(T)}, {v(T)}, {v(T+1)}\nv_lshlrev_b32 {v(T)}, 4, {v(T)}")
    A(f"v_lshrrev_b32 {v(T+1)}, 3, {v(L)}\nv_lshlrev_b32 {v(T+1)}, 10, {v(T+1)}\nv_add_u32 {v(R.XV)}, {v(T)}, {v(T+1)}")
    A(f"v_xor_b32 {v(T)}, 64, {v(R.XV)}")
    A(f"v_add_u32 {v(R.XV+1)}, {7168}, {v(T)}\nv_add_u32 {v(R.XV+2)}, {7168*2}, {v(R.XV)}\nv_add_u32 {v(R.XV+3)}, {7168*3}, {v(T)}")
    A(f"v_lshrrev_b32 {v(T)}, 4, {v(L)}\nv_lshlrev_b32 {v(T+1)}, 1, {v(T)}\nv_and_b32 {v(T+2)}, 15, {v(L)}\nv_xor_b32 {v(T+1)}, {v(T+1)}, {v(T+2)}")
    A(f"v_lshlrev_b32 {v(T+1)}, 4, {v(T+1)}\nv_lshlrev_b32 {v(T)}, 13, {v(T)}\nv_add_u32 {v(R.WV)}, {v(T)}, {v(T+1)}")
    A(f"v_xor_b32 {v(T)}, 128, {v(R.WV)}")
    A(f"v_add_u32 {v(R.WV+1)}, {31744}, {v(R.WV)}\nv_add_u32 {v(R.WV+2)}, {31744*2}, {v(T)}\nv_add_u32 {v(R.WV+3)}, {31744*3}, {v(T)}")
    A("s_waitcnt lgkmcnt(0)")
    srd(A, s.C, ptr(1), 2048 * 512 * 2); srd(A, s.WK, ptr(3), 512 * 4096 * 2); srd(A, s.WV, ptr(4), 512 * 4096 * 2); srd(A, s.WS, 54, WS_BYTES)
    A(f"s_mov_b32 s{s.REM}, s52\ns_mov_b32 s{s.T}, s53")
    stamp(A, cfg, 0)
    for n in range(3):
        for ln in g_stage(n): A(ln)
    if cfg.get("pf_code", 1):
        A(f"s_getpc_b64 s[50:51]")
        A.label("KA_pc")
        A(f"s_lshr_b32 s3, s2, 3\ns_lshl_b32 s3, s3, 2\ns_add_u32 s3, s3, s{s.W}\ns_lshl_b32 s3, s3, 10\ns_min_u32 s3, s3, KA_end-KA_pc-1024")
        A(f"s_add_u32 s50, s50, s3\ns_addc_u32 s51, s51, 0\nv_mov_b32 {v(T+1)}, s51\nv_add_co_u32 {v(T)}, vcc, s50, {v(R.LANE16)}\ns_nop 1\nv_addc_co_u32 {v(T+1)}, vcc, 0, {v(T+1)}, vcc")
        A(f"global_load_dword {v(R.PFV+2)}, {v(T,2)}, off ; @pf")
    srd(A, s.BX, ptr(6), 2048 * 512 * 2); srd(A, s.BW, ptr(7), 512 * 1536 * 2); srd(A, s.BP, ptr(8), 32 * 256 * 2)
    A(f"v_and_b32 {v(T)}, 15, {v(L)}\nv_lshrrev_b32 {v(T+1)}, 1, {v(T)}\nv_lshrrev_b32 {v(T+2)}, 4, {v(L)}\nv_xor_b32 {v(T+1)}, {v(T+1)}, {v(T+2)}")
    A(f"v_lshlrev_b32 {v(T+1)}, 4, {v(T+1)}\nv_lshlrev_b32 {v(T)}, 7, {v(T)}\nv_add3_u32 {v(R.XC)}, {v(T)}, {v(T+1)}, s{s.DST}")
    A(f"v_xor_b32 {v(R.XC+1)}, 64, {v(R.XC)}")
    A(f"v_bfe_u32 {v(T)}, {v(L)}, 2, 2")
    A(f"v_lshrrev_b32 {v(T+1)}, 4, {v(L)}\nv_lshlrev_b32 {v(T+1)}, 3, {v(T+1)}\nv_add_u32 {v(T+1)}, {v(T+1)}, {v(T)}\nv_lshlrev_b32 {v(T+1)}, 8, {v(T+1)}")
    A(f"v_bfe_u32 {v(T)}, {v(L)}, 2, 3\nv_lshlrev_b32 {v(T)}, 5, {v(T)}\nv_add_u32 {v(T+1)}, {v(T+1)}, {v(T)}")
    A(f"v_and_b32 {v(T)}, 3, {v(L)}\nv_lshlrev_b32 {v(T)}, 3, {v(T)}\nv_add_u32 {v(T+1)}, {v(T+1)}, {v(T)}\nv_add_u32 {v(R.WC)}, 0x8000, {v(T+1)}")
    for dt in range(1, 8): A(f"v_xor_b32 {v(R.WC+dt)}, {dt<<5}, {v(R.WC)}")
    A(f"s_lshl_b32 s{s.OUT}, s{s.H}, 20\ns_lshl_b32 s{s.T0}, s{s.RB}, 17\ns_add_u32 s{s.OUT}, s{s.OUT}, s{s.T0}\ns_lshl_b32 s{s.T0}, s{s.W}, 15\ns_add_u32 s{s.OUT}, s{s.OUT}, s{s.T0}")
    A(f"s_sub_u32 s{s.BA}, 15, s{s.I}")
    A(f"s_lshl_b32 s{s.XA_}, s{s.BA}, 17\ns_add_u32 s{s.XA_}, s{s.XA_}, s{s.T0}\ns_lshl_b32 s{s.XB_}, s{s.I}, 17\ns_add_u32 s{s.XB_}, s{s.XB_}, s{s.T0}")
    A(f"s_lshl_b32 s{s.BXO}, s{s.H}, 16\ns_lshl_b32 s{s.T0}, s{s.W}, 14\ns_add_u32 s{s.BXO}, s{s.BXO}, s{s.T0}")
    A(f"s_mul_i32 s{s.BWO}, s{s.W}, {16*3072}\ns_lshl_b32 s{s.T0}, s{s.RB}, 7\ns_add_u32 s{s.BWO}, s{s.BWO}, s{s.T0}")
    A(f"v_bfe_u32 {v(T)}, {v(L)}, 4, 1\nv_lshlrev_b32 {v(T)}, 2, {v(T)}\nv_and_b32 {v(T+1)}, 7, {v(L)}\nv_xor_b32 {v(T)}, {v(T)}, {v(T+1)}\nv_lshlrev_b32 {v(T)}, 4, {v(T)}")
    A(f"v_lshrrev_b32 {v(T+1)}, 3, {v(L)}\nv_mul_u32_u24 {v(T+1)}, 3072, {v(T+1)}\nv_add_u32 {v(R.BWV)}, {v(T)}, {v(T+1)}\nv_add_u32 {v(R.BWV+1)}, {8*3072-1024}, {v(R.BWV)}")
    A(f"s_lshr_b32 s{s.T0}, s{s.W}, 1\ns_lshl_b32 s{s.T0}, s{s.T0}, 12")
    A(f"v_and_b32 {v(T)}, 31, {v(L)}\nv_bfe_u32 {v(T+1)}, {v(L)}, 1, 3\nv_lshrrev_b32 {v(T+2)}, 5, {v(L)}\nv_xor_b32 {v(T+1)}, {v(T+1)}, {v(T+2)}")
    A(f"v_lshlrev_b32 {v(T+1)}, 4, {v(T+1)}\nv_lshlrev_b32 {v(T)}, 7, {v(T)}\nv_add3_u32 {v(R.BXA)}, {v(T)}, {v(T+1)}, s{s.T0}")
    for t4 in range(1, 4): A(f"v_xor_b32 {v(R.BXA+t4)}, {t4<<5}, {v(R.BXA)}")
    A(f"s_and_b32 s{s.T0}, s{s.W}, 1")
    A(f"v_bfe_u32 {v(T)}, {v(L)}, 2, 2\nv_lshrrev_b32 {v(T+1)}, 5, {v(L)}\nv_lshl_add_u32 {v(T)}, {v(T+1)}, 3, {v(T)}\nv_lshlrev_b32 {v(T)}, 7, {v(T)}")
    A(f"v_bfe_u32 {v(T+1)}, {v(L)}, 3, 1\nv_xor_b32 {v(T+1)}, s{s.T0}, {v(T+1)}\nv_lshl_add_u32 {v(T)}, {v(T+1)}, 6, {v(T)}")
    A(f"v_bfe_u32 {v(T+1)}, {v(L)}, 4, 1\nv_lshl_add_u32 {v(T)}, {v(T+1)}, 5, {v(T)}")
    A(f"v_and_b32 {v(T+1)}, 3, {v(L)}\nv_lshl_add_u32 {v(T)}, {v(T+1)}, 3, {v(T)}\nv_add_u32 {v(R.BWA)}, 0x2000, {v(T)}")
    A(f"v_and_b32 {v(T)}, 15, {v(L)}\nv_lshlrev_b32 {v(T)}, 1, {v(T)}\nv_lshrrev_b32 {v(T+1)}, 5, {v(L)}\nv_lshl_add_u32 {v(R.PHV)}, {v(T+1)}, 7, {v(T)}")
    A(f"v_mov_b32 {v(R.SCL)}, 0x3e0293ee")
    A(f"s_lshl_b32 s{s.T0}, s{s.H}, 7\ns_add_u32 s{s.T0}, s{s.T0}, {hex(WS_FLAG + 8192)}\ns_lshl_b32 s{s.T1}, s{s.RB}, 2\ns_add_u32 s{s.T1}, s{s.T1}, s{s.T0}")
    A(f"s_lshl_b32 s{s.T2}, s{s.RB}, 7\ns_lshl_b32 s3, s{s.H}, 2\ns_add_u32 s{s.T2}, s{s.T2}, s3\ns_add_u32 s{s.T2}, s{s.T2}, {hex(WS_FLAG + 12288)}")
    A(f"s_cmp_eq_u32 s{s.W}, 0\ns_cselect_b32 s{s.T1}, s{s.T1}, {hex(OOB)}\ns_cselect_b32 s{s.T0}, s{s.T0}, 0x70000000\ns_cselect_b32 s{s.T2}, s{s.T2}, {hex(OOB)}\ns_cselect_b32 s3, 0, 0x1000")
    A(f"v_mov_b32 {v(R.FLV)}, {hex(OOB)}\nv_writelane_b32 {v(R.FLV)}, s{s.T1}, 0\nv_mov_b32 {v(T)}, {hex(OOB)}\nv_writelane_b32 {v(T)}, s{s.T2}, 0\nv_accvgpr_write_b32 a255, {v(T)}")
    A(f"v_and_b32 {v(T)}, 7, {v(L)}\nv_lshl_add_u32 v146, {v(T)}, 2, s{s.T0}\nv_mov_b32 {v(R.FLD)}, 1\nv_mov_b32 {v(R.PLV+1)}, s3")
    A(f"s_mul_i32 s{s.T0}, s{s.W}, 6144\ns_add_u32 s{s.T0}, s{s.T0}, {hex(WS_FLAG)}\ns_cmp_eq_u32 s2, 0\ns_cselect_b32 s{s.T0}, s{s.T0}, 0x70000000\ns_cselect_b32 s3, s3, 0x1000")
    A(f"v_mov_b32 {v(T+4)}, 0\nv_mov_b32 {v(T+5)}, 0\nv_mov_b32 {v(T+6)}, 0\nv_mov_b32 {v(T+7)}, 0\nv_mov_b32 {v(R.DZV)}, 0x1000\nv_writelane_b32 {v(R.DZV)}, s3, 0")
    A(f"s_add_u32 s{s.T1}, s{s.T0}, 3072")
    for j in range(6): A(f"buffer_store_dwordx4 {v(T+4,4)}, {v(R.LANE16)}, s[{s.WS}:{s.WS+3}], s{s.T0 if j < 3 else s.T1} offen offset:{(j%3)*1024} sc1 ; @zf")
    srd(A, s.DB, s.REM, 256)
    A(f"s_lshl_b32 s{s.PFO}, s2, 2\ns_add_u32 s{s.PFO}, s{s.PFO}, s{s.W}\ns_mov_b32 s{s.PF+3}, 0x00020000")
    P = R.PFV
    A(f"v_mul_u32_u24 {v(P)}, 24, {v(L)}\nv_lshlrev_b32 {v(P+1)}, 3, {v(L)}")
    plan = []
    own = ((1, 2 << 20, 2), (3, 4 << 20, 4)) if cfg.get("pf_own") else ()
    for pi, nbytes, n in own + ((4, 4 << 20, 4), (0, 2 << 20, 2), (2, 4 << 20, 4), (6, 2 << 20, 2), (7, 1536 * 1024, 1), (5, 4 << 20, 4), (9, 512 * 1024, 1)):
        for j in range(n):
            vo = R.LANE16 if nbytes >= (2 << 20) else (P if pi == 7 else P + 1)
            pre = [f"s_mov_b32 s{s.PF}, s{ptr(pi)}", f"s_and_b32 s{s.PF+1}, s{ptr(pi)+1}, 0xffff", f"s_mov_b32 s{s.PF+2}, {nbytes}", f"s_mul_i32 s{s.PFO2}, s{s.PFO}, {nbytes // 1024}"] if j == 0 else []
            plan.append(pre + [f"buffer_load_dword {v(P+2)}, {v(vo)}, s[{s.PF}:{s.PF+3}], s{s.PFO2} offen offset:{j*1024} ; @pf"])
    pf0 = cfg.get("pf0", 1)
    if not cfg.get("pf", 1): plan = []
    def signal(off): return [f"buffer_store_dword {v(R.FLD)}, {v(R.FLV)}, s[{s.WS}:{s.WS+3}], 0 offen offset:{off} sc1 ; @sig"]
    def poll_ld(tag, off, opt=False):
        if off is None: return [f"buffer_load_dword {v(R.PLV)}, {v(R.PLV+1)}, s[{s.DB}:{s.DB+3}], 0 offen sc1 ; @{tag}"]
        return [f"buffer_load_dword {v(R.PLV)}, v146, s[{s.WS}:{s.WS+3}], 0 offen offset:{off} sc1 ; @{tag}"]
    def poll_chk(off, tag, tmp=SG.T0):
        chk = f"v_cmp_ne_u32 vcc, 1, {v(R.PLV)}"
        A(f"s_cmp_eq_u32 s{s.W}, 0\ns_cbranch_scc0 KA_rdy{tag}")
        A(chk + f"\ns_mov_b32 s{tmp}, 0\ns_nop 3\ns_cbranch_vccz KA_rdy{tag}")
        A.label(f"KA_poll{tag}")
        A("s_sleep 2\n" + poll_ld("opt", off)[0] + "\ns_waitcnt vmcnt(0)")
        A(chk + f"\ns_add_u32 s{tmp}, s{tmp}, 1\ns_nop 3\ns_cbranch_vccz KA_rdy{tag}\ns_cmp_lt_u32 s{tmp}, 0x40000\ns_cbranch_scc1 KA_poll{tag}")
        A.label(f"KA_rdy{tag}")
    wphi = [f"s_lshl_b32 s{s.PFO}, s{s.RB}, 11", f"s_and_b32 s{s.T2}, s{s.W}, 1", f"s_lshl_b32 s{s.T2}, s{s.T2}, 10", f"s_add_u32 s{s.PFO}, s{s.PFO}, s{s.T2}"]
    for hh in range(2):
        for e, d in enumerate((0, 1, 2, 3, 8, 9, 10, 11)):
            wphi.append(f"buffer_load_ushort {v(R.WR + hh*8 + e)}, {v(R.PHV)}, s[{s.BP}:{s.BP+3}], s{s.PFO} offen offset:{hh*512 + d*32} ; @wp")
    def g_reads(k):
        t2 = k & 1; fs = R.GFR + (k & 1) * 48
        Ls = [f"ds_read_b128 {a(fs + 32 + rt*4, 4)}, {v(R.XC+t2)} offset:{rt*2048}" for rt in range(4)]
        for dt in range(8):
            for rd in range(2): Ls.append(f"ds_read_b64_tr_b16 {a(fs + dt*4 + rd*2, 2)}, {v(R.WC+dt)} offset:{(32*t2 + 4*rd)*256}")
        return Ls
    vm = {k: [] for k in range(49)}
    for n in range(21):
        h0, h1 = split_vm(g_stage(n + 3), 6)
        vm[2 * n + 1] += h0; vm[2 * n + 2] += h1
    npf = cfg.get("npf", 13); ppk = cfg.get("pf_per_k", 1)
    npre = cfg.get("pf_pre", 0)
    for p in plan[:npre]:
        for x in p: A(x)
    for i, p in enumerate(plan[npre:npf]): vm[pf0 + i // ppk] += p
    ksigK = cfg.get("k_sigK", 37)
    vm[ksigK] = signal(0) + vm[ksigK]
    vm[5] = [f"buffer_store_dword {v(R.FLD)}, {v(R.DZV)}, s[{s.DB}:{s.DB+3}], 0 offen sc1 ; @sig"] + vm[5]
    vm[28] += poll_ld("pz", None)
    vlast = cfg.get("v_last", 47)
    vk = [32 + (f * (vlast - 31)) // 16 for f in range(16)]
    h0, h1 = split_vm(wphi, 8)
    vm[43] += b_stage(0); vm[44] += h0; vm[45] += b_stage(1); vm[46] += b_stage(2); vm[47] += b_stage(3); vm[48] += b_stage(4)
    A("WAITV g0\ns_barrier")
    for ln in g_reads(0): A(ln)
    for k in range(48):
        n, t2 = k >> 1, k & 1
        gi = k >> 4
        fs = R.GFR + (k & 1) * 48
        tailv = []
        if t2 == 1:
            tags = [f"g{n+1}"] if n < 23 else ["b0"]
            if k == ksigK: tags.append("kst")
            if k == 5: tags.append("zf")
            if k == 33: tags.append("pz")
            A(f"WAITV {','.join(tags)} L")
            if k == 33: poll_chk(None, "Z")
            A("s_barrier")
        else:
            A("s_waitcnt lgkmcnt(0)")
            if n < 23: tailv = addr_delta(((n + 1) % 3 - n % 3) * QBUF)
        if k % 2 == 0: tick(A)
        if k in (16, 32): stamp(A, fcfg, k // 16)
        post = []
        if gi == 1:
            V, S = conv(0, k & 15); tailv = V + tailv; post = S
        if gi == 2:
            fl = [f for f in range(16) if vk[f] == k]
            for j, f in enumerate(fl):
                V, S = conv(1, f)
                if j == 0: tailv = V + tailv; post = S
                else: post = post + V + S
        mf = []
        for dt in range(8):
            for rt in range(4):
                W_, X_ = a(fs + dt * 4, 4), a(fs + 32 + rt * 4, 4)
                if gi == 1:
                    acc = a((((rt >> 1) * 8 + dt) * 2 + (rt & 1)) * 4, 4); ops = f"{X_}, {W_}"
                else:
                    acc = v((rt * 8 + dt) * 4, 4); ops = f"{W_}, {X_}"
                mf.append(f"{MF16} {acc}, {ops}, " + ("0" if k % 16 == 0 else acc))
        rd = g_reads(k + 1) if k < 47 else b_reads(0) + b_reads(1)
        for b in weave2(mf, rd, vm[k], tailv, first=2): A(b)
        for x in post: A(x)
    stamp(A, fcfg, 3)
    srd(A, s.KV, s.WS, WS_BYTES)
    A(f"s_and_b32 s{s.KP}, s{s.W}, 1\ns_lshl_b32 s{s.T0}, s{s.KP}, 14\ns_lshr_b32 s{s.CO}, s{s.W}, 1\ns_lshl_b32 s{s.T2}, s{s.CO}, 13")
    A(f"s_lshl_b32 s{s.SRC}, s{s.H}, 20\ns_add_u32 s{s.WQO}, s{s.BA}, 1\ns_lshl_b32 s{s.WQO}, s{s.WQO}, 16\ns_add_u32 s{s.WQO}, s{s.WQO}, s{s.SRC}")
    A(f"s_add_u32 s{s.SRC}, s{s.SRC}, s{s.T0}\ns_add_u32 s{s.SRC}, s{s.SRC}, s{s.T2}")
    A(f"s_cmp_eq_u32 s{s.CO}, 1\ns_cselect_b32 s{s.KV+2}, 0, s{s.WQO}\ns_lshl_b32 s{s.CO}, s{s.CO}, 15\ns_lshl_b32 s{s.KP}, s{s.KP}, 13")
    ring = lambda slot, tag: tagged(dma_half(cfg, 0, slot_imm=slot * 32768) + dma_half(cfg, 1), tag)
    undo = f"s_sub_u32 s{s.SRC}, s{s.SRC}, s{s.CO}"
    bvm = {k: [] for k in range(33)}
    bvm[0] += vm[48]; bvm[1] += h1
    for st in range(3):
        x0, x1 = split_vm(b_stage(st + 5), 4)
        bvm[4 * st + 2] += x0; bvm[4 * st + 3] += x1
    kchk = 18
    bvm[cfg.get("b_pollK", 4)] += poll_ld("pk", 0)
    rings = [ring(3, "r0") + [undo], ring(4, "r1") + [undo, f"s_mov_b32 s{s.KV+2}, s{s.WQO}"]]
    for i, r in enumerate(rings):
        for j in range(4):
            x0, r = split_vm(r, 2)
            bvm[kchk + 4 * i + j] += x0 + (r if j == 3 else [])
    bvm[cfg.get("b_pollV", 31)] += poll_ld("pv", 32)
    ksigV = cfg.get("b_sigV", 10)
    bvm[ksigV] = signal(32) + bvm[ksigV]
    qv = []
    for f in range(16):
        b = f * 8
        qv += [f"v_mul_f32 {v(b+i)}, {v(R.SCL)}, {v(b+i)}" for i in range(8)]
        qv += [f"v_cvt_pk_bf16_f32 {v(b+p)}, {v(b+2*p)}, {v(b+2*p+1)}" for p in range(4)]
        qv += [f"v_accvgpr_write_b32 {a(att.R.Q + f*4 + p)}, {v(b+p)}" for p in range(4)]
    for k in range(32):
        st, t4 = k >> 2, k & 3
        fs = R.BFR + (k & 3) * 16
        if t4 == 2:
            tags = [f"b{st+1}"] if st < 7 else ["wp"]
            if k == ksigV: tags.append("vst")
            if k == kchk: tags.append("pk")
            A(f"WAITV {','.join(tags)} L")
            if k == kchk: poll_chk(0, "K")
            A("s_barrier")

        else:
            A(f"s_waitcnt lgkmcnt({7 if k < 31 else 0})")
        if k % 4 == 0: tick(A)
        rd = b_reads(k + 2) if k < 30 else []
        va = qv[(k - 1) * 9:k * 9] if 1 <= k < 30 else []
        adr = []
        if t4 == 1 and st < 7:
            d = hex((bslot(st + 1) - bslot(st)) & 0xffffffff)
            adr = [f"v_add_u32 {v(R.BXA+i)}, {d}, {v(R.BXA+i)}" for i in range(5)]
        mf = []
        for seg in range(3):
            acc = R.ACC + seg * 16
            c = "0" if k == 0 else v(acc, 16)
            if seg < 2: mf.append(f"{MF32} {v(acc,16)}, {a(fs + seg*4, 4)}, {a(fs + 12, 4)}, {c}")
            else: mf.append(f"{MF32} {v(acc,16)}, {a(fs + 12, 4)}, {a(fs + seg*4, 4)}, {c}")
        x0, x1 = split_vm(bvm[k], (sum(1 for t in bvm[k] if t.startswith("buffer")) + 1) // 2)
        A(mf[0]); [A(x) for x in rd[:4] + va[:2]]
        A(mf[1]); [A(x) for x in rd[4:] + x0 + va[2:5]]
        A(mf[2]); [A(x) for x in x1 + va[5:] + adr]
    stamp(A, fcfg, 4)
    tick(A)
    for x in bvm[32]: A(x)
    SC = 65536
    sL = s.T2
    A(f"v_bfe_u32 {v(T)}, {v(L)}, 4, 1\nv_mul_u32_u24 {v(T)}, 0x8000, {v(T)}\nv_lshl_or_b32 {v(T)}, {v(T)}, 16, {v(T)}")
    for i in range(8): A(f"v_lshl_or_b32 {v(R.WP+i)}, {v(R.WR+2*i+1)}, 16, {v(R.WR+2*i)}")
    for i in range(8): A(f"v_xor_b32 {v(R.WP+i)}, {v(T)}, {v(R.WP+i)}")
    A(f"s_mov_b32 s{sL}, {hex(LOG2E)}")
    A(f"s_and_b32 s{s.T0}, s{s.W}, 1\ns_lshl_b32 s{s.T0}, s{s.T0}, 13\ns_lshr_b32 s{s.T1}, s{s.W}, 1\ns_lshl_b32 s{s.T1}, s{s.T1}, 11\ns_add_u32 s{s.T0}, s{s.T0}, s{s.T1}\ns_add_u32 s{s.T0}, s{s.T0}, {SC}")
    A(f"v_and_b32 {v(T+2)}, 31, {v(L)}\nv_lshlrev_b32 {v(T+2)}, 6, {v(T+2)}\nv_lshrrev_b32 {v(T+3)}, 5, {v(L)}\nv_lshl_add_u32 {v(T+2)}, {v(T+3)}, 3, {v(T+2)}\nv_add_u32 {v(T+2)}, s{s.T0}, {v(T+2)}")
    A(f"s_lshr_b32 s{s.T0}, s{s.DST}, 2\ns_add_u32 s{s.T0}, s{s.T0}, {SC}\nv_add_u32 {v(T+3)}, s{s.T0}, {v(R.LANE16)}")
    for p in range(8):
        A(f"v_cvt_pk_bf16_f32 {v(R.QF+p)}, {v(R.ACC+2*p)}, {v(R.ACC+2*p+1)}")
        A(f"v_cvt_pk_bf16_f32 {v(R.KF+p)}, {v(R.ACC+16+2*p)}, {v(R.ACC+16+2*p+1)}")
    for p in range(8): A(f"v_cvt_pk_bf16_f32 {v(R.VF+p)}, {v(R.ACC+32+2*p)}, {v(R.ACC+32+2*p+1)}")
    for t in range(2): A(f"ds_write_b128 {v(T+3)}, {v(R.VF+t*4,4)} offset:{16384 + t*1024}")
    for i, (src, hh) in enumerate(((R.KF, 0), (R.KF, 1), (R.QF, 0), (R.QF, 1))):
        A(f"{MF32} {v(32+i*16,16)}, {v(R.WP+hh*4,4)}, {v(src+hh*4,4)}, 0")
    A(f"s_add_u32 s{s.SOFF}, s{s.DST2}, {SC}")
    A(f"v_bfe_u32 {v(T+4)}, {v(L)}, 2, 2\nv_lshrrev_b32 {v(T+5)}, 5, {v(L)}\nv_lshl_add_u32 {v(T+4)}, {v(T+5)}, 2, {v(T+4)}\nv_lshlrev_b32 {v(T+4)}, 6, {v(T+4)}")
    A(f"v_bfe_u32 {v(T+5)}, {v(L)}, 4, 1\nv_lshl_add_u32 {v(T+4)}, {v(T+5)}, 5, {v(T+4)}\nv_and_b32 {v(T+5)}, 3, {v(L)}\nv_lshl_add_u32 {v(T+4)}, {v(T+5)}, 3, {v(T+4)}\nv_add_u32 {v(T+4)}, s{s.SOFF}, {v(T+4)}")
    A(f"s_lshr_b32 s{s.SOFF}, s{s.W}, 1\ns_lshl_b32 s{s.SOFF}, s{s.SOFF}, 11\ns_and_b32 s{s.FLG}, s{s.W}, 1\ns_lshl_b32 s{s.FLG}, s{s.FLG}, 8\ns_add_u32 s{s.SOFF}, s{s.SOFF}, s{s.FLG}\ns_add_u32 s{s.SOFF}, s{s.SOFF}, {SC}")
    A(f"v_and_b32 {v(T+5)}, 0x2ff, {v(R.LANE16)}\nv_add_u32 {v(T+5)}, s{s.SOFF}, {v(T+5)}")
    for hh in range(2):
        for grp in range(2): softmax8(A, 32 + hh * 16 + grp * 8, R.PK + grp * 4, T, sL)
        for q in range(4): A(f"ds_write_b64 {v(T+2)}, {v(R.PK+q*2,2)} offset:{hh*4096 + q*16}")
    A(f"s_lshl_b32 s{s.T0}, s{s.RB}, 2\ns_and_b32 s{s.T1}, s{s.W}, 1\ns_lshl_b32 s{s.T1}, s{s.T1}, 1\ns_add_u32 s{s.T0}, s{s.T0}, s{s.T1}\ns_lshl_b32 s{s.T0}, s{s.T0}, 17")
    A(f"s_lshl_b32 s{s.T1}, s{s.H}, 12\ns_add_u32 s{s.T0}, s{s.T0}, s{s.T1}\ns_lshr_b32 s{s.T1}, s{s.W}, 1\ns_lshl_b32 s{s.T1}, s{s.T1}, 11\ns_add_u32 s{s.T0}, s{s.T0}, s{s.T1}")
    A(f"s_add_u32 s{s.T0}, s{s.T0}, {hex(WS_PHIQ)}\ns_add_u32 s{s.T1}, s{s.T0}, 0x20000")
    A("WAITV pv L")
    poll_chk(32, "V", tmp=s.SOFF)
    A("s_barrier")
    tick(A)
    for u in range(4):
        for rd in range(2): A(f"ds_read_b64_tr_b16 {v(u*4 + rd*2, 2)}, {v(T+4)} offset:{(16*u + 8*rd)*64}")
        A(f"ds_read_b128 {v(16 + u*4, 4)}, {v(T+5)} offset:{16384 + (u>>1)*4096 + (u&1)*1024}")
    A(f"v_add_u32 {v(att.R.KADDR)}, {3*32768}, {v(R.LANE16)}")
    for t in range(8): A(f"ds_read_b128 {a(att.R.KF + t*4, 4)}, {v(att.R.KADDR)} offset:{t*1024}")
    late_r = list(split_vm(ring(0, "r2"), 4)) + list(split_vm(ring(1, "r3"), 4))
    A(f"v_and_b32 {v(T+6)}, 16, {v(L)}\nv_cmp_ne_u32 vcc, 0, {v(T+6)}\nv_mov_b32 {v(T+6)}, 0x3f803f80")
    for hh in range(2):
        for grp in range(2):
            for x in late_r[hh * 2 + grp]: A(x)
            softmax8(A, 64 + hh * 16 + grp * 8, R.PK + hh * 8 + grp * 4, T, sL)
            A(f"buffer_store_dwordx4 {v(R.PK + hh*8 + grp*4, 4)}, {v(R.LANE16)}, s[{s.WS}:{s.WS+3}], s{s.T0 if hh == 0 else s.T1} offen offset:{grp*1024} sc1 ; @bo")
            if hh == 0 and grp == 0:
                A("s_waitcnt lgkmcnt(0)\ns_barrier")
                for i in range(16): A(f"v_cndmask_b32 {v(16+i)}, {v(16+i)}, {v(T+6)}, vcc")
                A(f"s_add_u32 s{s.FLG}, s{s.DST}, 0x10000\nv_add_u32 {v(att.R.VADDR)}, s{s.FLG}, {v(R.LANE16)}")
                for u in range(4): A(f"{MF32} {v(32,16)}, {v(u*4,4)}, {v(16+u*4,4)}, " + ("0" if u == 0 else v(32, 16)))
                for f in range(8): A(f"ds_write_b128 {v(att.R.VADDR)}, {a(att.R.Q + f*4, 4)} offset:{f*1024}")
    A(f"s_lshl_b32 s{s.T0}, s{s.RB}, 2\ns_add_u32 s{s.T0}, s{s.T0}, s{s.W}\ns_lshl_b32 s{s.T0}, s{s.T0}, 5\ns_add_u32 s{s.T0}, s{s.T0}, s{s.H}\ns_lshl_b32 s{s.T0}, s{s.T0}, 12\ns_add_u32 s{s.T0}, s{s.T0}, {hex(WS_KVP)}")
    for q in range(4):
        A(f"buffer_store_dwordx4 {v(32+q*4,4)}, {v(R.LANE16)}, s[{s.WS}:{s.WS+3}], s{s.T0} offen offset:{q*1024} sc1 ; @bo")
    A(f"s_lshl_b32 s{s.REM}, s{s.I}, 2\ns_add_u32 s{s.REM}, s{s.REM}, 4")
    A(f"s_mov_b32 s{s.T}, {hex(cfg.get('thresh', 0x42800000))}")
    stamp(A, fcfg, 5)
    if cfg.get("ticks"):
        A("s_waitcnt lgkmcnt(0)"); tick(A); A("s_waitcnt lgkmcnt(0)"); tick(A)
        A(f"s_lshl_b32 s50, s2, 2\ns_add_u32 s50, s50, s{s.W}\ns_lshl_b32 s50, s50, 8\ns_add_u32 s50, s50, {hex(WS_DBG + (4 << 20))}")
        A(f"v_lshlrev_b32 v146, 2, {v(L)}\nbuffer_store_dword v{R.TK}, v146, s[{s.WS}:{s.WS+3}], s50 offen ; @opt\ns_waitcnt vmcnt(0)")
    A0.lines += resolve_waits(A.lines)
    A0._lab = max(A0._lab, 2000)
    late = []
    if npf < len(plan):
        late = [f"s_lshl_b32 s{s.T2}, s2, 2", f"s_add_u32 s{s.T2}, s{s.T2}, s{s.W}", f"s_mov_b32 s75, 0x00020000", f"v_lshlrev_b32 {v(att.R.TMP)}, 3, {v(L)}"]
        late += [f"s_mov_b32 s72, s{ptr(5)}", f"s_and_b32 s73, s{ptr(5)+1}, 0xffff", f"s_mov_b32 s74, {4<<20}", f"s_lshl_b32 s{s.T0}, s{s.T2}, 12"]
        late += [f"buffer_load_dword a254, {v(R.LANE16)}, s[72:75], s{s.T0} offen offset:{j*1024}" for j in range(4)]
        late += [f"s_mov_b32 s72, s{ptr(9)}", f"s_and_b32 s73, s{ptr(9)+1}, 0xffff", f"s_mov_b32 s74, {512*1024}", f"s_lshl_b32 s{s.T0}, s{s.T2}, 9"]
        late += [f"buffer_load_dword a254, {v(att.R.TMP)}, s[72:75], s{s.T0} offen"]
    att.attention(A0, acfg, fcfg, late)
    import gen_back
    B = Asm(); B._lab = 5000
    gen_back.back(B, bcfg)
    A0.lines += resolve_waits(B.lines)
    if cfg.get("stamps"):
        A0("s_waitcnt vmcnt(0)"); stamp(A0, cfg, 7); stamp_flush(A0, cfg, s.WS, s.W, R.LANE, 1)
        if cfg.get("dbgout"):
            A0(f"s_cmp_eq_u32 s2, {cfg['dbgout']}\ns_cbranch_scc0 KA_end\ns_cmp_eq_u32 s20, 0\ns_cbranch_scc0 KA_end")
            A0(f"s_mov_b64 exec, 0xff\nbuffer_store_dword v1, v2, s[{s.DB}:{s.DB+3}], 0 offen offset:4\ns_waitcnt vmcnt(0)")
    A0.label("KA_end")
    A0("s_endpgm")
```

```python
import sys, json
from gen_common import *
import gen_ka
NAME = "concat_heads__compressed_kv_cla__linear_kernel_hedgehog__prompt_kernel"
cfg = json.loads(sys.argv[2]) if len(sys.argv) > 2 else {}
ref = open("concat_heads__compressed_kv_cla__linear_kernel_hedgehog__prompt.s.ref").read().split("\n")
A = Asm()
for ln in ref:
    if ln.startswith(";") and "@launch" not in ln: A.raw(ln)
    if not ln.startswith(";"): break
if cfg.get("list"): A.raw(f"; @launch kernel={NAME} grid=(256,1,1) block=(256,1,1) lds=163840")
else: A.raw("; @launch grid=(256,1,1) block=(256,1,1) lds=163840")
A.raw('.amdgcn_target "amdgcn-amd-amdhsa--gfx950"\n.text')
gen_ka.ka(A, cfg, NAME)
check_hazards(A.lines)
A.raw('.section .rodata,"a"')
A.raw(".p2align 6"); A.raw(kernel_desc(NAME, 512, 256))
txt = "\n".join(l.strip() if l.startswith("    ") else l for l in A.text().split("\n"))
open(sys.argv[1], "w").write(txt)
```

```python
from gen_common import *

class R:
    S = 0; P = 64; NEGM = 80; O = 112
    M = 240
    MX = 244
    TMP = 248
    KADDR = 250; VADDR = 251; LANE16 = 252; LANE = 253; NINF = 254; MXA = 255
    XV = 128; WV = 132; XA = 136; WA = 140; XC = 148; WC = 152; T2 = 160
    KF = 0; VF = 32; Q = 64; QN = 128
    LS = 160
    ONES = 176
    FR = 160

class SG:
    WS = 4; X = 8; WQ = 12; KV = 16
    W = 20; H = 21; I = 22; BA = 23; KP = 24
    SRC = 25; SL0 = 26; SL1 = 27; SL2 = 28; DST = 29; SOFF = 30
    REM = 33; T = 34; TE = 35; NI = 36; T0 = 37; T1 = 38; T2 = 39; XA_ = 40; XB_ = 41; WQO = 42; FLG = 43
    MASK = 64

def Sreg(buf, qt, kt=0): return R.S + buf * 32 + (qt * 2 + kt) * 4
def Nreg(qt, kt=0): return R.NEGM + (qt * 2 + kt) * 4
def Preg(qt): return R.P + qt * 4
def Oreg(qt, dt=0): return R.O + (qt * 8 + dt) * 4
def Qreg(qt, t=0): return R.Q + (qt * 4 + t) * 4
def MXr(qs): return R.MX + 2 * qs

def dma_half(cfg, half, slot_sg=None, slot_imm=None):
    s = SG
    L = []
    if half == 0:
        L.append(f"s_add_u32 m0, s{s.DST}, " + (f"s{slot_sg}" if slot_sg is not None else str(slot_imm)))
        L.append(f"s_add_u32 s{s.SOFF}, s{s.SRC}, 0x1000")
        for j in range(4):
            L.append(f"buffer_load_dwordx4 {v(R.LANE16)}, s[{s.KV}:{s.KV+3}], s{s.SRC} offen offset:{j*1024} sc1 lds")
    else:
        L.append(f"s_add_u32 m0, m0, 0x1000")
        L.append(f"s_add_u32 s{s.SRC}, s{s.SRC}, 0x8000")
        for j in range(4):
            L.append(f"buffer_load_dwordx4 {v(R.LANE16)}, s[{s.KV}:{s.KV+3}], s{s.SOFF} offen offset:{j*1024} sc1 lds")
    return L

def rot_slots():
    s = SG
    return [f"s_mov_b32 s{s.SL2}, s{s.SL1}", f"s_mov_b32 s{s.SL1}, s{s.SL0}", f"s_add_u32 s{s.SL0}, s{s.SL0}, 0x8000",
            f"s_cmp_eq_u32 s{s.SL0}, 0x28000", f"s_cselect_b32 s{s.SL0}, 0, s{s.SL0}"]

def rem_ops(lim):
    s = SG
    return [f"s_sub_u32 s{s.REM}, s{s.REM}, 1", f"s_cmp_le_u32 s{s.REM}, {lim}", f"s_cselect_b32 s{s.TE}, s{s.NI}, s{s.T}"]

def period(cfg, cur, voff, dma, salu, vaddr, do_qk=True, do_pv=True):
    s = SG
    nxt = 1 - cur
    PVW = 9
    NS = 32 + 4 * PVW
    mf = []
    for kt in range(2):
        for t in range(4):
            for qt in range(4):
                d = Sreg(nxt, qt, kt)
                c = v(Nreg(qt, kt), 4) if t == 0 else v(d, 4)
                mf.append(f"{MF16} {v(d,4)}, {a(R.KF + (kt*4+t)*4, 4)}, {a(Qreg(qt,t), 4)}, {c}" if do_qk else "s_nop 0")
    for qt in range(4):
        for dt in range(8):
            o = Oreg(qt, dt)
            mf.append(f"{MF16} {v(o,4)}, {a(R.VF + dt*4, 4)}, {v(Preg(qt),4)}, {v(o,4)}" if do_pv else None)
        mf.append(f"{MF16} {a(R.LS+qt*4,4)}, {a(R.ONES, 4)}, {v(Preg(qt),4)}, {a(R.LS+qt*4,4)}" if do_pv else None)
    ops = []
    if do_pv:
        n = 0
        espan = cfg.get("espan", 56) if do_qk else 40
        for qt in range(4):
            dl_cvt = 32 + PVW * qt - 3
            base = Sreg(cur, qt)
            for p in range(4):
                dle = n * espan // 16
                n += 1
                e0 = Op(f"v_exp_f32 {v(base+2*p)}, {v(base+2*p)}", dl=dle, hard=dl_cvt - 2)
                e1 = Op(f"v_exp_f32 {v(base+2*p+1)}, {v(base+2*p+1)}", dl=dle + 1, hard=dl_cvt - 1)
                cv = Op(f"v_cvt_pk_bf16_f32 {v(Preg(qt)+p)}, {v(base+2*p)}, {v(base+2*p+1)}", dl=dle + 3, hard=dl_cvt, after=[e0, e1])
                ops += [e0, e1, cv]
    prev = None
    if do_pv:
        for i in range(8):
            g = i * 3
            o = Op(f"ds_read_b128 {a(R.VF + i*4, 4)}, {v(R.VADDR)} offset:{voff + i*1024}", rel=g, dl=g + 2, hard=26, after=[prev])
            ops.append(o); prev = o
    if do_qk:
        for t in range(8):
            g = (cfg.get("k_first", 28) + t * 4) if do_pv else 4 * t + 4
            o = Op(f"ds_read_b128 {a(R.KF + t*4, 4)}, {v(R.KADDR)} offset:{t*1024}", rel=g, dl=g + 3, hard=NS - 5, after=[prev])
            ops.append(o); prev = o
    lastds = prev
    prev = None
    nd = sum(1 for t in dma if t.startswith("buffer"))
    k = 0
    firstm0 = None; m0op = None
    for txt in dma:
        g = cfg.get("dma_first", 2) + k * cfg.get("dma_span", 60) // max(nd, 1)
        if txt.startswith("s_"):
            o = Op(txt, rel=max(0, g - 3), dl=g, later=[prev] if (prev and prev.cat == "m") else [], after=[prev])
            if txt.split()[1].startswith("m0"): m0op = o
            if firstm0 is None: firstm0 = o
        else:
            o = Op(txt, rel=g, dl=g + 3, after=[prev], later=[m0op]); k += 1
        ops.append(o); prev = o
    sp = None
    i = 0
    while i < len(salu):
        if salu[i].startswith("s_cmp"):
            txt = salu[i] + "\n" + salu[i + 1]; i += 2
        else:
            txt = salu[i]; i += 1
        o = Op(txt, rel=4, dl=50, after=[sp, firstm0])
        if "\n" in txt: o.glue = 4
        ops.append(o); sp = o
    if do_qk:
        for txt in vaddr:
            ops.append(Op(txt, rel=NS - 10, dl=NS - 2, after=[lastds, sp]))
        prevm = [None, None]
        n = 0
        for kt in range(0 if cfg.get("nomax") else 2):
            mrel = (22 if kt == 0 else 38) if do_pv else 40
            for qt in range(4):
                for hh in range(2):
                    qs = qt >> 1
                    b = Sreg(nxt, qt, kt) + 2 * hh
                    dl = cfg.get('mx_dl', 50) + n; n += 1
                    if prevm[qs] is None: o = Op(f"v_max_f32 {v(MXr(qs))}, {v(b)}, {v(b+1)}", rel=mrel, dl=dl)
                    else: o = Op(f"v_max3_f32 {v(MXr(qs))}, {v(MXr(qs))}, {v(b)}, {v(b+1)}", rel=mrel, dl=dl, after=[prevm[qs]])
                    ops.append(o); prevm[qs] = o
        o = None
        if not cfg.get("nomax"):
            o = Op(f"v_max_f32 {v(R.MXA)}, {v(MXr(0))}, {v(MXr(1))}", dl=NS - 2, after=prevm)
            ops.append(o)
        ops.append(Op(f"v_cmp_nge_f32 vcc, s{s.TE}, {v(R.MXA)}", dl=NS - 2, after=[o, sp]))
    pre = {}
    if not do_pv: pre[40] = ["s_nop 7"]
    body = schedule(mf, ops, budget=cfg.get("budget", 8), pre=pre, reserve={31: 4, NS - 1: 8}, verbose=cfg.get("verbose"), slack=cfg.get("slack", 1000))
    lines = []
    for b in body: lines += b.split("\n")
    return auto_lgkm(lines, lookback=cfg.get("lookback", 12))

def rowred(A, reg, tmp, op):
    A(f"v_mov_b32 {v(tmp)}, {v(reg)}\ns_nop 1\nv_permlane16_swap_b32 {v(reg)}, {v(tmp)}\n{op} {v(reg)}, {v(reg)}, {v(tmp)}")
    A(f"v_mov_b32 {v(tmp)}, {v(reg)}\ns_nop 1\nv_permlane32_swap_b32 {v(reg)}, {v(tmp)}\n{op} {v(reg)}, {v(reg)}, {v(tmp)}")

def rowmax(A, nxt, qt, mx):
    b = Sreg(nxt, qt)
    A(f"v_max3_f32 {v(mx)}, {v(b)}, {v(b+1)}, {v(b+2)}\nv_max3_f32 {v(mx)}, {v(mx)}, {v(b+3)}, {v(b+4)}")
    A(f"v_max3_f32 {v(mx)}, {v(mx)}, {v(b+5)}, {v(b+6)}\nv_max_f32 {v(mx)}, {v(mx)}, {v(b+7)}")
    rowred(A, mx, R.TMP, "v_max_f32")

def apply_mask(A, qs, sD):
    s = SG
    ld, le = A.newlabel("Lmd"), A.newlabel("Lme")
    A(f"s_cmp_lt_i32 s{sD}, 0\ns_cbranch_scc1 {le}")
    A(f"s_cmp_eq_i32 s{sD}, 0\ns_cbranch_scc1 {ld}")
    for r in range(16): A(f"v_mov_b32 {v(Nreg(2*qs)+r)}, {v(R.NINF)}")
    A(f"s_branch {le}")
    A.label(ld)
    for r in range(4):
        A(f"v_cndmask_b32 {v(Nreg(2*qs,0)+r)}, {v(Nreg(2*qs,0)+r)}, {v(R.NINF)}, s[{s.MASK+2*r}:{s.MASK+2*r+1}]")
        A(f"v_mov_b32 {v(Nreg(2*qs,1)+r)}, {v(R.NINF)}")
        A(f"v_cndmask_b32 {v(Nreg(2*qs+1,1)+r)}, {v(Nreg(2*qs+1,1)+r)}, {v(R.NINF)}, s[{s.MASK+2*r}:{s.MASK+2*r+1}]")
    A.label(le)

def pk_scalar(op, A, base, n, sc):
    for i in range(0, n, 2):
        A(f"{op} {v(base+i,2)}, {v(base+i,2)}, {v(sc,2)} op_sel_hi:[1,0]")

def slow_path(A, nxt, slots=(0, 1)):
    A("s_nop 7")
    mx = R.MX
    for qs in slots:
        for qt in (2 * qs, 2 * qs + 1):
            rowmax(A, nxt, qt, mx)
            A(f"v_ceil_f32 {v(mx)}, {v(mx)}\nv_max_f32 {v(mx)}, 0, {v(mx)}")
            A(f"v_add_f32 {v(R.M+qt)}, {v(R.M+qt)}, {v(mx)}\nv_sub_f32 {v(mx)}, 0, {v(mx)}")
            pk_scalar("v_pk_add_f32", A, Sreg(nxt, qt), 8, mx)
            A(f"v_exp_f32 {v(mx)}, {v(mx)}")
            A(f"v_sub_f32 {v(R.TMP)}, 0, {v(R.M+qt)}")
            for i in range(8): A(f"v_mov_b32 {v(Nreg(qt)+i)}, {v(R.TMP)}")
            A(f"v_accvgpr_read_b32 {v(R.TMP)}, {a(R.LS+qt*4)}\nv_mul_f32 {v(R.TMP)}, {v(R.TMP)}, {v(mx)}")
            for i in range(4): A(f"v_accvgpr_write_b32 {a(R.LS+qt*4+i)}, {v(R.TMP)}")
            pk_scalar("v_pk_mul_f32", A, Oreg(qt), 32, mx)
    A("s_nop 1")

def init_path(A, nxt, qs):
    mx = MXr(1)
    for qt in (2 * qs, 2 * qs + 1):
        rowmax(A, nxt, qt, mx)
        A(f"v_max_f32 {v(mx)}, 0xf149f2ca, {v(mx)}")
        A(f"v_ceil_f32 {v(R.M+qt)}, {v(mx)}\nv_sub_f32 {v(mx)}, 0, {v(R.M+qt)}")
        pk_scalar("v_pk_add_f32", A, Sreg(nxt, qt), 8, mx)
        for i in range(8): A(f"v_mov_b32 {v(Nreg(qt)+i)}, {v(mx)}")
        for i in range(4): A(f"v_accvgpr_write_b32 {a(R.LS+qt*4+i)}, 0")
        for i in range(32): A(f"v_mov_b32 {v(Oreg(qt)+i)}, 0")

def ctx_addr(A, sblk):
    s = SG
    A(f"s_lshl_b32 s{s.T0}, s{sblk}, 2\ns_add_u32 s{s.T0}, s{s.T0}, s{s.W}\ns_lshl_b32 s{s.T0}, s{s.T0}, 18")
    A(f"s_lshl_b32 s{s.T1}, s{s.H}, 12\ns_add_u32 s{s.T0}, s{s.T0}, s{s.T1}\ns_add_u32 s{s.T0}, s{s.T0}, {hex(WS_CTX)}")
    A(f"s_add_u32 s{s.T1}, s{s.T0}, 0x20000")

def store_frag(A, f, src, dst):
    s = SG
    for p in range(4):
        A(f"v_cvt_pk_bf16_f32 {v(dst + p)}, {v(src+2*p)}, {v(src+2*p+1)}")
    A(f"buffer_store_dwordx4 {v(dst,4)}, {v(R.LANE16)}, s[{s.WS}:{s.WS+3}], s{s.T0 if f < 4 else s.T1} offen offset:{(f&3)*1024} sc1")

def epilogue_b(A):
    s = SG
    ctx_addr(A, s.I)
    A("s_nop 3")
    for q in range(2):
        A(f"v_accvgpr_read_b32 {v(R.TMP)}, {a(R.LS+(2+q)*4)}\ns_nop 0\nv_rcp_f32 {v(R.TMP)}, {v(R.TMP)}\ns_nop 0")
        for e in range(4):
            b = Oreg(2 + q) + e * 8
            pk_scalar("v_pk_mul_f32", A, b, 8, R.TMP)
            store_frag(A, q * 4 + e, b, 32 + (q * 4 + e) * 4)

def epilogue_a(A):
    s = SG
    A(f"s_mul_i32 s{s.T0}, s{s.W}, 17408\ns_xor_b32 s{s.T1}, s{s.W}, 1\ns_mul_i32 s{s.T1}, s{s.T1}, 17408")
    A(f"v_add_u32 {v(R.KADDR)}, s{s.T0}, {v(R.LANE16)}\nv_add_u32 {v(R.VADDR)}, s{s.T1}, {v(R.LANE16)}")
    A(f"v_mov_b32 v96, {v(R.M+2)}\nv_mov_b32 v97, {v(R.M+3)}\ns_nop 3")
    A(f"v_accvgpr_read_b32 v98, {a(R.LS+8)}\nv_accvgpr_read_b32 v99, {a(R.LS+12)}")
    A(f"v_accvgpr_read_b32 v100, {a(R.LS)}\nv_accvgpr_read_b32 v101, {a(R.LS+4)}")
    A("s_waitcnt vmcnt(0)\ns_barrier")
    A(f"ds_write_b128 {v(R.KADDR)}, v[96:99] offset:16384")
    for i in range(16):
        A(f"ds_write_b128 {v(R.KADDR)}, {v(Oreg(2)+i*4,4)} offset:{i*1024}")
    ctx_addr(A, s.BA)
    A("s_waitcnt lgkmcnt(0)\ns_barrier")
    A(f"ds_read_b128 v[96:99], {v(R.VADDR)} offset:16384")
    for i in range(16):
        A(f"ds_read_b128 {v(i*4,4)}, {v(R.VADDR)} offset:{i*1024}")
    A("s_waitcnt lgkmcnt(15)")
    for q in range(2):
        W0, W1 = 102 + q * 4, 104 + q * 4
        A(f"v_max_f32 {v(R.MXA)}, {v(R.M+q)}, v{96+q}")
        A(f"v_sub_f32 {v(W0)}, {v(R.M+q)}, {v(R.MXA)}\nv_sub_f32 {v(W1)}, v{96+q}, {v(R.MXA)}")
        A(f"v_exp_f32 {v(W0)}, {v(W0)}\nv_exp_f32 {v(W1)}, {v(W1)}\ns_nop 0")
        A(f"v_mul_f32 v{100+q}, v{100+q}, {v(W0)}\nv_fma_f32 v{100+q}, v{98+q}, {v(W1)}, v{100+q}")
        A(f"v_rcp_f32 v{100+q}, v{100+q}\ns_nop 0")
        A(f"v_mul_f32 {v(W0)}, {v(W0)}, v{100+q}\nv_mul_f32 {v(W1)}, {v(W1)}, v{100+q}")
    for f in range(8):
        q = f >> 2
        W0, W1 = 102 + q * 4, 104 + q * 4
        b = Oreg(0) + f * 8
        pk_scalar("v_pk_mul_f32", A, b, 8, W0)
        A(f"s_waitcnt lgkmcnt({14 - 2*f})")
        for i in range(0, 8, 2):
            A(f"v_pk_fma_f32 {v(b+i,2)}, {v(f*8+i,2)}, {v(W1,2)}, {v(b+i,2)} op_sel_hi:[1,0,1]")
        store_frag(A, f, b, 64 + f * 4)

def weave(mf, fill, budget=8):
    out = []
    fl = []
    for t in fill: fl += t.split("\n")
    i = 0
    for g in range(len(mf)):
        out.append(mf[g])
        used = 0; first = True
        while i < len(fl):
            t = fl[i]
            c = 8 if t.startswith("buffer") else (0 if (first and t.startswith("s_")) else 4)
            if t.startswith("buffer") and out[-1].startswith("s_add_u32 m0"): break
            if g < len(mf) - 1 and used + c > budget: break
            out.append(t); used += c; i += 1; first = False
    assert i == len(fl)
    return out

def weave2(mf, reads, vmem, valu=(), first=1, last=None):
    n = len(mf)
    last = n - 2 if last is None else last
    gaps = [[] for _ in range(n)]
    busy = [0] * n
    vm = []
    for t in vmem: vm += t.split("\n")
    nb = sum(1 for t in vm if t.startswith("buffer"))
    k = 0; pend = []; prevg = -1
    for t in vm:
        if t.startswith("buffer"):
            g = first + (k * (last - first + 1)) // max(nb, 1)
            g = max(g, prevg + 1 + (1 if pend else 0))
            g = min(g, n - 1)
            lo = prevg + 1
            for j, p in enumerate(pend):
                gg = max(lo, g - len(pend) + j)
                if gg >= g: gg = max(lo, g - 1)
                if gg >= g:
                    gaps[g].append(p);
                    if j == len(pend) - 1: gaps[g].append("s_nop 0")
                else: gaps[gg].append(p)
            pend = []
            gaps[g].append(t); busy[g] += 8; prevg = g; k += 1
        elif t == "s_nop 0": continue
        else: pend.append(t)
    for p in pend: gaps[min(prevg + 1, n - 1)].append(p)
    for g in range(n): busy[g] += 4 * max(0, sum(1 for t in gaps[g] if t.startswith("s_")) - 1)
    g = 0
    for t in reads:
        c = 8 if "b128" in t else 4
        while g < n - 1 and busy[g] + c > 8: g += 1
        gaps[g].append(t); busy[g] += c
    g = min(g + 1, n - 1)
    for t in valu:
        while g < n - 1 and busy[g] + 4 > 8: g += 1
        gaps[g].append(t); busy[g] += 4
    out = []
    for g in range(n):
        out.append(mf[g]); out += gaps[g]
    return out

def attention(A, cfg, fcfg, late=()):
    s = SG
    THRESH = cfg.get("thresh", 0x42800000)
    A(f"s_add_u32 s{s.T0}, s{s.DST}, 0x10000\ns_xor_b32 s{s.T1}, s{s.T0}, 0x2000")
    A(f"v_add_u32 {v(R.T2)}, s{s.T1}, {v(R.LANE16)}\nv_mov_b32 {v(R.NINF)}, 0xff800000")
    L = R.LANE; T = R.T2 + 1
    A(f"v_and_b32 {v(T)}, 15, {v(L)}\nv_lshrrev_b32 {v(T+1)}, 4, {v(L)}\nv_lshlrev_b32 {v(T+1)}, 2, {v(T+1)}\nv_sub_u32 {v(T)}, {v(T)}, {v(T+1)}")
    for r in range(4):
        A(f"v_cmp_gt_i32 s[{s.MASK+2*r}:{s.MASK+2*r+1}], {r}, {v(T)}")
    for i in range(32): A(f"v_mov_b32 {v(R.NEGM+i)}, 0")
    A(f"v_mov_b32 {v(R.TMP)}, 0x3f803f80")
    for i in range(4): A(f"v_accvgpr_write_b32 {a(R.ONES+i)}, {v(R.TMP)}")
    A(f"s_cmp_eq_u32 s{s.I}, 0\ns_cbranch_scc0 K2_nm0")
    A(f"s_sub_u32 s{s.T0}, 0, s{s.W}")
    apply_mask(A, 1, s.T0)
    A.label("K2_nm0")
    A("s_waitcnt lgkmcnt(0)\ns_barrier")
    for f in range(8): A(f"ds_read_b128 {a(R.QN + f*4, 4)}, {v(R.T2)} offset:{f*1024}")
    A(f"v_add_u32 {v(R.KADDR)}, {3*32768 + 8192}, {v(R.LANE16)}")
    A(f"s_mov_b32 s{s.SL0}, 0\ns_mov_b32 s{s.SL1}, {4*32768}\ns_mov_b32 s{s.SL2}, {3*32768}")
    A(f"s_mov_b32 s{s.NI}, 0x7fc00000\ns_mov_b32 s{s.TE}, s{s.T}")
    va = [f"v_add_u32 {v(R.KADDR)}, s{s.SL1}, {v(R.LANE16)}", f"v_mov_b32 {v(R.VADDR)}, {v(R.LANE16)}"]
    for ln in period(cfg, 1, 0, [], [], va, do_pv=False): A(ln)
    A("s_waitcnt vmcnt(0) lgkmcnt(0)\ns_barrier")
    A(f"v_accvgpr_read_b32 {v(R.TMP)}, a255\nv_mov_b32 {v(R.TMP+1)}, 1\ns_nop 0\nbuffer_store_dword {v(R.TMP+1)}, {v(R.TMP)}, s[{s.WS}:{s.WS+3}], 0 offen sc1")
    for t in dma_half(cfg, 0, slot_imm=2 * 32768) + dma_half(cfg, 1): A(t)
    for t in late: A(t)
    init_path(A, 0, 0)
    init_path(A, 0, 1)
    if cfg.get("nomax"): A(f"v_mov_b32 {v(R.MXA)}, 0\nv_mov_b32 {v(MXr(0))}, 0")
    stamp(A, cfg, 2); stamp(A, fcfg, 6)
    A(f"s_cmp_le_u32 s{s.REM}, 5\ns_cbranch_scc1 K2_h1b")
    def rare(tag, nxt, lim, cont):
        A.label(f"K2_rare{tag}")
        A(f"v_cmp_lt_f32 vcc, s{s.T}, {v(R.MXA)}\ns_nop 4\ns_cbranch_vccz K2_rs{tag}")
        slow_path(A, nxt)
        A.label(f"K2_rs{tag}")
        A(f"s_cmp_le_u32 s{s.REM}, {lim}\ns_cbranch_scc0 {cont}")
    def mask_a(off):
        A(f"s_and_b32 s{s.T2}, s{s.W}, 1\ns_add_u32 s{s.T2}, s{s.T2}, {off}\ns_sub_u32 s{s.T0}, s{s.T2}, s{s.W}")
        apply_mask(A, 0, s.T0)
        A(f"s_xor_b32 s{s.T0}, s{s.W}, 1\ns_sub_u32 s{s.T0}, s{s.T2}, s{s.T0}")
        apply_mask(A, 1, s.T0)
    A.raw(".p2align 6")
    A.label("K2_loop1")
    chk = []
    sa = [f"s_add_u32 s{s.T0}, s{s.SL1}, 0x2000", f"s_add_u32 s{s.T1}, s{s.SL0}, s{s.KP}", f"s_cmp_eq_u32 s{s.REM}, 2",
          f"s_cselect_b32 s{s.T0}, s{s.T1}, s{s.T0}"] + rem_ops(5)
    va = [f"v_add_u32 {v(R.KADDR)}, s{s.T0}, {v(R.LANE16)}"]
    p = ["s_waitcnt vmcnt(16) lgkmcnt(0)", "s_barrier"] + period(cfg, 0, 16384, dma_half(cfg, 0, slot_sg=s.SL2), sa, va)
    chk += p
    for ln in p: A(ln)
    A("s_cbranch_vccnz K2_rare10")
    A.label("K2_c1a")
    va = [f"v_add_u32 {v(R.KADDR)}, s{s.SL1}, {v(R.LANE16)}", f"v_add_u32 {v(R.VADDR)}, s{s.SL0}, {v(R.LANE16)}"]
    p = ["s_waitcnt lgkmcnt(0)"] + period(cfg, 1, 16384 + 8192, dma_half(cfg, 1), rot_slots() + rem_ops(5), va)
    chk += p
    for ln in p: A(ln)
    A("s_cbranch_vccz K2_loop1")
    check_hazards(chk + chk)
    rare("11", 0, 5, "K2_loop1")
    A.label("K2_h1b")
    A(f"s_cmp_eq_u32 s{s.REM}, 0\ns_cbranch_scc1 K2_trans")
    A(f"s_sub_u32 s{s.T0}, 5, s{s.REM}\ns_sub_u32 s{s.T0}, s{s.T0}, s{s.W}")
    apply_mask(A, 1, s.T0)
    A(f"s_cmp_eq_u32 s{s.REM}, 2\ns_cbranch_scc0 K2_loop1")
    A(f"v_add_u32 {v(R.KADDR)}, s{s.KP}, {v(R.KADDR)}")
    A("s_branch K2_loop1")
    rare("10", 1, 5, "K2_c1a")
    A(f"s_cmp_eq_u32 s{s.REM}, 1\ns_cbranch_scc1 K2_swap")
    A(f"s_sub_u32 s{s.T0}, 5, s{s.REM}\ns_sub_u32 s{s.T0}, s{s.T0}, s{s.W}")
    apply_mask(A, 1, s.T0)
    A("s_branch K2_c1a")
    A.label("K2_swap")
    for i in range(32): A(f"v_accvgpr_mov_b32 {a(Qreg(2)+i)}, {a(R.QN+i)}")
    for i in range(16): A(f"v_mov_b32 {v(R.NEGM+16+i)}, 0")
    A(f"s_mov_b32 s{s.T}, 0x7f800000")
    A(f"s_cmp_eq_u32 s{s.I}, 7\ns_cbranch_scc0 K2_c1a")
    mask_a(0)
    A("s_branch K2_c1a")
    A.label("K2_trans")
    stamp(A, cfg, 3)
    epilogue_b(A)
    init_path(A, 0, 1)
    A(f"s_mov_b32 s{s.T}, {hex(THRESH)}")
    A(f"v_cmp_lt_f32 vcc, s{s.T}, {v(MXr(0))}")
    A(f"s_add_u32 s{s.T0}, s{s.SL0}, s{s.KP}\nv_add_u32 {v(R.KADDR)}, s{s.T0}, {v(R.LANE16)}\nv_mov_b32 {v(R.VADDR)}, {v(R.KADDR)}")
    A(f"s_lshl_b32 s{s.REM}, s{s.I}, 2\ns_sub_u32 s{s.REM}, 30, s{s.REM}")
    A("s_cbranch_vccz K2_t1")
    slow_path(A, 0, slots=(0,))
    A.label("K2_t1")
    stamp(A, cfg, 4)
    A(f"s_cmp_eq_u32 s{s.REM}, 2\ns_cbranch_scc1 K2_h2b")
    A.raw(".p2align 6")
    A.label("K2_loop2")
    chk = []
    sa = rot_slots() + [f"s_add_u32 s{s.T0}, s{s.SL0}, s{s.KP}"] + rem_ops(3)
    va = [f"v_add_u32 {v(R.KADDR)}, s{s.T0}, {v(R.LANE16)}", f"v_add_u32 {v(R.VADDR)}, s{s.T0}, {v(R.LANE16)}"]
    for cur in range(2):
        p = ["s_waitcnt vmcnt(16) lgkmcnt(0)", "s_barrier"] + period(cfg, cur, 16384, dma_half(cfg, 0, slot_sg=s.SL2) + dma_half(cfg, 1), sa, va)
        chk += p
        for ln in p: A(ln)
        if cur == 0:
            A("s_cbranch_vccnz K2_rare20")
            A.label("K2_c2a")
        else:
            A("s_cbranch_vccz K2_loop2")
    check_hazards(chk + chk)
    rare("21", 0, 3, "K2_loop2")
    A.label("K2_h2b")
    mask_a(2)
    A(f"s_lshr_b32 s{s.T0}, s{s.H}, 2\ns_lshl_b32 s{s.T0}, s{s.T0}, 7\ns_add_u32 s{s.T0}, s{s.T0}, 0x3c03000\nv_and_b32 {v(R.TMP)}, 31, {v(R.LANE)}\nv_lshlrev_b32 {v(R.TMP)}, 2, {v(R.TMP)}")
    A(f"buffer_load_dword a253, {v(R.TMP)}, s[{s.WS}:{s.WS+3}], s{s.T0} offen sc1")
    A("s_branch K2_loop2")
    rare("20", 1, 3, "K2_c2a")
    A(f"s_cmp_eq_u32 s{s.REM}, 1\ns_cbranch_scc1 K2_tail")
    mask_a(0)
    A("s_branch K2_c2a")
    A.label("K2_tail")
    stamp(A, cfg, 5)
    A(f"s_lshr_b32 s{s.T0}, s{s.H}, 2\ns_lshl_b32 s{s.T0}, s{s.T0}, 7\ns_add_u32 s{s.T0}, s{s.T0}, {hex((60 << 20) + 12288)}\nv_and_b32 v0, 31, {v(R.LANE)}\nv_lshlrev_b32 v0, 2, v0\ns_mov_b32 s{s.T1}, 0")
    A("s_waitcnt vmcnt(8)\nv_accvgpr_read_b32 v1, a253")
    A.label("B2_poll")
    A(f"v_cmp_ne_u32 vcc, 1, v1\ns_add_u32 s{s.T1}, s{s.T1}, 1\ns_nop 3\ns_cbranch_vccz B2_go\ns_sleep 2")
    A(f"buffer_load_dword v1, v0, s[{s.WS}:{s.WS+3}], s{s.T0} offen sc1\ns_waitcnt vmcnt(0)\ns_cmp_lt_u32 s{s.T1}, 0x40000\ns_cbranch_scc1 B2_poll")
    A.label("B2_go")
```

```python
from gen_common import *
import gen_att as att
from gen_att import weave2, pk_scalar, Oreg, ctx_addr

WS_PART = 64 << 20
WS_FLAG = 60 << 20
F_B = 12288; F_OF = 13312; F_CTX = 16384
OOB = 0x7ffffff0

class R:
    FR = 0; WV = 128; BV = 132; WA = 136; WB = 140; CA = 142; WC = 144; CC = 148; PA = 149; PV = 150; ONE = 151; T = 152
    FA = 240; FO = 241; PB = 242
    LANE16 = 252; LANE = 253; BACC = 64

class SG(att.SG):
    WO = 8; WB = 12; OUT = 16
    SL = 64; RB = 65; CB = 66; D4 = 31; CO = 67; WOO = 68; OFO = 69; WBO = 70; RT = 71; CT = 72; PO = 73; FO = 74
    PTR = 76

NSLOT = 4
def sl(n): return (n % NSLOT) * 32768
def tagged(lines, tag): return [l + f" ; @{tag}" if l.startswith("buffer") else l for l in lines]

def spin(A, tag, ld, chk, tmp):
    A(chk + f"\ns_mov_b32 s{tmp}, 0\ns_nop 3\ns_cbranch_vccz BK_rdy{tag}")
    A.label(f"BK_poll{tag}")
    A(f"s_sleep 1\n{ld} ; @opt\ns_waitcnt vmcnt(0)")
    A(chk + f"\ns_add_u32 s{tmp}, s{tmp}, 1\ns_nop 3\ns_cbranch_vccz BK_rdy{tag}\ns_cmp_lt_u32 s{tmp}, 0x40000\ns_cbranch_scc1 BK_poll{tag}")
    A.label(f"BK_rdy{tag}")

def back(A, cfg):
    s = SG; AR = att.R
    L = R.LANE; T = R.T
    XB = 77824
    A("s_load_dwordx2 s[40:41], s[0:1], 80")
    A("s_waitcnt vmcnt(16) lgkmcnt(0)\ns_barrier")
    for ln in att.period(cfg, 1, 16384, [], [], [], do_qk=False): A(ln)
    stamp(A, cfg, 1)
    A(f"s_mul_i32 s{s.T0}, s{s.W}, 17408\ns_xor_b32 s{s.T1}, s{s.W}, 1\ns_mul_i32 s{s.T1}, s{s.T1}, 17408\ns_add_u32 s{s.T0}, s{s.T0}, {XB}\ns_add_u32 s{s.T1}, s{s.T1}, {XB}")
    A(f"v_add_u32 {v(AR.KADDR)}, s{s.T0}, {v(R.LANE16)}\nv_add_u32 {v(AR.VADDR)}, s{s.T1}, {v(R.LANE16)}")
    A(f"v_mov_b32 v96, {v(AR.M+2)}\nv_mov_b32 v97, {v(AR.M+3)}")
    A(f"s_lshr_b32 s{s.T0}, s{s.H}, 3\ns_lshl_b32 s{s.T0}, s{s.T0}, 11\ns_and_b32 s{s.T1}, s{s.H}, 7\ns_lshl_b32 s{s.T1}, s{s.T1}, 2\ns_add_u32 s{s.T0}, s{s.T0}, s{s.T1}\ns_add_u32 s{s.T0}, s{s.T0}, {hex(WS_FLAG + F_CTX)}")
    A(f"s_cmp_eq_u32 s{s.W}, 0\ns_cselect_b32 s{s.T0}, s{s.T0}, {hex(OOB - 0x10000)}\nv_mov_b32 v110, {hex(OOB - 0x10000)}\nv_writelane_b32 v110, s{s.T0}, 0\nv_mov_b32 v111, 1")
    A(f"s_lshl_b32 s{s.SL}, s{s.I}, 7\ns_lshl_b32 s{s.RB}, s{s.BA}, 7")
    A(f"v_accvgpr_read_b32 v98, {a(AR.LS+8)}\nv_accvgpr_read_b32 v99, {a(AR.LS+12)}")
    A(f"v_accvgpr_read_b32 v100, {a(AR.LS)}\nv_accvgpr_read_b32 v101, {a(AR.LS+4)}")
    A("s_waitcnt vmcnt(0)\ns_barrier")
    A(f"buffer_store_dword v111, v110, s[{s.WS}:{s.WS+3}], s{s.SL} offen sc1 ; @sig")
    A(f"ds_write_b128 {v(AR.KADDR)}, v[96:99] offset:16384")
    for i in range(16): A(f"ds_write_b128 {v(AR.KADDR)}, {v(Oreg(2)+i*4,4)} offset:{i*1024}")
    ctx_addr(A, s.BA)
    A("s_waitcnt lgkmcnt(0)\ns_barrier")
    A(f"ds_read_b128 v[96:99], {v(AR.VADDR)} offset:16384")
    for i in range(16): A(f"ds_read_b128 {v(i*4,4)}, {v(AR.VADDR)} offset:{i*1024}")
    A(f"s_lshl_b32 s{s.CB}, s{s.H}, 16\ns_lshl_b32 s{s.CO}, s{s.W}, 14\ns_add_u32 s{s.CB}, s{s.CB}, s{s.CO}\ns_add_u32 s{s.CB}, s{s.CB}, {hex(WS_KVP)}")
    b2l = []
    for j in range(16):
        b2l.append(f"buffer_load_dwordx4 {v(176 + j*4, 4)}, {v(R.LANE16)}, s[{s.WS}:{s.WS+3}], s{s.CB} offen offset:{(j&3)*1024} sc1 ; @kp" + ("\n" + f"s_add_u32 s{s.CB}, s{s.CB}, 0x1000" if j % 4 == 3 else ""))
    b2l.append(f"s_lshl_b32 s{s.CB}, s{s.H}, 12\ns_lshl_b32 s{s.CO}, s{s.W}, 10\ns_add_u32 s{s.CB}, s{s.CB}, s{s.CO}\ns_add_u32 s{s.CB}, s{s.CB}, {hex(WS_KVP + (2 << 20))}\n"
               f"buffer_load_dwordx4 {a(244, 4)}, {v(R.LANE16)}, s[{s.WS}:{s.WS+3}], s{s.CB} offen sc1 ; @kp")
    b2l.append(f"s_lshl_b32 s{s.CB}, s{s.H}, 17\ns_lshl_b32 s{s.CO}, s{s.I}, 14\ns_add_u32 s{s.CB}, s{s.CB}, s{s.CO}\ns_add_u32 s{s.CB}, s{s.CB}, s{s.D4}\ns_add_u32 s{s.CB}, s{s.CB}, {hex(WS_PHIQ)}")
    for q in range(4): b2l.append(f"buffer_load_dwordx4 {a(128 + q*4, 4)}, {v(R.LANE16)}, s[{s.WS}:{s.WS+3}], s{s.CB} offen offset:{q*1024} sc1 ; @kp")
    npre = cfg.get("b2_pre", 8)
    for x in b2l[:npre]: A(x)
    A("s_waitcnt lgkmcnt(15)")
    for q in range(2):
        W0, W1 = 102 + q * 4, 104 + q * 4
        A(f"v_max_f32 {v(AR.MXA)}, {v(AR.M+q)}, v{96+q}")
        A(f"v_sub_f32 {v(W0)}, {v(AR.M+q)}, {v(AR.MXA)}\nv_sub_f32 {v(W1)}, v{96+q}, {v(AR.MXA)}")
        A(f"v_exp_f32 {v(W0)}, {v(W0)}\nv_exp_f32 {v(W1)}, {v(W1)}\ns_nop 0")
        A(f"v_mul_f32 v{100+q}, v{100+q}, {v(W0)}\nv_fma_f32 v{100+q}, v{98+q}, {v(W1)}, v{100+q}")
        A(f"v_rcp_f32 v{100+q}, v{100+q}\ns_nop 0")
        A(f"v_mul_f32 {v(W0)}, {v(W0)}, v{100+q}\nv_mul_f32 {v(W1)}, {v(W1)}, v{100+q}")
    for f in range(8):
        q = f >> 2
        W0, W1 = 102 + q * 4, 104 + q * 4
        b = Oreg(0) + f * 8
        pk_scalar("v_pk_mul_f32", A, b, 8, W0)
        A(f"s_waitcnt lgkmcnt({14 - 2*f})")
        for i in range(0, 8, 2):
            A(f"v_pk_fma_f32 {v(b+i,2)}, {v(f*8+i,2)}, {v(W1,2)}, {v(b+i,2)} op_sel_hi:[1,0,1]")
        dst = 64 + f * 4
        for p in range(4): A(f"v_cvt_pk_bf16_f32 {v(dst + p)}, {v(b+2*p)}, {v(b+2*p+1)}")
        A(f"buffer_store_dwordx4 {v(dst,4)}, {v(R.LANE16)}, s[{s.WS}:{s.WS+3}], s{s.T0 if f < 4 else s.T1} offen offset:{(f&3)*1024} sc1 ; @cs")
    A(f"v_add_u32 {v(R.FA)}, s{s.RB}, v110\nv_mov_b32 {v(R.ONE)}, 1")
    for x in b2l[npre:]: A(x)
    stamp(A, cfg, 2)
    A(f"s_bfe_u32 s{s.SL}, s2, 0x20001\ns_and_b32 s{s.RB}, s2, 1\ns_lshl_b32 s{s.RB}, s{s.RB}, 3\ns_add_u32 s{s.RB}, s{s.RB}, s{s.I}\ns_bfe_u32 s{s.CB}, s2, 0x20003")
    A(f"s_mov_b32 s{s.RT}, s{s.H}\ns_mov_b32 s{s.CT}, s{s.I}")
    A(f"s_lshl_b32 s{s.CO}, s{s.RB}, 20\ns_lshl_b32 s{s.T0}, s{s.W}, 18\ns_add_u32 s{s.CO}, s{s.CO}, s{s.T0}\ns_lshl_b32 s{s.T0}, s{s.SL}, 15\ns_add_u32 s{s.CO}, s{s.CO}, s{s.T0}\ns_add_u32 s{s.CO}, s{s.CO}, {hex(WS_CTX)}")
    A(f"s_lshl_b32 s{s.WOO}, s{s.SL}, 20\ns_lshl_b32 s{s.T0}, s{s.W}, 14\ns_add_u32 s{s.WOO}, s{s.WOO}, s{s.T0}\ns_lshl_b32 s{s.T0}, s{s.CB}, 8\ns_add_u32 s{s.WOO}, s{s.WOO}, s{s.T0}")
    A(f"s_lshl_b32 s{s.OFO}, s{s.RT}, 16\ns_lshl_b32 s{s.T0}, s{s.W}, 14\ns_add_u32 s{s.OFO}, s{s.OFO}, s{s.T0}\ns_add_u32 s{s.OFO}, s{s.OFO}, {hex(WS_OF)}")
    A(f"s_lshl_b32 s{s.WBO}, s{s.W}, 15\ns_lshl_b32 s{s.T0}, s{s.CT}, 7\ns_add_u32 s{s.WBO}, s{s.WBO}, s{s.T0}")
    A(f"v_lshrrev_b32 {v(T)}, 4, {v(L)}\nv_lshlrev_b32 {v(T+1)}, 1, {v(T)}\nv_and_b32 {v(T+2)}, 15, {v(L)}\nv_xor_b32 {v(T+1)}, {v(T+1)}, {v(T+2)}\nv_lshlrev_b32 {v(T+1)}, 4, {v(T+1)}")
    A(f"v_lshl_add_u32 {v(R.WV)}, {v(T)}, 10, {v(T+1)}\nv_xor_b32 {v(T)}, 128, {v(R.WV)}")
    A(f"v_add_u32 {v(R.WV+1)}, 3072, {v(T)}\nv_add_u32 {v(R.WV+2)}, {3072*2}, {v(R.WV)}\nv_add_u32 {v(R.WV+3)}, {3072*3}, {v(T)}")
    srd(A, s.WO, s.PTR + 10, 4096 * 512 * 2); srd(A, s.WB, s.PTR + 18, 512 * 512 * 2); srd(A, s.OUT, 40, 2048 * 1024 * 2)
    def st_c(n):
        Ls = [f"s_add_u32 m0, s{s.D4}, {sl(n)}"]
        if n < 16:
            Ls.append(f"s_add_u32 s{s.SOFF}, s{s.CO}, {n*2048}")
            for j in range(2): Ls.append(f"buffer_load_dwordx4 {v(R.LANE16)}, s[{s.WS}:{s.WS+3}], s{s.SOFF} offen offset:{j*1024} sc1 lds")
            Ls.append(f"s_add_u32 s{s.SOFF}, s{s.CO}, {n*2048 + 131072 - 2048}")
            for j in range(2, 4): Ls.append(f"buffer_load_dwordx4 {v(R.LANE16)}, s[{s.WS}:{s.WS+3}], s{s.SOFF} offen offset:{j*1024} sc1 lds")
        else:
            Ls.append(f"s_add_u32 s{s.SOFF}, s{s.OFO}, {(n-16)*4096}")
            for j in range(4): Ls.append(f"buffer_load_dwordx4 {v(R.LANE16)}, s[{s.WS}:{s.WS+3}], s{s.SOFF} offen offset:{j*1024} sc1 lds")
        return tagged(Ls, f"s{n}")
    def st_w(n):
        Ls = [f"s_add_u32 m0, s{s.D4}, {sl(n) + 16384}"]
        if n < 16:
            Ls.append(f"s_add_u32 s{s.SOFF}, s{s.WOO}, {n*65536}")
            for j in range(4): Ls.append(f"buffer_load_dwordx4 {v(R.WV+j)}, s[{s.WO}:{s.WO+3}], s{s.SOFF} offen offset:{j*1024} lds")
        else:
            Ls.append(f"s_add_u32 s{s.SOFF}, s{s.WBO}, {(n-16)*131072}")
            for j in range(4): Ls.append(f"buffer_load_dwordx4 {v(R.BV+j)}, s[{s.WB}:{s.WB+3}], s{s.SOFF} offen offset:{j*1024} lds")
        return tagged(Ls, f"s{n}")
    for n in range(2):
        for ln in st_w(n): A(ln)
    A(f"s_lshl_b32 s{s.T0}, s{s.SL}, 4\ns_add_u32 s{s.T0}, s{s.T0}, s{s.RB}\ns_lshl_b32 s{s.T0}, s{s.T0}, 7\ns_add_u32 s{s.T0}, s{s.T0}, {hex(WS_FLAG + F_CTX)}")
    A(f"v_and_b32 {v(T)}, 7, {v(L)}\nv_lshl_add_u32 {v(R.PA)}, {v(T)}, 2, s{s.T0}")
    A(f"s_and_b32 s{s.T0}, s2, 7\ns_lshl_b32 s{s.T0}, s{s.T0}, 7\ns_add_u32 s{s.T0}, s{s.T0}, {hex(WS_FLAG + F_OF)}\nv_and_b32 {v(T)}, 31, {v(L)}\nv_lshl_add_u32 {v(R.PB)}, {v(T)}, 2, s{s.T0}")
    A(f"s_lshl_b32 s{s.T0}, s{s.I}, 7\ns_lshl_b32 s{s.T1}, s{s.H}, 2\ns_add_u32 s{s.T0}, s{s.T0}, s{s.T1}\ns_add_u32 s{s.T0}, s{s.T0}, {hex(WS_FLAG + F_OF)}")
    A(f"s_cmp_eq_u32 s{s.W}, 0\ns_cselect_b32 s{s.T0}, s{s.T0}, {hex(OOB)}\nv_mov_b32 {v(R.FO)}, {hex(OOB)}\nv_writelane_b32 {v(R.FO)}, s{s.T0}, 0")
    A(f"v_lshrrev_b32 {v(T)}, 4, {v(L)}\nv_lshlrev_b32 {v(T)}, 1, {v(T)}\nv_and_b32 {v(T+1)}, 7, {v(L)}\nv_xor_b32 {v(T)}, {v(T)}, {v(T+1)}\nv_lshlrev_b32 {v(T)}, 4, {v(T)}")
    A(f"v_lshrrev_b32 {v(T+1)}, 3, {v(L)}\nv_lshl_add_u32 {v(R.BV)}, {v(T+1)}, 10, {v(T)}")
    for j in range(1, 4): A(f"v_add_u32 {v(R.BV+j)}, {7168*j}, {v(R.BV)}")
    A(f"s_lshr_b32 s{s.T0}, s{s.W}, 1\ns_lshl_b32 s{s.T0}, s{s.T0}, 7")
    A(f"v_lshrrev_b32 {v(T)}, 2, {v(L)}\nv_lshlrev_b32 {v(T)}, 8, {v(T)}\nv_bfe_u32 {v(T+1)}, {v(L)}, 2, 3\nv_lshl_add_u32 {v(T)}, {v(T+1)}, 5, {v(T)}")
    A(f"v_and_b32 {v(T+1)}, 3, {v(L)}\nv_lshl_add_u32 {v(T)}, {v(T+1)}, 3, {v(T)}\nv_xor_b32 {v(T)}, s{s.T0}, {v(T)}\nv_add_u32 {v(R.WA)}, 0x4000, {v(T)}")
    for c in range(1, 4): A(f"v_xor_b32 {v(R.WA+c)}, {c<<5}, {v(R.WA)}")
    A(f"s_and_b32 s{s.T0}, s{s.W}, 1\ns_lshl_b32 s{s.T0}, s{s.T0}, 13\nv_add_u32 {v(R.CA)}, s{s.T0}, {v(R.LANE16)}")
    A(f"s_lshr_b32 s{s.T0}, s{s.W}, 1\ns_lshl_b32 s{s.T0}, s{s.T0}, 6")
    A(f"v_bfe_u32 {v(T)}, {v(L)}, 2, 3\nv_lshlrev_b32 {v(T)}, 7, {v(T)}\nv_lshrrev_b32 {v(T+1)}, 5, {v(L)}\nv_lshl_add_u32 {v(T)}, {v(T+1)}, 11, {v(T)}")
    A(f"v_bfe_u32 {v(T+1)}, {v(L)}, 3, 2\nv_lshl_add_u32 {v(T)}, {v(T+1)}, 5, {v(T)}\nv_and_b32 {v(T+1)}, 3, {v(L)}\nv_lshl_add_u32 {v(T)}, {v(T+1)}, 3, {v(T)}")
    A(f"v_xor_b32 {v(T)}, s{s.T0}, {v(T)}\nv_add_u32 {v(R.WB)}, 0x4000, {v(T)}\nv_xor_b32 {v(R.WB+1)}, 32, {v(R.WB)}")
    A(f"s_lshl_b32 s{s.T0}, s{s.RB}, 2\ns_add_u32 s{s.T0}, s{s.T0}, s{s.CB}\ns_lshl_b32 s{s.FO}, s{s.T0}, 7\ns_add_u32 s{s.FO}, s{s.FO}, {hex(WS_FLAG)}")
    A(f"s_lshl_b32 s{s.PO}, s{s.T0}, 17\ns_add_u32 s{s.PO}, s{s.PO}, {hex(WS_PART)}")
    pa_ld = f"buffer_load_dword {v(R.PV)}, {v(R.PA)}, s[{s.WS}:{s.WS+3}], 0 offen sc1"
    pb_ld = f"buffer_load_dword {v(R.PV)}, {v(R.PB)}, s[{s.WS}:{s.WS+3}], 0 offen sc1"
    chk = f"v_cmp_ne_u32 vcc, 1, {v(R.PV)}"
    A("WAITV cs\ns_barrier")
    A(f"buffer_store_dword {v(R.ONE)}, {v(R.FA)}, s[{s.WS}:{s.WS+3}], 0 offen sc1 ; @sig")
    for n in range(2, 4):
        for ln in st_w(n): A(ln)
    SC = 147456; X = 176; U = 64; Z = 0
    A(f"s_add_u32 s{s.T0}, s{s.D4}, {SC}\nv_add_u32 {v(U)}, s{s.T0}, {v(R.LANE16)}\nv_and_b32 {v(U+1)}, 0x70, {v(R.LANE16)}\nv_add_u32 {v(U+1)}, s{s.T0}, {v(U+1)}")
    A(f"v_lshrrev_b32 {v(U+2)}, 5, {v(L)}\nv_and_b32 {v(U+3)}, 31, {v(L)}\nv_lshl_add_u32 {v(U+4)}, {v(U+2)}, 4, {v(U+3)}\nv_lshlrev_b32 {v(U+4)}, 4, {v(U+4)}")
    A(f"v_lshlrev_b32 {v(U+5)}, 4, {v(U+2)}\nv_add_u32 {v(U+5)}, 0x800, {v(U+5)}\nv_cmp_gt_u32 vcc, 16, {v(U+3)}\nv_mov_b32 {v(U+8)}, 512\ns_nop 0")
    A(f"v_cndmask_b32 {v(U+4)}, {v(U+5)}, {v(U+4)}, vcc\nv_cndmask_b32 {v(U+8)}, 32, {v(U+8)}, vcc\nv_add_u32 {v(U+4)}, {SC}, {v(U+4)}")
    for q in range(1, 4): A(f"v_add_u32 {v(U+4+q)}, {v(U+8)}, {v(U+3+q)}")
    A(f"v_bfe_u32 {v(U+9)}, {v(L)}, 4, 1\nv_lshlrev_b32 {v(U+9)}, 14, {v(U+9)}\nv_and_b32 {v(U+10)}, 15, {v(L)}\nv_lshl_add_u32 {v(U+9)}, {v(U+10)}, 4, {v(U+9)}\nv_lshl_add_u32 {v(U+9)}, {v(U+2)}, 8, {v(U+9)}")
    A(f"s_lshl_b32 s{s.T0}, s{s.I}, 18\ns_lshl_b32 s{s.T1}, s{s.W}, 16\ns_add_u32 s{s.T0}, s{s.T0}, s{s.T1}\ns_lshl_b32 s{s.T1}, s{s.H}, 9\ns_add_u32 s{s.T0}, s{s.T0}, s{s.T1}\ns_add_u32 s{s.T0}, s{s.T0}, {hex(WS_OF)}\ns_add_u32 s{s.T1}, s{s.T0}, 0x8000")
    A("WAITV kp")
    for i in range(4): A(f"v_accvgpr_read_b32 {v(Z+i)}, {a(244+i)}")
    for w_ in (32, 16, 8):
        for i in range(0, w_, 2): A(f"v_pk_add_f32 {v(X+i,2)}, {v(X+i,2)}, {v(X+w_+i,2)}")
    for i in range(4): A(f"v_add_f32_dpp {v(Z+i)}, {v(Z+i)}, {v(Z+i)} row_ror:8 row_mask:0xf bank_mask:0xf")
    A(f"ds_write_b128 {v(U)}, {v(X,4)}\nds_write_b128 {v(U)}, {v(X+4,4)} offset:1024")
    for op in ("v_permlane16_swap_b32", "v_permlane32_swap_b32"):
        for i in range(4): A(f"v_mov_b32 {v(Z+4+i)}, {v(Z+i)}")
        A("s_nop 0")
        for i in range(4): A(f"{op} {v(Z+i)}, {v(Z+4+i)}")
        for i in range(4): A(f"v_add_f32 {v(Z+i)}, {v(Z+i)}, {v(Z+4+i)}")
    A(f"ds_write_b128 {v(U+1)}, {v(Z,4)} offset:2048")
    A(pa_ld + " ; @pa")
    A("s_waitcnt lgkmcnt(0)\ns_barrier")
    for src in range(4):
        for q in range(4): A(f"ds_read_b128 {v(X + src*16 + q*4, 4)}, {v(U+4+q)} offset:{src*4096}")
    A("s_waitcnt lgkmcnt(8)")
    for i in range(0, 16, 2): A(f"v_pk_add_f32 {v(X+i,2)}, {v(X+i,2)}, {v(X+16+i,2)}")
    A("s_waitcnt lgkmcnt(0)")
    for i in range(0, 16, 2): A(f"v_pk_add_f32 {v(X+32+i,2)}, {v(X+32+i,2)}, {v(X+48+i,2)}")
    for i in range(0, 16, 2): A(f"v_pk_add_f32 {v(X+i,2)}, {v(X+i,2)}, {v(X+32+i,2)}")
    for p in range(8): A(f"v_cvt_pk_bf16_f32 {v(X+16+p)}, {v(X+2*p)}, {v(X+2*p+1)}")
    A("s_nop 1")
    for t in range(2): A(f"{MF32} {v(X+32+t*16,16)}, {v(X+16,4)}, {a(128+t*8,4)}, 0")
    for t in range(2): A(f"{MF32} {v(X+32+t*16,16)}, {v(X+20,4)}, {a(128+t*8+4,4)}, {v(X+32+t*16,16)}")
    stamp(A, cfg, 3)
    A("WAITV pa")
    spin(A, "A", pa_ld, chk, s.T2)
    stamp(A, cfg, 4)
    for n in range(NSLOT):
        for ln in st_c(n): A(ln)
    for t in range(2):
        bb = X + 32 + t * 16
        A(f"v_add_f32 {v(bb+8)}, 0x358637bd, {v(bb+8)}\nv_rcp_f32 {v(bb+8)}, {v(bb+8)}\ns_nop 0")
        for i in range(0, 8, 2): A(f"v_pk_mul_f32 {v(bb+i,2)}, {v(bb+i,2)}, {v(bb+8,2)} op_sel_hi:[1,0]")
        for p in range(4): A(f"v_cvt_pk_bf16_f32 {v(bb+12+p)}, {v(bb+2*p)}, {v(bb+2*p+1)}")
        A(f"buffer_store_dwordx4 {v(bb+12,4)}, {v(U+9)}, s[{s.WS}:{s.WS+3}], s{s.T0 if t == 0 else s.T1} offen sc1 ; @of")
    def addr(n):
        if n < 16: return [f"v_add_u32 {v(R.WC+c)}, {sl(n)}, {v(R.WA+c)}" for c in range(4)] + [f"v_add_u32 {v(R.CC)}, {sl(n)}, {v(R.CA)}"]
        return [f"v_add_u32 {v(R.WC+c)}, {sl(n)}, {v(R.WB+c)}" for c in range(2)] + [f"v_add_u32 {v(R.CC)}, {sl(n)}, {v(R.CA)}"]
    def reads(k):
        t2 = k & 1; fs = R.FR + (k & 1) * 32
        Ls = []
        for i in range(4):
            Ls.append(f"ds_read_b128 {v(fs + 16 + i*4, 4)}, {v(R.CC)} offset:{i*2048 + t2*1024}")
            for rd in range(2): Ls.append(f"ds_read_b64_tr_b16 {v(fs + i*4 + rd*2, 2)}, {v(R.WC+i)} offset:{(32*t2 + 16*rd)*256}")
        return Ls
    for ln in addr(0): A(ln)
    A("WAITV s0\ns_barrier")
    for ln in reads(0): A(ln)
    for k in range(32):
        st, t2 = k >> 1, k & 1
        fs = R.FR + (k & 1) * 32
        tailv = []; vm = []
        if t2 == 1:
            tags = [f"s{st+1}"] if st < 15 else []
            if k == 25: tags.append("pb")
            if k == 7: tags.append("of")
            A(f"WAITV {','.join(tags)} L" if tags else "s_waitcnt lgkmcnt(0)")
            if k == 25: spin(A, "B", pb_ld, chk, s.T0)
            A("s_barrier")
            vm = st_c(st + NSLOT)
        else:
            A("s_waitcnt lgkmcnt(0)")
            if st < 15: tailv = addr(st + 1)
            if st >= 1: vm = st_w(st - 1 + NSLOT)
        if k == 31: vm = vm + st_w(19)
        if k == 20: vm = vm + [pb_ld + " ; @pb"]
        if k == 7: vm = [f"buffer_store_dword {v(R.ONE)}, {v(R.FO)}, s[{s.WS}:{s.WS+3}], 0 offen sc1 ; @sig"] + vm
        mf = []
        for c in range(4):
            for rt in range(4):
                acc = (rt * 4 + c) * 4
                mf.append(f"{MF16} {a(acc,4)}, {v(fs + c*4, 4)}, {v(fs + 16 + rt*4, 4)}, " + ("0" if k == 0 else a(acc, 4)))
        for b in weave2(mf, reads(k + 1) if k < 31 else [], vm, tailv, first=2): A(b)
    stamp(A, cfg, 5)
    A(f"s_lshl_b32 s{s.T0}, s{s.W}, 15\ns_lshl_b32 s{s.T1}, s{s.SL}, 13\ns_add_u32 s{s.T0}, s{s.T0}, s{s.T1}\ns_add_u32 s{s.T0}, s{s.T0}, s{s.PO}\ns_add_u32 s{s.T1}, s{s.T0}, 0x1000")
    for ln in addr(16): A(ln)
    A(f"v_add_u32 {v(T)}, 0x20000, {v(R.LANE16)}")
    A(f"s_cmp_eq_u32 s{s.W}, s{s.SL}\ns_cbranch_scc1 K3_own")
    for f in range(8):
        tb = (f & 3) * 12
        for i in range(8): A(f"v_accvgpr_read_b32 {v(tb+i)}, {a(f*8+i)}")
        for p in range(4): A(f"v_cvt_pk_bf16_f32 {v(tb+8+p)}, {v(tb+2*p)}, {v(tb+2*p+1)}")
        A(f"buffer_store_dwordx4 {v(tb+8,4)}, {v(R.LANE16)}, s[{s.WS}:{s.WS+3}], s{s.T0 if f < 4 else s.T1} offen offset:{(f&3)*1024} sc1 ; @opt")
    A("s_waitcnt vmcnt(8)\ns_branch K3_pub")
    A.label("K3_own")
    for i in range(16): A(f"ds_write_b128 {v(T)}, {a(i*4,4)} offset:{i*1024}")
    A("s_waitcnt vmcnt(0)")
    A.label("K3_pub")
    A("s_barrier")
    def breads(k):
        t4 = k & 3; fs = R.FR + (k & 3) * 16
        Ls = []
        for i in range(2):
            Ls.append(f"ds_read_b128 {v(fs + 8 + i*4, 4)}, {v(R.CC)} offset:{i*4096 + t4*1024}")
            for rd in range(2): Ls.append(f"ds_read_b64_tr_b16 {v(fs + i*4 + rd*2, 2)}, {v(R.WC+i)} offset:{(32*t4 + 8*rd)*128}")
        return Ls
    A("s_waitcnt lgkmcnt(0)")
    for ln in breads(0) + breads(1): A(ln)
    for k in range(16):
        fs = R.FR + (k & 3) * 16
        if k + 2 < 16:
            if (k + 2) % 4 == 0:
                for ln in addr(16 + (k + 2) // 4): A(ln)
            for ln in breads(k + 2): A(ln)
        A(f"s_waitcnt lgkmcnt({12 if k + 2 < 16 else (6 if k == 14 else 0)})")
        for c in range(2):
            for rt in range(2):
                acc = R.BACC + (rt * 2 + c) * 4
                A(f"{MF16} {a(acc,4)}, {v(fs + c*4, 4)}, {v(fs + 8 + rt*4, 4)}, " + ("0" if k == 0 else a(acc, 4)))
    A(f"s_lshl_b32 s{s.T0}, s{s.SL}, 2\ns_add_u32 s{s.T0}, s{s.T0}, s{s.FO}\ns_cmp_eq_u32 s{s.W}, 0\ns_cselect_b32 s{s.T0}, s{s.T0}, {hex(OOB)}\nv_mov_b32 {v(T+1)}, {hex(OOB)}\nv_writelane_b32 {v(T+1)}, s{s.T0}, 0")
    A("s_waitcnt vmcnt(0) lgkmcnt(0)\ns_barrier")
    A(f"buffer_store_dword {v(R.ONE)}, {v(T+1)}, s[{s.WS}:{s.WS+3}], 0 offen sc1")
    A(f"v_and_b32 {v(T)}, 15, {v(L)}\nv_lshlrev_b32 {v(T)}, 11, {v(T)}\nv_lshrrev_b32 {v(T+3)}, 4, {v(L)}\nv_lshl_add_u32 {v(T+2)}, {v(T+3)}, 3, {v(T)}")
    A(f"s_lshl_b32 s{s.T0}, s{s.RT}, 17\ns_and_b32 s{s.T1}, s{s.W}, 1\ns_lshl_b32 s{s.T1}, s{s.T1}, 16\ns_add_u32 s{s.T0}, s{s.T0}, s{s.T1}")
    A(f"s_lshl_b32 s{s.T1}, s{s.CT}, 7\ns_add_u32 s{s.T0}, s{s.T0}, s{s.T1}\ns_lshr_b32 s{s.T1}, s{s.W}, 1\ns_lshl_b32 s{s.T1}, s{s.T1}, 6\ns_add_u32 s{s.T0}, s{s.T0}, s{s.T1}\ns_add_u32 s{s.T1}, s{s.T0}, 0x8000")
    A(f"v_and_b32 {v(R.PA)}, 3, {v(L)}\nv_lshl_add_u32 {v(R.PA)}, {v(R.PA)}, 2, s{s.FO}")
    A(pa_ld)
    for i in range(16): A(f"v_accvgpr_read_b32 {v(i)}, {a(R.BACC+i)}")
    for p in range(8): A(f"v_cvt_pk_bf16_f32 {v(16+p)}, {v(2*p)}, {v(2*p+1)}")
    for rt in range(2):
        for c in range(2):
            A(f"buffer_store_dwordx2 {v(16 + (rt*2+c)*2, 2)}, {v(T+2)}, s[{s.OUT}:{s.OUT+3}], s{s.T0 if rt == 0 else s.T1} offen offset:{1024 + c*32}")
    A(f"s_add_u32 s{s.T1}, s{s.D4}, 0x20000\nv_add_u32 {v(T)}, s{s.T1}, {v(R.LANE16)}")
    for c in range(4): A(f"ds_read_b128 {v(48+c*4,4)}, {v(T)} offset:{c*1024}")
    A("s_waitcnt vmcnt(4)")
    spin(A, "P", pa_ld, chk, s.T1)
    stamp(A, cfg, 6)
    A(f"s_lshl_b32 s{s.T0}, s{s.SL}, 15\ns_add_u32 s{s.T0}, s{s.T0}, s{s.PO}\ns_lshl_b32 s{s.T1}, s{s.W}, 11\ns_add_u32 s{s.T0}, s{s.T0}, s{s.T1}")
    for j in range(1, 4):
        A(f"s_add_u32 s{s.T1}, s{s.SL}, {j}\ns_and_b32 s{s.T1}, s{s.T1}, 3\ns_lshl_b32 s{s.T1}, s{s.T1}, 13\ns_add_u32 s{s.T1}, s{s.T1}, s{s.T0}")
        for u in range(2):
            A(f"buffer_load_dwordx4 {v(64 + (j-1)*8 + u*4, 4)}, {v(R.LANE16)}, s[{s.WS}:{s.WS+3}], s{s.T1} offen offset:{u*1024} sc1")
    A(f"s_lshl_b32 s{s.T0}, s{s.RB}, 18\ns_and_b32 s{s.T1}, s{s.SL}, 1\ns_lshl_b32 s{s.T1}, s{s.T1}, 17\ns_add_u32 s{s.T0}, s{s.T0}, s{s.T1}\ns_lshl_b32 s{s.T1}, s{s.W}, 15\ns_add_u32 s{s.T0}, s{s.T0}, s{s.T1}")
    A(f"s_lshl_b32 s{s.T1}, s{s.CB}, 8\ns_add_u32 s{s.T0}, s{s.T0}, s{s.T1}\ns_lshr_b32 s{s.T1}, s{s.SL}, 1\ns_lshl_b32 s{s.T1}, s{s.T1}, 7\ns_add_u32 s{s.T0}, s{s.T0}, s{s.T1}")
    A("s_waitcnt lgkmcnt(0)")
    for j in range(3):
        A(f"s_waitcnt vmcnt({4 - 2*j})")
        for p in range(8):
            r = 64 + j * 8 + p
            A(f"v_lshlrev_b32 {v(40)}, 16, {v(r)}\nv_and_b32 {v(41)}, 0xffff0000, {v(r)}\nv_pk_add_f32 {v(48+2*p,2)}, {v(48+2*p,2)}, {v(40,2)}")
    for p in range(8): A(f"v_cvt_pk_bf16_f32 {v(24+p)}, {v(48+2*p)}, {v(48+2*p+1)}")
    for c in range(4):
        A(f"buffer_store_dwordx2 {v(24+c*2,2)}, {v(T+2)}, s[{s.OUT}:{s.OUT+3}], s{s.T0} offen offset:{c*32}")
```

```python
from gen_common import *
import gen_att as att
from gen_att import weave2, pk_scalar, dma_half
from gen_b import softmax8, LOG2E
WS_FLAG = 60 << 20
OOB = 0x7ffffff0

class R:
    XV = 128; WV = 132; XC = 136; WC = 138; TK = 147; CT = 148
    BWV = 156; BXA = 158; BWA = 162; PHV = 163; FLV = 164; FLD = 165; PLV = 166
    PFV = 168; DZV = 173
    ACC = 176
    WR = 224
    T = 240
    LANE16 = 252; LANE = 253; SCL = 254
    GFR = 128
    BFR = 128
    PK = 96; QF = 112; KF = 120; VF = 148; WP = 168

class SG(att.SG):
    C = 8; WK = 12; WV = 16
    RB = 22; DST2 = 31; OUT = 32; PF = 44; CO = 48; WO = 49
    BX = 64; BW = 68; BP = 72
    BXO = 26; BWO = 27; PFO = 28; PFO2 = 25
    PTR = 76; DB = 96

def ptr(i): return SG.PTR + 2 * i

def resolve_waits(lines):
    out = []; seq = []
    for ln in lines:
        t = ln.strip()
        if t.startswith("WAITV"):
            parts = t.split()
            tags = parts[1].split(",")
            last = max((i for i, g in enumerate(seq) if g in tags), default=None)
            assert last is not None, t
            n = min(len(seq) - 1 - last, 63)
            out.append(f"    s_waitcnt vmcnt({n})" + (f" lgkmcnt({parts[2][1:] or 0})" if len(parts) > 2 else ""))
            continue
        if t.startswith(("buffer_", "global_")):
            tag = t.split("@")[1].strip() if "@" in t else ""
            if tag != "opt": seq.append(tag)
            ln = ln.split(";")[0].rstrip()
        out.append(ln)
    return out

def tagged(lines, tag):
    return [l + f" ; @{tag}" if l.startswith("buffer") else l for l in lines]

def bslot(st): return (st % 5) * 32768

def b_stage(st):
    s = SG
    L = [f"s_lshr_b32 s{s.T1}, s{s.DST}, 2", f"s_add_u32 m0, s{s.T1}, {bslot(st)}", f"s_add_u32 s{s.SOFF}, s{s.BXO}, {st*128}"]
    for j in range(2): L.append(f"buffer_load_dwordx4 {v(R.XV+j)}, s[{s.BX}:{s.BX+3}], s{s.SOFF} offen offset:{j*1024} lds")
    for seg in range(3):
        L.append(f"s_add_u32 m0, s{s.T1}, {bslot(st) + 8192 + seg*8192}")
        L.append(f"s_add_u32 s{s.SOFF}, s{s.BWO}, {st*64*3072 + seg*1024}")
        for j in range(2): L.append(f"buffer_load_dwordx4 {v(R.BWV+j)}, s[{s.BW}:{s.BW+3}], s{s.SOFF} offen offset:{j*1024} lds")
    return tagged(L, f"b{st}")

QBUF = 49152
def g_stage(n):
    s = SG
    gi, st = n >> 3, n & 7
    buf = (n % 3) * QBUF
    L = []
    if n == 16:
        L += [f"s_mov_b32 s{s.C}, s{ptr(0)}", f"s_and_b32 s{s.C+1}, s{ptr(0)+1}, 0xffff", f"s_mov_b32 s{s.WK}, s{ptr(2)}", f"s_and_b32 s{s.WK+1}, s{ptr(2)+1}, 0xffff"]
    for blk in range(2):
        L.append(f"s_add_u32 m0, s{s.DST}, {buf + blk*4096}")
        if gi < 2: L.append(f"s_add_u32 s{s.SOFF}, s{s.CO}, {st*128 + blk*32768}")
        else: L.append(f"s_add_u32 s{s.SOFF}, s{s.XA_ + blk}, {st*128}")
        for j in range(4): L.append(f"buffer_load_dwordx4 {v(R.XV+j)}, s[{s.C}:{s.C+3}], s{s.SOFF} offen offset:{j*1024} lds")
    sr = s.WV if gi == 1 else s.WK
    L.append(f"s_add_u32 m0, s{s.DST2}, {buf + 32768}")
    L.append(f"s_add_u32 s{s.SOFF}, s{s.WO}, {st*64*8192}")
    for j in range(4): L.append(f"buffer_load_dwordx4 {v(R.WV+j)}, s[{sr}:{sr+3}], s{s.SOFF} offen offset:{j*1024} lds")
    return tagged(L, f"g{n}")

def split_vm(L, nfirst):
    c = 0
    for i, t in enumerate(L):
        if t.startswith("buffer"):
            c += 1
            if c == nfirst: return L[:i + 1], L[i + 1:]
    return L, []

def addr_delta(d):
    m = hex(d & 0xffffffff)
    return [f"v_add_u32 {v(R.XC+i)}, {m}, {v(R.XC+i)}" for i in range(10)]

def conv(isV, f):
    s = SG
    if isV:
        t = R.CT
        V = [f"v_accvgpr_read_b32 {v(t+i)}, {a(f*8+i)}" for i in (4, 5, 6, 7, 0, 1, 2, 3)]
    else:
        t = f * 8; V = []
    V += [f"v_cvt_pk_bf16_f32 {v(t+p)}, {v(t+2*p)}, {v(t+2*p+1)}" for p in range(4)]
    S = [f"s_add_u32 s{s.FLG}, s{s.OUT}, {(f >> 3) * 16384 + isV * 8192 + ((f >> 2) & 1) * 4096}",
         f"buffer_store_dwordx4 {v(t,4)}, {v(R.LANE16)}, s[{s.WS}:{s.WS+3}], s{s.FLG} offen offset:{(f&3)*1024} sc1"]
    return V, S

def b_reads(k):
    t4 = k & 3; fs = R.BFR + (k & 3) * 16
    Ls = [f"ds_read_b128 {a(fs + 12, 4)}, {v(R.BXA+t4)}"]
    for seg in range(3):
        for rd in range(2):
            Ls.append(f"ds_read_b64_tr_b16 {a(fs + seg*4 + rd*2, 2)}, {v(R.BWA)} offset:{seg*8192 + (16*t4 + 4*rd)*128}")
    return Ls

class Tick:
    def __init__(self, on): self.on = on; self.n = 0
    def __call__(self, A):
        if not self.on or self.n > 64: return
        if self.n > 0: A(f"v_writelane_b32 v{R.TK}, s{52 + 2*((self.n-1)&1)}, {self.n-1}")
        A(f"s_memrealtime s[{52 + 2*(self.n&1)}:{53 + 2*(self.n&1)}]")
        self.n += 1

def ka(A0, cfg, name="ka_kernel"):
    s = SG
    tick = Tick(cfg.get("ticks"))
    fcfg = cfg if cfg.get("stampset", "front") == "front" else dict(cfg, stamps=0)
    acfg = cfg if cfg.get("stampset", "front") == "att" else dict(cfg, stamps=0)
    bcfg = cfg if cfg.get("stampset", "front") == "back" else dict(cfg, stamps=0)
    kernel_header(A0, name)
    A = Asm(); A._lab = 1000
    A("s_cmp_ge_u32 s2, 256\ns_cbranch_scc1 KA_end")
    A(f"s_load_dwordx16 s[{s.PTR}:{s.PTR+15}], s[0:1], 0\ns_load_dwordx4 s[{s.PTR+16}:{s.PTR+19}], s[0:1], 64\ns_load_dwordx4 s[52:55], s[0:1], 88")
    L = R.LANE; T = R.T
    A(f"v_lshrrev_b32 {v(T)}, 6, v0\nv_and_b32 {v(L)}, 63, v0\nv_lshlrev_b32 {v(R.LANE16)}, 4, {v(L)}")
    A(f"v_readfirstlane_b32 s{s.W}, {v(T)}")
    A(f"s_and_b32 s{s.H}, s2, 7\ns_lshl_b32 s{s.H}, s{s.H}, 2\ns_bfe_u32 s{s.T0}, s2, 0x20003\ns_add_u32 s{s.H}, s{s.H}, s{s.T0}")
    A(f"s_lshr_b32 s{s.RB}, s2, 5")
    A(f"s_lshl_b32 s{s.DST}, s{s.W}, 13\ns_lshl_b32 s{s.DST2}, s{s.W}, 12")
    A(f"s_lshl_b32 s{s.CO}, s{s.RB}, 18\ns_lshl_b32 s{s.T0}, s{s.W}, 16\ns_add_u32 s{s.CO}, s{s.CO}, s{s.T0}")
    A(f"s_lshl_b32 s{s.WO}, s{s.H}, 8\ns_lshl_b32 s{s.T0}, s{s.W}, 17\ns_add_u32 s{s.WO}, s{s.WO}, s{s.T0}")
    A(f"v_lshrrev_b32 {v(T)}, 4, {v(L)}\nv_and_b32 {v(T+1)}, 7, {v(L)}\nv_xor_b32 {v(T)}, {v(T)}, {v(T+1)}\nv_lshlrev_b32 {v(T)}, 4, {v(T)}")
    A(f"v_lshrrev_b32 {v(T+1)}, 3, {v(L)}\nv_lshlrev_b32 {v(T+1)}, 10, {v(T+1)}\nv_add_u32 {v(R.XV)}, {v(T)}, {v(T+1)}")
    A(f"v_xor_b32 {v(T)}, 64, {v(R.XV)}")
    A(f"v_add_u32 {v(R.XV+1)}, {7168}, {v(T)}\nv_add_u32 {v(R.XV+2)}, {7168*2}, {v(R.XV)}\nv_add_u32 {v(R.XV+3)}, {7168*3}, {v(T)}")
    A(f"v_lshrrev_b32 {v(T)}, 4, {v(L)}\nv_lshlrev_b32 {v(T+1)}, 1, {v(T)}\nv_and_b32 {v(T+2)}, 15, {v(L)}\nv_xor_b32 {v(T+1)}, {v(T+1)}, {v(T+2)}")
    A(f"v_lshlrev_b32 {v(T+1)}, 4, {v(T+1)}\nv_lshlrev_b32 {v(T)}, 13, {v(T)}\nv_add_u32 {v(R.WV)}, {v(T)}, {v(T+1)}")
    A(f"v_xor_b32 {v(T)}, 128, {v(R.WV)}")
    A(f"v_add_u32 {v(R.WV+1)}, {31744}, {v(R.WV)}\nv_add_u32 {v(R.WV+2)}, {31744*2}, {v(T)}\nv_add_u32 {v(R.WV+3)}, {31744*3}, {v(T)}")
    A("s_waitcnt lgkmcnt(0)")
    srd(A, s.C, ptr(1), 2048 * 512 * 2); srd(A, s.WK, ptr(3), 512 * 4096 * 2); srd(A, s.WV, ptr(4), 512 * 4096 * 2); srd(A, s.WS, 54, WS_BYTES)
    A(f"s_mov_b32 s{s.REM}, s52\ns_mov_b32 s{s.T}, s53")
    stamp(A, cfg, 0)
    for n in range(3):
        for ln in g_stage(n): A(ln)
    if cfg.get("pf_code", 1):
        A(f"s_getpc_b64 s[50:51]")
        A.label("KA_pc")
        A(f"s_lshr_b32 s3, s2, 3\ns_lshl_b32 s3, s3, 2\ns_add_u32 s3, s3, s{s.W}\ns_lshl_b32 s3, s3, 10\ns_min_u32 s3, s3, KA_end-KA_pc-1024")
        A(f"s_add_u32 s50, s50, s3\ns_addc_u32 s51, s51, 0\nv_mov_b32 {v(T+1)}, s51\nv_add_co_u32 {v(T)}, vcc, s50, {v(R.LANE16)}\ns_nop 1\nv_addc_co_u32 {v(T+1)}, vcc, 0, {v(T+1)}, vcc")
        A(f"global_load_dword {v(R.PFV+2)}, {v(T,2)}, off ; @pf")
    srd(A, s.BX, ptr(6), 2048 * 512 * 2); srd(A, s.BW, ptr(7), 512 * 1536 * 2); srd(A, s.BP, ptr(8), 32 * 256 * 2)
    A(f"v_and_b32 {v(T)}, 15, {v(L)}\nv_lshrrev_b32 {v(T+1)}, 1, {v(T)}\nv_lshrrev_b32 {v(T+2)}, 4, {v(L)}\nv_xor_b32 {v(T+1)}, {v(T+1)}, {v(T+2)}")
    A(f"v_lshlrev_b32 {v(T+1)}, 4, {v(T+1)}\nv_lshlrev_b32 {v(T)}, 7, {v(T)}\nv_add3_u32 {v(R.XC)}, {v(T)}, {v(T+1)}, s{s.DST}")
    A(f"v_xor_b32 {v(R.XC+1)}, 64, {v(R.XC)}")
    A(f"v_bfe_u32 {v(T)}, {v(L)}, 2, 2")
    A(f"v_lshrrev_b32 {v(T+1)}, 4, {v(L)}\nv_lshlrev_b32 {v(T+1)}, 3, {v(T+1)}\nv_add_u32 {v(T+1)}, {v(T+1)}, {v(T)}\nv_lshlrev_b32 {v(T+1)}, 8, {v(T+1)}")
    A(f"v_bfe_u32 {v(T)}, {v(L)}, 2, 3\nv_lshlrev_b32 {v(T)}, 5, {v(T)}\nv_add_u32 {v(T+1)}, {v(T+1)}, {v(T)}")
    A(f"v_and_b32 {v(T)}, 3, {v(L)}\nv_lshlrev_b32 {v(T)}, 3, {v(T)}\nv_add_u32 {v(T+1)}, {v(T+1)}, {v(T)}\nv_add_u32 {v(R.WC)}, 0x8000, {v(T+1)}")
    for dt in range(1, 8): A(f"v_xor_b32 {v(R.WC+dt)}, {dt<<5}, {v(R.WC)}")
    A(f"s_lshl_b32 s{s.OUT}, s{s.H}, 20\ns_lshl_b32 s{s.T0}, s{s.RB}, 17\ns_add_u32 s{s.OUT}, s{s.OUT}, s{s.T0}\ns_lshl_b32 s{s.T0}, s{s.W}, 15\ns_add_u32 s{s.OUT}, s{s.OUT}, s{s.T0}")
    A(f"s_sub_u32 s{s.BA}, 15, s{s.I}")
    A(f"s_lshl_b32 s{s.XA_}, s{s.BA}, 17\ns_add_u32 s{s.XA_}, s{s.XA_}, s{s.T0}\ns_lshl_b32 s{s.XB_}, s{s.I}, 17\ns_add_u32 s{s.XB_}, s{s.XB_}, s{s.T0}")
    A(f"s_lshl_b32 s{s.BXO}, s{s.H}, 16\ns_lshl_b32 s{s.T0}, s{s.W}, 14\ns_add_u32 s{s.BXO}, s{s.BXO}, s{s.T0}")
    A(f"s_mul_i32 s{s.BWO}, s{s.W}, {16*3072}\ns_lshl_b32 s{s.T0}, s{s.RB}, 7\ns_add_u32 s{s.BWO}, s{s.BWO}, s{s.T0}")
    A(f"v_bfe_u32 {v(T)}, {v(L)}, 4, 1\nv_lshlrev_b32 {v(T)}, 2, {v(T)}\nv_and_b32 {v(T+1)}, 7, {v(L)}\nv_xor_b32 {v(T)}, {v(T)}, {v(T+1)}\nv_lshlrev_b32 {v(T)}, 4, {v(T)}")
    A(f"v_lshrrev_b32 {v(T+1)}, 3, {v(L)}\nv_mul_u32_u24 {v(T+1)}, 3072, {v(T+1)}\nv_add_u32 {v(R.BWV)}, {v(T)}, {v(T+1)}\nv_add_u32 {v(R.BWV+1)}, {8*3072-1024}, {v(R.BWV)}")
    A(f"s_lshr_b32 s{s.T0}, s{s.W}, 1\ns_lshl_b32 s{s.T0}, s{s.T0}, 12")
    A(f"v_and_b32 {v(T)}, 31, {v(L)}\nv_bfe_u32 {v(T+1)}, {v(L)}, 1, 3\nv_lshrrev_b32 {v(T+2)}, 5, {v(L)}\nv_xor_b32 {v(T+1)}, {v(T+1)}, {v(T+2)}")
    A(f"v_lshlrev_b32 {v(T+1)}, 4, {v(T+1)}\nv_lshlrev_b32 {v(T)}, 7, {v(T)}\nv_add3_u32 {v(R.BXA)}, {v(T)}, {v(T+1)}, s{s.T0}")
    for t4 in range(1, 4): A(f"v_xor_b32 {v(R.BXA+t4)}, {t4<<5}, {v(R.BXA)}")
    A(f"s_and_b32 s{s.T0}, s{s.W}, 1")
    A(f"v_bfe_u32 {v(T)}, {v(L)}, 2, 2\nv_lshrrev_b32 {v(T+1)}, 5, {v(L)}\nv_lshl_add_u32 {v(T)}, {v(T+1)}, 3, {v(T)}\nv_lshlrev_b32 {v(T)}, 7, {v(T)}")
    A(f"v_bfe_u32 {v(T+1)}, {v(L)}, 3, 1\nv_xor_b32 {v(T+1)}, s{s.T0}, {v(T+1)}\nv_lshl_add_u32 {v(T)}, {v(T+1)}, 6, {v(T)}")
    A(f"v_bfe_u32 {v(T+1)}, {v(L)}, 4, 1\nv_lshl_add_u32 {v(T)}, {v(T+1)}, 5, {v(T)}")
    A(f"v_and_b32 {v(T+1)}, 3, {v(L)}\nv_lshl_add_u32 {v(T)}, {v(T+1)}, 3, {v(T)}\nv_add_u32 {v(R.BWA)}, 0x2000, {v(T)}")
    A(f"v_and_b32 {v(T)}, 15, {v(L)}\nv_lshlrev_b32 {v(T)}, 1, {v(T)}\nv_lshrrev_b32 {v(T+1)}, 5, {v(L)}\nv_lshl_add_u32 {v(R.PHV)}, {v(T+1)}, 7, {v(T)}")
    A(f"v_mov_b32 {v(R.SCL)}, 0x3e0293ee")
    A(f"s_lshl_b32 s{s.T0}, s{s.H}, 7\ns_add_u32 s{s.T0}, s{s.T0}, {hex(WS_FLAG + 8192)}\ns_lshl_b32 s{s.T1}, s{s.RB}, 2\ns_add_u32 s{s.T1}, s{s.T1}, s{s.T0}")
    A(f"s_lshl_b32 s{s.T2}, s{s.RB}, 7\ns_lshl_b32 s3, s{s.H}, 2\ns_add_u32 s{s.T2}, s{s.T2}, s3\ns_add_u32 s{s.T2}, s{s.T2}, {hex(WS_FLAG + 12288)}")
    A(f"s_cmp_eq_u32 s{s.W}, 0\ns_cselect_b32 s{s.T1}, s{s.T1}, {hex(OOB)}\ns_cselect_b32 s{s.T0}, s{s.T0}, 0x70000000\ns_cselect_b32 s{s.T2}, s{s.T2}, {hex(OOB)}\ns_cselect_b32 s3, 0, 0x1000")
    A(f"v_mov_b32 {v(R.FLV)}, {hex(OOB)}\nv_writelane_b32 {v(R.FLV)}, s{s.T1}, 0\nv_mov_b32 {v(T)}, {hex(OOB)}\nv_writelane_b32 {v(T)}, s{s.T2}, 0\nv_accvgpr_write_b32 a255, {v(T)}")
    A(f"v_and_b32 {v(T)}, 7, {v(L)}\nv_lshl_add_u32 v146, {v(T)}, 2, s{s.T0}\nv_mov_b32 {v(R.FLD)}, 1\nv_mov_b32 {v(R.PLV+1)}, s3")
    A(f"s_mul_i32 s{s.T0}, s{s.W}, 6144\ns_add_u32 s{s.T0}, s{s.T0}, {hex(WS_FLAG)}\ns_cmp_eq_u32 s2, 0\ns_cselect_b32 s{s.T0}, s{s.T0}, 0x70000000\ns_cselect_b32 s3, s3, 0x1000")
    A(f"v_mov_b32 {v(T+4)}, 0\nv_mov_b32 {v(T+5)}, 0\nv_mov_b32 {v(T+6)}, 0\nv_mov_b32 {v(T+7)}, 0\nv_mov_b32 {v(R.DZV)}, 0x1000\nv_writelane_b32 {v(R.DZV)}, s3, 0")
    A(f"s_add_u32 s{s.T1}, s{s.T0}, 3072")
    for j in range(6): A(f"buffer_store_dwordx4 {v(T+4,4)}, {v(R.LANE16)}, s[{s.WS}:{s.WS+3}], s{s.T0 if j < 3 else s.T1} offen offset:{(j%3)*1024} sc1 ; @zf")
    srd(A, s.DB, s.REM, 256)
    A(f"s_lshl_b32 s{s.PFO}, s2, 2\ns_add_u32 s{s.PFO}, s{s.PFO}, s{s.W}\ns_mov_b32 s{s.PF+3}, 0x00020000")
    P = R.PFV
    A(f"v_mul_u32_u24 {v(P)}, 24, {v(L)}\nv_lshlrev_b32 {v(P+1)}, 3, {v(L)}")
    plan = []
    own = ((1, 2 << 20, 2), (3, 4 << 20, 4)) if cfg.get("pf_own") else ()
    for pi, nbytes, n in own + ((4, 4 << 20, 4), (0, 2 << 20, 2), (2, 4 << 20, 4), (6, 2 << 20, 2), (7, 1536 * 1024, 1), (5, 4 << 20, 4), (9, 512 * 1024, 1)):
        for j in range(n):
            vo = R.LANE16 if nbytes >= (2 << 20) else (P if pi == 7 else P + 1)
            pre = [f"s_mov_b32 s{s.PF}, s{ptr(pi)}", f"s_and_b32 s{s.PF+1}, s{ptr(pi)+1}, 0xffff", f"s_mov_b32 s{s.PF+2}, {nbytes}", f"s_mul_i32 s{s.PFO2}, s{s.PFO}, {nbytes // 1024}"] if j == 0 else []
            plan.append(pre + [f"buffer_load_dword {v(P+2)}, {v(vo)}, s[{s.PF}:{s.PF+3}], s{s.PFO2} offen offset:{j*1024} ; @pf"])
    pf0 = cfg.get("pf0", 1)
    if not cfg.get("pf", 1): plan = []
    def signal(off): return [f"buffer_store_dword {v(R.FLD)}, {v(R.FLV)}, s[{s.WS}:{s.WS+3}], 0 offen offset:{off} sc1 ; @sig"]
    def poll_ld(tag, off, opt=False):
        if off is None: return [f"buffer_load_dword {v(R.PLV)}, {v(R.PLV+1)}, s[{s.DB}:{s.DB+3}], 0 offen sc1 ; @{tag}"]
        return [f"buffer_load_dword {v(R.PLV)}, v146, s[{s.WS}:{s.WS+3}], 0 offen offset:{off} sc1 ; @{tag}"]
    def poll_chk(off, tag, tmp=SG.T0):
        chk = f"v_cmp_ne_u32 vcc, 1, {v(R.PLV)}"
        A(f"s_cmp_eq_u32 s{s.W}, 0\ns_cbranch_scc0 KA_rdy{tag}")
        A(chk + f"\ns_mov_b32 s{tmp}, 0\ns_nop 3\ns_cbranch_vccz KA_rdy{tag}")
        A.label(f"KA_poll{tag}")
        A("s_sleep 2\n" + poll_ld("opt", off)[0] + "\ns_waitcnt vmcnt(0)")
        A(chk + f"\ns_add_u32 s{tmp}, s{tmp}, 1\ns_nop 3\ns_cbranch_vccz KA_rdy{tag}\ns_cmp_lt_u32 s{tmp}, 0x40000\ns_cbranch_scc1 KA_poll{tag}")
        A.label(f"KA_rdy{tag}")
    wphi = [f"s_lshl_b32 s{s.PFO}, s{s.RB}, 11", f"s_and_b32 s{s.T2}, s{s.W}, 1", f"s_lshl_b32 s{s.T2}, s{s.T2}, 10", f"s_add_u32 s{s.PFO}, s{s.PFO}, s{s.T2}"]
    for hh in range(2):
        for e, d in enumerate((0, 1, 2, 3, 8, 9, 10, 11)):
            wphi.append(f"buffer_load_ushort {v(R.WR + hh*8 + e)}, {v(R.PHV)}, s[{s.BP}:{s.BP+3}], s{s.PFO} offen offset:{hh*512 + d*32} ; @wp")
    def g_reads(k):
        t2 = k & 1; fs = R.GFR + (k & 1) * 48
        Ls = [f"ds_read_b128 {a(fs + 32 + rt*4, 4)}, {v(R.XC+t2)} offset:{rt*2048}" for rt in range(4)]
        for dt in range(8):
            for rd in range(2): Ls.append(f"ds_read_b64_tr_b16 {a(fs + dt*4 + rd*2, 2)}, {v(R.WC+dt)} offset:{(32*t2 + 4*rd)*256}")
        return Ls
    vm = {k: [] for k in range(49)}
    for n in range(21):
        h0, h1 = split_vm(g_stage(n + 3), 6)
        vm[2 * n + 1] += h0; vm[2 * n + 2] += h1
    npf = cfg.get("npf", 13); ppk = cfg.get("pf_per_k", 1)
    npre = cfg.get("pf_pre", 0)
    for p in plan[:npre]:
        for x in p: A(x)
    for i, p in enumerate(plan[npre:npf]): vm[pf0 + i // ppk] += p
    ksigK = cfg.get("k_sigK", 37)
    vm[ksigK] = signal(0) + vm[ksigK]
    vm[5] = [f"buffer_store_dword {v(R.FLD)}, {v(R.DZV)}, s[{s.DB}:{s.DB+3}], 0 offen sc1 ; @sig"] + vm[5]
    vm[28] += poll_ld("pz", None)
    vlast = cfg.get("v_last", 47)
    vk = [32 + (f * (vlast - 31)) // 16 for f in range(16)]
    h0, h1 = split_vm(wphi, 8)
    vm[43] += b_stage(0); vm[44] += h0; vm[45] += b_stage(1); vm[46] += b_stage(2); vm[47] += b_stage(3); vm[48] += b_stage(4)
    A("WAITV g0\ns_barrier")
    for ln in g_reads(0): A(ln)
    for k in range(48):
        n, t2 = k >> 1, k & 1
        gi = k >> 4
        fs = R.GFR + (k & 1) * 48
        tailv = []
        if t2 == 1:
            tags = [f"g{n+1}"] if n < 23 else ["b0"]
            if k == ksigK: tags.append("kst")
            if k == 5: tags.append("zf")
            if k == 33: tags.append("pz")
            A(f"WAITV {','.join(tags)} L")
            if k == 33: poll_chk(None, "Z")
            A("s_barrier")
        else:
            A("s_waitcnt lgkmcnt(0)")
            if n < 23: tailv = addr_delta(((n + 1) % 3 - n % 3) * QBUF)
        if k % 2 == 0: tick(A)
        if k in (16, 32): stamp(A, fcfg, k // 16)
        post = []
        if gi == 1:
            V, S = conv(0, k & 15); tailv = V + tailv; post = S
        if gi == 2:
            fl = [f for f in range(16) if vk[f] == k]
            for j, f in enumerate(fl):
                V, S = conv(1, f)
                if j == 0: tailv = V + tailv; post = S
                else: post = post + V + S
        mf = []
        for dt in range(8):
            for rt in range(4):
                W_, X_ = a(fs + dt * 4, 4), a(fs + 32 + rt * 4, 4)
                if gi == 1:
                    acc = a((((rt >> 1) * 8 + dt) * 2 + (rt & 1)) * 4, 4); ops = f"{X_}, {W_}"
                else:
                    acc = v((rt * 8 + dt) * 4, 4); ops = f"{W_}, {X_}"
                mf.append(f"{MF16} {acc}, {ops}, " + ("0" if k % 16 == 0 else acc))
        rd = g_reads(k + 1) if k < 47 else b_reads(0) + b_reads(1)
        for b in weave2(mf, rd, vm[k], tailv, first=2): A(b)
        for x in post: A(x)
    stamp(A, fcfg, 3)
    srd(A, s.KV, s.WS, WS_BYTES)
    A(f"s_and_b32 s{s.KP}, s{s.W}, 1\ns_lshl_b32 s{s.T0}, s{s.KP}, 14\ns_lshr_b32 s{s.CO}, s{s.W}, 1\ns_lshl_b32 s{s.T2}, s{s.CO}, 13")
    A(f"s_lshl_b32 s{s.SRC}, s{s.H}, 20\ns_add_u32 s{s.WQO}, s{s.BA}, 1\ns_lshl_b32 s{s.WQO}, s{s.WQO}, 16\ns_add_u32 s{s.WQO}, s{s.WQO}, s{s.SRC}")
    A(f"s_add_u32 s{s.SRC}, s{s.SRC}, s{s.T0}\ns_add_u32 s{s.SRC}, s{s.SRC}, s{s.T2}")
    A(f"s_cmp_eq_u32 s{s.CO}, 1\ns_cselect_b32 s{s.KV+2}, 0, s{s.WQO}\ns_lshl_b32 s{s.CO}, s{s.CO}, 15\ns_lshl_b32 s{s.KP}, s{s.KP}, 13")
    ring = lambda slot, tag: tagged(dma_half(cfg, 0, slot_imm=slot * 32768) + dma_half(cfg, 1), tag)
    undo = f"s_sub_u32 s{s.SRC}, s{s.SRC}, s{s.CO}"
    bvm = {k: [] for k in range(33)}
    bvm[0] += vm[48]; bvm[1] += h1
    for st in range(3):
        x0, x1 = split_vm(b_stage(st + 5), 4)
        bvm[4 * st + 2] += x0; bvm[4 * st + 3] += x1
    kchk = 18
    bvm[cfg.get("b_pollK", 4)] += poll_ld("pk", 0)
    rings = [ring(3, "r0") + [undo], ring(4, "r1") + [undo, f"s_mov_b32 s{s.KV+2}, s{s.WQO}"]]
    for i, r in enumerate(rings):
        for j in range(4):
            x0, r = split_vm(r, 2)
            bvm[kchk + 4 * i + j] += x0 + (r if j == 3 else [])
    bvm[cfg.get("b_pollV", 31)] += poll_ld("pv", 32)
    ksigV = cfg.get("b_sigV", 10)
    bvm[ksigV] = signal(32) + bvm[ksigV]
    qv = []
    for f in range(16):
        b = f * 8
        qv += [f"v_mul_f32 {v(b+i)}, {v(R.SCL)}, {v(b+i)}" for i in range(8)]
        qv += [f"v_cvt_pk_bf16_f32 {v(b+p)}, {v(b+2*p)}, {v(b+2*p+1)}" for p in range(4)]
        qv += [f"v_accvgpr_write_b32 {a(att.R.Q + f*4 + p)}, {v(b+p)}" for p in range(4)]
    for k in range(32):
        st, t4 = k >> 2, k & 3
        fs = R.BFR + (k & 3) * 16
        if t4 == 2:
            tags = [f"b{st+1}"] if st < 7 else ["wp"]
            if k == ksigV: tags.append("vst")
            if k == kchk: tags.append("pk")
            A(f"WAITV {','.join(tags)} L")
            if k == kchk: poll_chk(0, "K")
            A("s_barrier")

        else:
            A(f"s_waitcnt lgkmcnt({7 if k < 31 else 0})")
        if k % 4 == 0: tick(A)
        rd = b_reads(k + 2) if k < 30 else []
        va = qv[(k - 1) * 9:k * 9] if 1 <= k < 30 else []
        adr = []
        if t4 == 1 and st < 7:
            d = hex((bslot(st + 1) - bslot(st)) & 0xffffffff)
            adr = [f"v_add_u32 {v(R.BXA+i)}, {d}, {v(R.BXA+i)}" for i in range(5)]
        mf = []
        for seg in range(3):
            acc = R.ACC + seg * 16
            c = "0" if k == 0 else v(acc, 16)
            if seg < 2: mf.append(f"{MF32} {v(acc,16)}, {a(fs + seg*4, 4)}, {a(fs + 12, 4)}, {c}")
            else: mf.append(f"{MF32} {v(acc,16)}, {a(fs + 12, 4)}, {a(fs + seg*4, 4)}, {c}")
        x0, x1 = split_vm(bvm[k], (sum(1 for t in bvm[k] if t.startswith("buffer")) + 1) // 2)
        A(mf[0]); [A(x) for x in rd[:4] + va[:2]]
        A(mf[1]); [A(x) for x in rd[4:] + x0 + va[2:5]]
        A(mf[2]); [A(x) for x in x1 + va[5:] + adr]
    stamp(A, fcfg, 4)
    tick(A)
    for x in bvm[32]: A(x)
    SC = 65536
    sL = s.T2
    A(f"v_bfe_u32 {v(T)}, {v(L)}, 4, 1\nv_mul_u32_u24 {v(T)}, 0x8000, {v(T)}\nv_lshl_or_b32 {v(T)}, {v(T)}, 16, {v(T)}")
    for i in range(8): A(f"v_lshl_or_b32 {v(R.WP+i)}, {v(R.WR+2*i+1)}, 16, {v(R.WR+2*i)}")
    for i in range(8): A(f"v_xor_b32 {v(R.WP+i)}, {v(T)}, {v(R.WP+i)}")
    A(f"s_mov_b32 s{sL}, {hex(LOG2E)}")
    A(f"s_and_b32 s{s.T0}, s{s.W}, 1\ns_lshl_b32 s{s.T0}, s{s.T0}, 13\ns_lshr_b32 s{s.T1}, s{s.W}, 1\ns_lshl_b32 s{s.T1}, s{s.T1}, 11\ns_add_u32 s{s.T0}, s{s.T0}, s{s.T1}\ns_add_u32 s{s.T0}, s{s.T0}, {SC}")
    A(f"v_and_b32 {v(T+2)}, 31, {v(L)}\nv_lshlrev_b32 {v(T+2)}, 6, {v(T+2)}\nv_lshrrev_b32 {v(T+3)}, 5, {v(L)}\nv_lshl_add_u32 {v(T+2)}, {v(T+3)}, 3, {v(T+2)}\nv_add_u32 {v(T+2)}, s{s.T0}, {v(T+2)}")
    A(f"s_lshr_b32 s{s.T0}, s{s.DST}, 2\ns_add_u32 s{s.T0}, s{s.T0}, {SC}\nv_add_u32 {v(T+3)}, s{s.T0}, {v(R.LANE16)}")
    for p in range(8):
        A(f"v_cvt_pk_bf16_f32 {v(R.QF+p)}, {v(R.ACC+2*p)}, {v(R.ACC+2*p+1)}")
        A(f"v_cvt_pk_bf16_f32 {v(R.KF+p)}, {v(R.ACC+16+2*p)}, {v(R.ACC+16+2*p+1)}")
    for p in range(8): A(f"v_cvt_pk_bf16_f32 {v(R.VF+p)}, {v(R.ACC+32+2*p)}, {v(R.ACC+32+2*p+1)}")
    for t in range(2): A(f"ds_write_b128 {v(T+3)}, {v(R.VF+t*4,4)} offset:{16384 + t*1024}")
    for i, (src, hh) in enumerate(((R.KF, 0), (R.KF, 1), (R.QF, 0), (R.QF, 1))):
        A(f"{MF32} {v(32+i*16,16)}, {v(R.WP+hh*4,4)}, {v(src+hh*4,4)}, 0")
    A(f"s_add_u32 s{s.SOFF}, s{s.DST2}, {SC}")
    A(f"v_bfe_u32 {v(T+4)}, {v(L)}, 2, 2\nv_lshrrev_b32 {v(T+5)}, 5, {v(L)}\nv_lshl_add_u32 {v(T+4)}, {v(T+5)}, 2, {v(T+4)}\nv_lshlrev_b32 {v(T+4)}, 6, {v(T+4)}")
    A(f"v_bfe_u32 {v(T+5)}, {v(L)}, 4, 1\nv_lshl_add_u32 {v(T+4)}, {v(T+5)}, 5, {v(T+4)}\nv_and_b32 {v(T+5)}, 3, {v(L)}\nv_lshl_add_u32 {v(T+4)}, {v(T+5)}, 3, {v(T+4)}\nv_add_u32 {v(T+4)}, s{s.SOFF}, {v(T+4)}")
    A(f"s_lshr_b32 s{s.SOFF}, s{s.W}, 1\ns_lshl_b32 s{s.SOFF}, s{s.SOFF}, 11\ns_and_b32 s{s.FLG}, s{s.W}, 1\ns_lshl_b32 s{s.FLG}, s{s.FLG}, 8\ns_add_u32 s{s.SOFF}, s{s.SOFF}, s{s.FLG}\ns_add_u32 s{s.SOFF}, s{s.SOFF}, {SC}")
    A(f"v_and_b32 {v(T+5)}, 0x2ff, {v(R.LANE16)}\nv_add_u32 {v(T+5)}, s{s.SOFF}, {v(T+5)}")
    for hh in range(2):
        for grp in range(2): softmax8(A, 32 + hh * 16 + grp * 8, R.PK + grp * 4, T, sL)
        for q in range(4): A(f"ds_write_b64 {v(T+2)}, {v(R.PK+q*2,2)} offset:{hh*4096 + q*16}")
    A(f"s_lshl_b32 s{s.T0}, s{s.RB}, 2\ns_and_b32 s{s.T1}, s{s.W}, 1\ns_lshl_b32 s{s.T1}, s{s.T1}, 1\ns_add_u32 s{s.T0}, s{s.T0}, s{s.T1}\ns_lshl_b32 s{s.T0}, s{s.T0}, 17")
    A(f"s_lshl_b32 s{s.T1}, s{s.H}, 12\ns_add_u32 s{s.T0}, s{s.T0}, s{s.T1}\ns_lshr_b32 s{s.T1}, s{s.W}, 1\ns_lshl_b32 s{s.T1}, s{s.T1}, 11\ns_add_u32 s{s.T0}, s{s.T0}, s{s.T1}")
    A(f"s_add_u32 s{s.T0}, s{s.T0}, {hex(WS_PHIQ)}\ns_add_u32 s{s.T1}, s{s.T0}, 0x20000")
    A("WAITV pv L")
    poll_chk(32, "V", tmp=s.SOFF)
    A("s_barrier")
    tick(A)
    for u in range(4):
        for rd in range(2): A(f"ds_read_b64_tr_b16 {v(u*4 + rd*2, 2)}, {v(T+4)} offset:{(16*u + 8*rd)*64}")
        A(f"ds_read_b128 {v(16 + u*4, 4)}, {v(T+5)} offset:{16384 + (u>>1)*4096 + (u&1)*1024}")
    A(f"v_add_u32 {v(att.R.KADDR)}, {3*32768}, {v(R.LANE16)}")
    for t in range(8): A(f"ds_read_b128 {a(att.R.KF + t*4, 4)}, {v(att.R.KADDR)} offset:{t*1024}")
    late_r = list(split_vm(ring(0, "r2"), 4)) + list(split_vm(ring(1, "r3"), 4))
    A(f"v_and_b32 {v(T+6)}, 16, {v(L)}\nv_cmp_ne_u32 vcc, 0, {v(T+6)}\nv_mov_b32 {v(T+6)}, 0x3f803f80")
    for hh in range(2):
        for grp in range(2):
            for x in late_r[hh * 2 + grp]: A(x)
            softmax8(A, 64 + hh * 16 + grp * 8, R.PK + hh * 8 + grp * 4, T, sL)
            A(f"buffer_store_dwordx4 {v(R.PK + hh*8 + grp*4, 4)}, {v(R.LANE16)}, s[{s.WS}:{s.WS+3}], s{s.T0 if hh == 0 else s.T1} offen offset:{grp*1024} sc1 ; @bo")
            if hh == 0 and grp == 0:
                A("s_waitcnt lgkmcnt(0)\ns_barrier")
                for i in range(16): A(f"v_cndmask_b32 {v(16+i)}, {v(16+i)}, {v(T+6)}, vcc")
                A(f"s_add_u32 s{s.FLG}, s{s.DST}, 0x10000\nv_add_u32 {v(att.R.VADDR)}, s{s.FLG}, {v(R.LANE16)}")
                for u in range(4): A(f"{MF32} {v(32,16)}, {v(u*4,4)}, {v(16+u*4,4)}, " + ("0" if u == 0 else v(32, 16)))
                for f in range(8): A(f"ds_write_b128 {v(att.R.VADDR)}, {a(att.R.Q + f*4, 4)} offset:{f*1024}")
    A(f"s_lshl_b32 s{s.T0}, s{s.RB}, 2\ns_add_u32 s{s.T0}, s{s.T0}, s{s.W}\ns_lshl_b32 s{s.T0}, s{s.T0}, 5\ns_add_u32 s{s.T0}, s{s.T0}, s{s.H}")
    A(f"s_lshl_b32 s{s.T1}, s{s.T0}, 7\ns_add_u32 s{s.T1}, s{s.T1}, {hex(WS_KVP + (2 << 20))}\ns_lshl_b32 s{s.T0}, s{s.T0}, 11\ns_add_u32 s{s.T0}, s{s.T0}, {hex(WS_KVP)}")
    A(f"v_lshrrev_b32 {v(T)}, 5, {v(L)}\nv_and_b32 {v(T+1)}, 31, {v(L)}\nv_lshl_add_u32 {v(T+2)}, {v(T)}, 4, {v(T+1)}\nv_lshl_add_u32 {v(T+2)}, {v(T+2)}, 4, s{s.T0}")
    A(f"v_lshl_add_u32 {v(T+3)}, {v(T)}, 4, s{s.T1}\nv_mov_b32 {v(T+4)}, 0x70000000\nv_cmp_eq_u32 vcc, 16, {v(T+1)}\nv_mov_b32 {v(T+5)}, 512\ns_nop 0\nv_cndmask_b32 {v(T+3)}, {v(T+4)}, {v(T+3)}, vcc")
    A(f"v_cmp_gt_u32 vcc, 16, {v(T+1)}\ns_nop 1\nv_cndmask_b32 {v(T+2)}, {v(T+3)}, {v(T+2)}, vcc\nv_cndmask_b32 {v(T+5)}, 32, {v(T+5)}, vcc")
    for q in range(4):
        A(f"buffer_store_dwordx4 {v(32+q*4,4)}, {v(T+2)}, s[{s.WS}:{s.WS+3}], 0 offen sc1 ; @bo")
        if q < 3: A(f"v_add_u32 {v(T+2)}, {v(T+5)}, {v(T+2)}")
    A(f"s_lshl_b32 s{s.REM}, s{s.I}, 2\ns_add_u32 s{s.REM}, s{s.REM}, 4")
    A(f"s_mov_b32 s{s.T}, {hex(cfg.get('thresh', 0x42800000))}")
    stamp(A, fcfg, 5)
    if cfg.get("ticks"):
        A("s_waitcnt lgkmcnt(0)"); tick(A); A("s_waitcnt lgkmcnt(0)"); tick(A)
        A(f"s_lshl_b32 s50, s2, 2\ns_add_u32 s50, s50, s{s.W}\ns_lshl_b32 s50, s50, 8\ns_add_u32 s50, s50, {hex(WS_DBG + (4 << 20))}")
        A(f"v_lshlrev_b32 v146, 2, {v(L)}\nbuffer_store_dword v{R.TK}, v146, s[{s.WS}:{s.WS+3}], s50 offen ; @opt\ns_waitcnt vmcnt(0)")
    A0.lines += resolve_waits(A.lines)
    A0._lab = max(A0._lab, 2000)
    late = []
    if cfg.get('late', 1):
        late = [f"s_lshl_b32 s{s.T2}, s2, 2", f"s_add_u32 s{s.T2}, s{s.T2}, s{s.W}", f"s_mov_b32 s75, 0x00020000", f"v_lshlrev_b32 {v(att.R.TMP)}, 3, {v(L)}"]
        late += [f"s_mov_b32 s72, s{ptr(5)}", f"s_and_b32 s73, s{ptr(5)+1}, 0xffff", f"s_mov_b32 s74, {4<<20}", f"s_lshl_b32 s{s.T0}, s{s.T2}, 12"]
        late += [f"buffer_load_dword a254, {v(R.LANE16)}, s[72:75], s{s.T0} offen offset:{j*1024}" for j in range(4)]
        late += [f"s_mov_b32 s72, s{ptr(9)}", f"s_and_b32 s73, s{ptr(9)+1}, 0xffff", f"s_mov_b32 s74, {512*1024}", f"s_lshl_b32 s{s.T0}, s{s.T2}, 9"]
        late += [f"buffer_load_dword a254, {v(att.R.TMP)}, s[72:75], s{s.T0} offen"]
    att.attention(A0, acfg, fcfg, late)
    import gen_back
    B = Asm(); B._lab = 5000
    gen_back.back(B, bcfg)
    A0.lines += resolve_waits(B.lines)
    if cfg.get("stamps"):
        A0("s_waitcnt vmcnt(0)"); stamp(A0, cfg, 7); stamp_flush(A0, cfg, s.WS, s.W, R.LANE, 1)
        if cfg.get("dbgout"):
            A0(f"s_cmp_eq_u32 s2, {cfg['dbgout']}\ns_cbranch_scc0 KA_end\ns_cmp_eq_u32 s20, 0\ns_cbranch_scc0 KA_end")
            A0(f"s_mov_b64 exec, 0xff\nbuffer_store_dword v1, v2, s[{s.DB}:{s.DB+3}], 0 offen offset:4\ns_waitcnt vmcnt(0)")
    A0.label("KA_end")
    A0("s_endpgm")
```

```python
import re

class Asm:
    def __init__(self):
        self.lines = []
        self._lab = 0
    def __call__(self, s):
        for ln in s.strip("\n").split("\n"):
            self.lines.append("    " + ln.strip())
    def label(self, name):
        self.lines.append(name + ":")
    def newlabel(self, base="L"):
        self._lab += 1
        return f"{base}_{self._lab}"
    def comment(self, s):
        self.lines.append("    ; " + s)
    def raw(self, s):
        self.lines.append(s)
    def text(self):
        return "\n".join(self.lines) + "\n"

def v(i, n=1):
    return f"v{i}" if n == 1 else f"v[{i}:{i+n-1}]"
def a(i, n=1):
    return f"a{i}" if n == 1 else f"a[{i}:{i+n-1}]"
def s(i, n=1):
    return f"s{i}" if n == 1 else f"s[{i}:{i+n-1}]"

_REG = re.compile(r"\b([vas])(?:(\d+)|\[(\d+):(\d+)\])")
def regs_of(op):
    out = []
    for m in _REG.finditer(op):
        k = m.group(1)
        if m.group(2) is not None:
            out.append((k, int(m.group(2))))
        else:
            out += [(k, i) for i in range(int(m.group(3)), int(m.group(4)) + 1)]
    if re.search(r"\bvcc\b", op): out.append(("s", "vcc"))
    if re.search(r"\bexec\b", op): out.append(("s", "exec"))
    if re.search(r"\bm0\b", op): out.append(("s", "m0"))
    return out

TRANS = ("v_exp_f32", "v_log_f32", "v_rcp_f32", "v_rsq_f32", "v_sqrt_f32", "v_sin_f32", "v_cos_f32", "v_rcp_iflag_f32")

class Ins:
    def __init__(self, text):
        self.text = text
        t = text.split(";")[0].strip()
        parts = t.split(None, 1)
        self.op = parts[0]
        ops = [o.strip() for o in parts[1].split(",")] if len(parts) > 1 else []
        self.ops = ops
        op = self.op
        self.kind = "other"
        self.w = []; self.r = []
        self.srcc = []; self.srcab = []
        self.passes = 0
        self.states = 1
        if op == "s_nop":
            self.states = int(ops[0], 0) + 1
            self.kind = "nop"
        elif op.startswith("v_mfma"):
            self.kind = "mfma"
            self.passes = 8 if "32x32x16" in op else (4 if "16x16x32" in op else (2 if "4x4x4" in op else None))
            assert self.passes, op
            self.w = regs_of(ops[0]); self.srcab = regs_of(ops[1]) + regs_of(ops[2]); self.srcc = regs_of(ops[3])
            self.r = self.srcab + self.srcc
        elif op.startswith("v_"):
            self.kind = "valu"
            if op.startswith("v_cmp"):
                self.w = regs_of(ops[0]); self.r = sum((regs_of(o) for o in ops[1:]), [])
                if op.startswith("v_cmpx"): self.w.append(("s", "exec"))
            elif op.startswith("v_permlane") and "swap" in op:
                self.w = regs_of(ops[0]) + regs_of(ops[1]); self.r = list(self.w)
            elif op.startswith("v_readfirstlane") or op.startswith("v_readlane"):
                self.w = regs_of(ops[0]); self.r = sum((regs_of(o) for o in ops[1:]), [])
            elif op.startswith(("v_add_co", "v_sub_co", "v_addc_co", "v_subb_co")):
                self.w = regs_of(ops[0]) + regs_of(ops[1]); self.r = sum((regs_of(o) for o in ops[2:]), [])
            else:
                self.w = regs_of(ops[0]); self.r = sum((regs_of(o) for o in ops[1:]), [])
                if op.startswith(("v_fmac", "v_dot2c", "v_pk_fmac")) or "dpp" in op or "row_" in t: self.r += self.w
                if op.startswith("v_cndmask") and len(ops) == 3: self.r.append(("s", "vcc"))
        elif op.startswith("ds_"):
            self.kind = "ds"
            if "read" in op or "bpermute" in op:
                self.w = regs_of(ops[0]); self.r = sum((regs_of(o) for o in ops[1:]), [])
            else:
                self.r = sum((regs_of(o) for o in ops), [])
        elif op.startswith(("buffer_", "global_")):
            self.kind = "vmem"
            lds = bool(re.search(r"\blds\b", t)) or "load_lds" in op
            self.lds = lds
            if "load" in op and not lds:
                self.w = regs_of(ops[0]); self.r = sum((regs_of(o) for o in ops[1:]), [])
            elif "atomic" in op and "sc0" in t:
                self.w = regs_of(ops[0]); self.r = sum((regs_of(o) for o in ops), [])
            else:
                self.r = sum((regs_of(o) for o in ops), [])
                if lds: self.r.append(("s", "m0"))
            self.store_wide = ("store" in op) and ("x4" in op or "x3" in op)
            if self.store_wide:
                self.sdata = regs_of(ops[0]) if op.startswith("buffer_") else regs_of(ops[1])
        elif op.startswith("s_"):
            self.kind = "salu"
            if op.startswith(("s_cmp", "s_cbranch", "s_branch", "s_barrier", "s_waitcnt", "s_setprio", "s_endpgm", "s_sleep")):
                self.r = sum((regs_of(o) for o in ops), [])
            else:
                self.w = regs_of(ops[0]) if ops else []; self.r = sum((regs_of(o) for o in ops[1:]), [])
                if "saveexec" in op: self.w.append(("s", "exec"))

def fix_hazards(lines):
    lines = list(lines)
    while True:
        p = check_hazards(lines, verbose=False, first=True)
        if not p: return lines
        idx, miss = p
        lines.insert(idx, f"    s_nop {miss - 1}")

def check_hazards(lines, verbose=True, first=False):
    ins = []; where = []
    for li, ln in enumerate(lines):
        t = ln.split(";")[0].strip()
        if not t or t.endswith(":") or t.startswith("."): continue
        if t.startswith("WAITV"): t = "s_waitcnt vmcnt(0)"
        ins.append(Ins(t)); where.append(li)
    probs = []
    n = len(ins)
    for j in range(n):
        c = ins[j]
        dist = 0
        for i in range(j - 1, max(-1, j - 24), -1):
            p = ins[i]
            need = 0
            pw = set(p.w); cr = set(c.r); cw = set(c.w)
            if p.kind == "valu":
                vw = {x for x in pw if x[0] in "va"}
                sw = {x for x in pw if x[0] == "s"}
                if c.kind == "mfma" and vw & cr: need = max(need, 2)
                if c.kind == "mfma" and ("s", "exec") in pw: need = max(need, 4)
                if c.kind == "valu":
                    if c.op.startswith("v_permlane") and vw & cr: need = max(need, 2)
                    if ("dpp" in c.op or "row_" in c.text) and vw & cr: need = max(need, 2)
                    if c.op.startswith(("v_readfirstlane", "v_readlane")) and vw & cr: need = max(need, 1)
                    if p.op.startswith(TRANS) and not c.op.startswith(TRANS) and vw & cr: need = max(need, 1)
                    if p.op.startswith(TRANS) and vw & cr: need = max(need, 1)
                    if sw & cr: need = max(need, 2)
                    if ("s", "exec") in pw and c.op.startswith(("v_readfirstlane", "v_readlane", "v_permlane")): need = max(need, 4)
                if c.kind == "vmem" and sw & cr: need = max(need, 5)
            if p.kind == "salu" and ("s", "m0") in pw and c.kind == "vmem" and getattr(c, "lds", False): need = max(need, 1)
            if p.kind == "mfma":
                tab_c = {2: 4, 4: 6, 8: 10}[p.passes]
                tab_ab = {2: 5, 4: 8, 8: 12}[p.passes]
                tab_war = {2: 1, 4: 3, 8: 7}[p.passes]
                if c.kind == "mfma":
                    if pw & set(c.srcab): need = max(need, tab_ab)
                    if pw & set(c.srcc):
                        if c.srcc == p.w and c.passes == p.passes: need = max(need, 2 if p.passes == 2 else 0)
                        else: need = max(need, tab_c)
                    elif pw & cw:
                        need = max(need, tab_c)
                elif c.kind in ("valu", "ds", "vmem"):
                    if pw & (cr | cw): need = max(need, tab_ab)
                    if c.kind == "valu" and set(p.srcc) & cw: need = max(need, tab_war)
                    if c.kind in ("ds", "vmem") and set(p.srcc) & cw: need = max(need, tab_war)
            if p.kind == "vmem" and getattr(p, "store_wide", False):
                if set(p.sdata) & cw: need = max(need, 2)
            if p.kind == "ds" and "write" in p.op and ("b128" in p.op or "b96" in p.op):
                pass
            if need > dist:
                if first: return (where[j], need - dist)
                probs.append(f"HAZARD need {need} have {dist}: [{p.text}] -> [{c.text}]")
            dist += p.states
            if p.op in ("s_branch", "s_endpgm", "s_setpc_b64"): break
    if first: return None
    if verbose:
        for p in probs: print(p)
    return probs
```

```python
from gen_common import *
import gen_att as att
from gen_att import weave2, pk_scalar, Oreg, ctx_addr

WS_PART = 64 << 20
WS_FLAG = 60 << 20
F_B = 12288; F_OF = 13312; F_CTX = 16384
OOB = 0x7ffffff0

class R:
    FR = 0; WV = 128; BV = 132; WA = 136; WB = 140; CA = 142; WC = 144; CC = 148; PA = 149; PV = 150; ONE = 151; T = 152
    FA = 240; FO = 241; PB = 242
    LANE16 = 252; LANE = 253; BACC = 64

class SG(att.SG):
    WO = 8; WB = 12; OUT = 16
    SL = 64; RB = 65; CB = 66; D4 = 31; CO = 67; WOO = 68; OFO = 69; WBO = 70; RT = 71; CT = 72; PO = 73; FO = 74
    PTR = 76

NSLOT = 4
def sl(n): return (n % NSLOT) * 32768
def tagged(lines, tag): return [l + f" ; @{tag}" if l.startswith("buffer") else l for l in lines]

def spin(A, tag, ld, chk, tmp):
    A(chk + f"\ns_mov_b32 s{tmp}, 0\ns_nop 3\ns_cbranch_vccz BK_rdy{tag}")
    A.label(f"BK_poll{tag}")
    A(f"s_sleep 1\n{ld} ; @opt\ns_waitcnt vmcnt(0)")
    A(chk + f"\ns_add_u32 s{tmp}, s{tmp}, 1\ns_nop 3\ns_cbranch_vccz BK_rdy{tag}\ns_cmp_lt_u32 s{tmp}, 0x40000\ns_cbranch_scc1 BK_poll{tag}")
    A.label(f"BK_rdy{tag}")

def back(A, cfg):
    s = SG; AR = att.R
    L = R.LANE; T = R.T
    XB = 77824
    A("s_load_dwordx2 s[40:41], s[0:1], 80")
    A("s_waitcnt vmcnt(16) lgkmcnt(0)\ns_barrier")
    for ln in att.period(cfg, 1, 16384, [], [], [], do_qk=False): A(ln)
    stamp(A, cfg, 1)
    A(f"s_mul_i32 s{s.T0}, s{s.W}, 17408\ns_xor_b32 s{s.T1}, s{s.W}, 1\ns_mul_i32 s{s.T1}, s{s.T1}, 17408\ns_add_u32 s{s.T0}, s{s.T0}, {XB}\ns_add_u32 s{s.T1}, s{s.T1}, {XB}")
    A(f"v_add_u32 {v(AR.KADDR)}, s{s.T0}, {v(R.LANE16)}\nv_add_u32 {v(AR.VADDR)}, s{s.T1}, {v(R.LANE16)}")
    A(f"v_mov_b32 v96, {v(AR.M+2)}\nv_mov_b32 v97, {v(AR.M+3)}")
    A(f"s_lshr_b32 s{s.T0}, s{s.H}, 3\ns_lshl_b32 s{s.T0}, s{s.T0}, 11\ns_and_b32 s{s.T1}, s{s.H}, 7\ns_lshl_b32 s{s.T1}, s{s.T1}, 2\ns_add_u32 s{s.T0}, s{s.T0}, s{s.T1}\ns_add_u32 s{s.T0}, s{s.T0}, {hex(WS_FLAG + F_CTX)}")
    A(f"s_cmp_eq_u32 s{s.W}, 0\ns_cselect_b32 s{s.T0}, s{s.T0}, {hex(OOB - 0x10000)}\nv_mov_b32 v110, {hex(OOB - 0x10000)}\nv_writelane_b32 v110, s{s.T0}, 0\nv_mov_b32 v111, 1")
    A(f"s_lshl_b32 s{s.SL}, s{s.I}, 7\ns_lshl_b32 s{s.RB}, s{s.BA}, 7")
    A(f"v_accvgpr_read_b32 v98, {a(AR.LS+8)}\nv_accvgpr_read_b32 v99, {a(AR.LS+12)}")
    A(f"v_accvgpr_read_b32 v100, {a(AR.LS)}\nv_accvgpr_read_b32 v101, {a(AR.LS+4)}")
    A("s_waitcnt vmcnt(0)\ns_barrier")
    A(f"buffer_store_dword v111, v110, s[{s.WS}:{s.WS+3}], s{s.SL} offen sc1 ; @sig")
    A(f"ds_write_b128 {v(AR.KADDR)}, v[96:99] offset:16384")
    for i in range(16): A(f"ds_write_b128 {v(AR.KADDR)}, {v(Oreg(2)+i*4,4)} offset:{i*1024}")
    ctx_addr(A, s.BA)
    A("s_waitcnt lgkmcnt(0)\ns_barrier")
    A(f"ds_read_b128 v[96:99], {v(AR.VADDR)} offset:16384")
    for i in range(16): A(f"ds_read_b128 {v(i*4,4)}, {v(AR.VADDR)} offset:{i*1024}")
    A(f"s_lshl_b32 s{s.CB}, s{s.H}, 16\ns_lshl_b32 s{s.CO}, s{s.W}, 14\ns_add_u32 s{s.CB}, s{s.CB}, s{s.CO}\ns_add_u32 s{s.CB}, s{s.CB}, {hex(WS_KVP)}")
    b2l = []
    for j in range(16):
        b2l.append(f"buffer_load_dwordx4 {v(176 + j*4, 4)}, {v(R.LANE16)}, s[{s.WS}:{s.WS+3}], s{s.CB} offen offset:{(j&3)*1024} sc1 ; @kp" + ("\n" + f"s_add_u32 s{s.CB}, s{s.CB}, 0x1000" if j % 4 == 3 else ""))
    b2l.append(f"s_lshl_b32 s{s.CB}, s{s.H}, 12\ns_lshl_b32 s{s.CO}, s{s.W}, 10\ns_add_u32 s{s.CB}, s{s.CB}, s{s.CO}\ns_add_u32 s{s.CB}, s{s.CB}, {hex(WS_KVP + (2 << 20))}\n"
               f"buffer_load_dwordx4 {a(244, 4)}, {v(R.LANE16)}, s[{s.WS}:{s.WS+3}], s{s.CB} offen sc1 ; @kp")
    b2l.append(f"s_lshl_b32 s{s.CB}, s{s.H}, 17\ns_lshl_b32 s{s.CO}, s{s.I}, 14\ns_add_u32 s{s.CB}, s{s.CB}, s{s.CO}\ns_add_u32 s{s.CB}, s{s.CB}, s{s.D4}\ns_add_u32 s{s.CB}, s{s.CB}, {hex(WS_PHIQ)}")
    for q in range(4): b2l.append(f"buffer_load_dwordx4 {a(128 + q*4, 4)}, {v(R.LANE16)}, s[{s.WS}:{s.WS+3}], s{s.CB} offen offset:{q*1024} sc1 ; @kp")
    npre = cfg.get("b2_pre", 8)
    for x in b2l[:npre]: A(x)
    A("s_waitcnt lgkmcnt(15)")
    for q in range(2):
        W0, W1 = 102 + q * 4, 104 + q * 4
        A(f"v_max_f32 {v(AR.MXA)}, {v(AR.M+q)}, v{96+q}")
        A(f"v_sub_f32 {v(W0)}, {v(AR.M+q)}, {v(AR.MXA)}\nv_sub_f32 {v(W1)}, v{96+q}, {v(AR.MXA)}")
        A(f"v_exp_f32 {v(W0)}, {v(W0)}\nv_exp_f32 {v(W1)}, {v(W1)}\ns_nop 0")
        A(f"v_mul_f32 v{100+q}, v{100+q}, {v(W0)}\nv_fma_f32 v{100+q}, v{98+q}, {v(W1)}, v{100+q}")
        A(f"v_rcp_f32 v{100+q}, v{100+q}\ns_nop 0")
        A(f"v_mul_f32 {v(W0)}, {v(W0)}, v{100+q}\nv_mul_f32 {v(W1)}, {v(W1)}, v{100+q}")
    for f in range(8):
        q = f >> 2
        W0, W1 = 102 + q * 4, 104 + q * 4
        b = Oreg(0) + f * 8
        pk_scalar("v_pk_mul_f32", A, b, 8, W0)
        A(f"s_waitcnt lgkmcnt({14 - 2*f})")
        for i in range(0, 8, 2):
            A(f"v_pk_fma_f32 {v(b+i,2)}, {v(f*8+i,2)}, {v(W1,2)}, {v(b+i,2)} op_sel_hi:[1,0,1]")
        dst = 64 + f * 4
        for p in range(4): A(f"v_cvt_pk_bf16_f32 {v(dst + p)}, {v(b+2*p)}, {v(b+2*p+1)}")
        A(f"buffer_store_dwordx4 {v(dst,4)}, {v(R.LANE16)}, s[{s.WS}:{s.WS+3}], s{s.T0 if f < 4 else s.T1} offen offset:{(f&3)*1024} sc1 ; @cs")
    A(f"v_add_u32 {v(R.FA)}, s{s.RB}, v110\nv_mov_b32 {v(R.ONE)}, 1")
    for x in b2l[npre:]: A(x)
    stamp(A, cfg, 2)
    A(f"s_bfe_u32 s{s.SL}, s2, 0x20001\ns_and_b32 s{s.RB}, s2, 1\ns_lshl_b32 s{s.RB}, s{s.RB}, 3\ns_add_u32 s{s.RB}, s{s.RB}, s{s.I}\ns_bfe_u32 s{s.CB}, s2, 0x20003")
    A(f"s_mov_b32 s{s.RT}, s{s.H}\ns_mov_b32 s{s.CT}, s{s.I}")
    A(f"s_lshl_b32 s{s.CO}, s{s.RB}, 20\ns_lshl_b32 s{s.T0}, s{s.W}, 18\ns_add_u32 s{s.CO}, s{s.CO}, s{s.T0}\ns_lshl_b32 s{s.T0}, s{s.SL}, 15\ns_add_u32 s{s.CO}, s{s.CO}, s{s.T0}\ns_add_u32 s{s.CO}, s{s.CO}, {hex(WS_CTX)}")
    A(f"s_lshl_b32 s{s.WOO}, s{s.SL}, 20\ns_lshl_b32 s{s.T0}, s{s.W}, 14\ns_add_u32 s{s.WOO}, s{s.WOO}, s{s.T0}\ns_lshl_b32 s{s.T0}, s{s.CB}, 8\ns_add_u32 s{s.WOO}, s{s.WOO}, s{s.T0}")
    A(f"s_lshl_b32 s{s.OFO}, s{s.RT}, 16\ns_lshl_b32 s{s.T0}, s{s.W}, 14\ns_add_u32 s{s.OFO}, s{s.OFO}, s{s.T0}\ns_add_u32 s{s.OFO}, s{s.OFO}, {hex(WS_OF)}")
    A(f"s_lshl_b32 s{s.WBO}, s{s.W}, 15\ns_lshl_b32 s{s.T0}, s{s.CT}, 7\ns_add_u32 s{s.WBO}, s{s.WBO}, s{s.T0}")
    A(f"v_lshrrev_b32 {v(T)}, 4, {v(L)}\nv_lshlrev_b32 {v(T+1)}, 1, {v(T)}\nv_and_b32 {v(T+2)}, 15, {v(L)}\nv_xor_b32 {v(T+1)}, {v(T+1)}, {v(T+2)}\nv_lshlrev_b32 {v(T+1)}, 4, {v(T+1)}")
    A(f"v_lshl_add_u32 {v(R.WV)}, {v(T)}, 10, {v(T+1)}\nv_xor_b32 {v(T)}, 128, {v(R.WV)}")
    A(f"v_add_u32 {v(R.WV+1)}, 3072, {v(T)}\nv_add_u32 {v(R.WV+2)}, {3072*2}, {v(R.WV)}\nv_add_u32 {v(R.WV+3)}, {3072*3}, {v(T)}")
    srd(A, s.WO, s.PTR + 10, 4096 * 512 * 2); srd(A, s.WB, s.PTR + 18, 512 * 512 * 2); srd(A, s.OUT, 40, 2048 * 1024 * 2)
    def st_c(n):
        Ls = [f"s_add_u32 m0, s{s.D4}, {sl(n)}"]
        if n < 16:
            Ls.append(f"s_add_u32 s{s.SOFF}, s{s.CO}, {n*2048}")
            for j in range(2): Ls.append(f"buffer_load_dwordx4 {v(R.LANE16)}, s[{s.WS}:{s.WS+3}], s{s.SOFF} offen offset:{j*1024} sc1 lds")
            Ls.append(f"s_add_u32 s{s.SOFF}, s{s.CO}, {n*2048 + 131072 - 2048}")
            for j in range(2, 4): Ls.append(f"buffer_load_dwordx4 {v(R.LANE16)}, s[{s.WS}:{s.WS+3}], s{s.SOFF} offen offset:{j*1024} sc1 lds")
        else:
            Ls.append(f"s_add_u32 s{s.SOFF}, s{s.OFO}, {(n-16)*4096}")
            for j in range(4): Ls.append(f"buffer_load_dwordx4 {v(R.LANE16)}, s[{s.WS}:{s.WS+3}], s{s.SOFF} offen offset:{j*1024} sc1 lds")
        return tagged(Ls, f"s{n}")
    def st_w(n):
        Ls = [f"s_add_u32 m0, s{s.D4}, {sl(n) + 16384}"]
        if n < 16:
            Ls.append(f"s_add_u32 s{s.SOFF}, s{s.WOO}, {n*65536}")
            for j in range(4): Ls.append(f"buffer_load_dwordx4 {v(R.WV+j)}, s[{s.WO}:{s.WO+3}], s{s.SOFF} offen offset:{j*1024} lds")
        else:
            Ls.append(f"s_add_u32 s{s.SOFF}, s{s.WBO}, {(n-16)*131072}")
            for j in range(4): Ls.append(f"buffer_load_dwordx4 {v(R.BV+j)}, s[{s.WB}:{s.WB+3}], s{s.SOFF} offen offset:{j*1024} lds")
        return tagged(Ls, f"s{n}")
    for n in range(2):
        for ln in st_w(n): A(ln)
    A(f"s_lshl_b32 s{s.T0}, s{s.SL}, 4\ns_add_u32 s{s.T0}, s{s.T0}, s{s.RB}\ns_lshl_b32 s{s.T0}, s{s.T0}, 7\ns_add_u32 s{s.T0}, s{s.T0}, {hex(WS_FLAG + F_CTX)}")
    A(f"v_and_b32 {v(T)}, 7, {v(L)}\nv_lshl_add_u32 {v(R.PA)}, {v(T)}, 2, s{s.T0}")
    A(f"s_and_b32 s{s.T0}, s2, 7\ns_lshl_b32 s{s.T0}, s{s.T0}, 7\ns_add_u32 s{s.T0}, s{s.T0}, {hex(WS_FLAG + F_OF)}\nv_and_b32 {v(T)}, 31, {v(L)}\nv_lshl_add_u32 {v(R.PB)}, {v(T)}, 2, s{s.T0}")
    A(f"s_lshl_b32 s{s.T0}, s{s.I}, 7\ns_lshl_b32 s{s.T1}, s{s.H}, 2\ns_add_u32 s{s.T0}, s{s.T0}, s{s.T1}\ns_add_u32 s{s.T0}, s{s.T0}, {hex(WS_FLAG + F_OF)}")
    A(f"s_cmp_eq_u32 s{s.W}, 0\ns_cselect_b32 s{s.T0}, s{s.T0}, {hex(OOB)}\nv_mov_b32 {v(R.FO)}, {hex(OOB)}\nv_writelane_b32 {v(R.FO)}, s{s.T0}, 0")
    A(f"v_lshrrev_b32 {v(T)}, 4, {v(L)}\nv_lshlrev_b32 {v(T)}, 1, {v(T)}\nv_and_b32 {v(T+1)}, 7, {v(L)}\nv_xor_b32 {v(T)}, {v(T)}, {v(T+1)}\nv_lshlrev_b32 {v(T)}, 4, {v(T)}")
    A(f"v_lshrrev_b32 {v(T+1)}, 3, {v(L)}\nv_lshl_add_u32 {v(R.BV)}, {v(T+1)}, 10, {v(T)}")
    for j in range(1, 4): A(f"v_add_u32 {v(R.BV+j)}, {7168*j}, {v(R.BV)}")
    A(f"s_lshr_b32 s{s.T0}, s{s.W}, 1\ns_lshl_b32 s{s.T0}, s{s.T0}, 7")
    A(f"v_lshrrev_b32 {v(T)}, 2, {v(L)}\nv_lshlrev_b32 {v(T)}, 8, {v(T)}\nv_bfe_u32 {v(T+1)}, {v(L)}, 2, 3\nv_lshl_add_u32 {v(T)}, {v(T+1)}, 5, {v(T)}")
    A(f"v_and_b32 {v(T+1)}, 3, {v(L)}\nv_lshl_add_u32 {v(T)}, {v(T+1)}, 3, {v(T)}\nv_xor_b32 {v(T)}, s{s.T0}, {v(T)}\nv_add_u32 {v(R.WA)}, 0x4000, {v(T)}")
    for c in range(1, 4): A(f"v_xor_b32 {v(R.WA+c)}, {c<<5}, {v(R.WA)}")
    A(f"s_and_b32 s{s.T0}, s{s.W}, 1\ns_lshl_b32 s{s.T0}, s{s.T0}, 13\nv_add_u32 {v(R.CA)}, s{s.T0}, {v(R.LANE16)}")
    A(f"s_lshr_b32 s{s.T0}, s{s.W}, 1\ns_lshl_b32 s{s.T0}, s{s.T0}, 6")
    A(f"v_bfe_u32 {v(T)}, {v(L)}, 2, 3\nv_lshlrev_b32 {v(T)}, 7, {v(T)}\nv_lshrrev_b32 {v(T+1)}, 5, {v(L)}\nv_lshl_add_u32 {v(T)}, {v(T+1)}, 11, {v(T)}")
    A(f"v_bfe_u32 {v(T+1)}, {v(L)}, 3, 2\nv_lshl_add_u32 {v(T)}, {v(T+1)}, 5, {v(T)}\nv_and_b32 {v(T+1)}, 3, {v(L)}\nv_lshl_add_u32 {v(T)}, {v(T+1)}, 3, {v(T)}")
    A(f"v_xor_b32 {v(T)}, s{s.T0}, {v(T)}\nv_add_u32 {v(R.WB)}, 0x4000, {v(T)}\nv_xor_b32 {v(R.WB+1)}, 32, {v(R.WB)}")
    A(f"s_lshl_b32 s{s.T0}, s{s.RB}, 2\ns_add_u32 s{s.T0}, s{s.T0}, s{s.CB}\ns_lshl_b32 s{s.FO}, s{s.T0}, 7\ns_add_u32 s{s.FO}, s{s.FO}, {hex(WS_FLAG)}")
    A(f"s_lshl_b32 s{s.PO}, s{s.T0}, 17\ns_add_u32 s{s.PO}, s{s.PO}, {hex(WS_PART)}")
    pa_ld = f"buffer_load_dword {v(R.PV)}, {v(R.PA)}, s[{s.WS}:{s.WS+3}], 0 offen sc1"
    pb_ld = f"buffer_load_dword {v(R.PV)}, {v(R.PB)}, s[{s.WS}:{s.WS+3}], 0 offen sc1"
    chk = f"v_cmp_ne_u32 vcc, 1, {v(R.PV)}"
    A("WAITV cs\ns_barrier")
    A(f"buffer_store_dword {v(R.ONE)}, {v(R.FA)}, s[{s.WS}:{s.WS+3}], 0 offen sc1 ; @sig")
    for n in range(2, 4):
        for ln in st_w(n): A(ln)
    SC = 147456; X = 176; U = 64; Z = 0
    A(f"s_add_u32 s{s.T0}, s{s.D4}, {SC}\nv_add_u32 {v(U)}, s{s.T0}, {v(R.LANE16)}\nv_and_b32 {v(U+1)}, 0x70, {v(R.LANE16)}\nv_add_u32 {v(U+1)}, s{s.T0}, {v(U+1)}")
    A(f"v_lshrrev_b32 {v(U+2)}, 5, {v(L)}\nv_and_b32 {v(U+3)}, 31, {v(L)}\nv_lshl_add_u32 {v(U+4)}, {v(U+2)}, 4, {v(U+3)}\nv_lshlrev_b32 {v(U+4)}, 4, {v(U+4)}")
    A(f"v_lshlrev_b32 {v(U+5)}, 4, {v(U+2)}\nv_add_u32 {v(U+5)}, 0x800, {v(U+5)}\nv_cmp_gt_u32 vcc, 16, {v(U+3)}\nv_mov_b32 {v(U+8)}, 512\ns_nop 0")
    A(f"v_cndmask_b32 {v(U+4)}, {v(U+5)}, {v(U+4)}, vcc\nv_cndmask_b32 {v(U+8)}, 32, {v(U+8)}, vcc\nv_add_u32 {v(U+4)}, {SC}, {v(U+4)}")
    for q in range(1, 4): A(f"v_add_u32 {v(U+4+q)}, {v(U+8)}, {v(U+3+q)}")
    A(f"v_bfe_u32 {v(U+9)}, {v(L)}, 4, 1\nv_lshlrev_b32 {v(U+9)}, 14, {v(U+9)}\nv_and_b32 {v(U+10)}, 15, {v(L)}\nv_lshl_add_u32 {v(U+9)}, {v(U+10)}, 4, {v(U+9)}\nv_lshl_add_u32 {v(U+9)}, {v(U+2)}, 8, {v(U+9)}")
    A(f"s_lshl_b32 s{s.T0}, s{s.I}, 18\ns_lshl_b32 s{s.T1}, s{s.W}, 16\ns_add_u32 s{s.T0}, s{s.T0}, s{s.T1}\ns_lshl_b32 s{s.T1}, s{s.H}, 9\ns_add_u32 s{s.T0}, s{s.T0}, s{s.T1}\ns_add_u32 s{s.T0}, s{s.T0}, {hex(WS_OF)}\ns_add_u32 s{s.T1}, s{s.T0}, 0x8000")
    A("WAITV kp")
    for i in range(4): A(f"v_accvgpr_read_b32 {v(Z+i)}, {a(244+i)}")
    for w_ in (32, 16, 8):
        for i in range(0, w_, 2): A(f"v_pk_add_f32 {v(X+i,2)}, {v(X+i,2)}, {v(X+w_+i,2)}")
    for i in range(4): A(f"v_add_f32_dpp {v(Z+i)}, {v(Z+i)}, {v(Z+i)} row_ror:8 row_mask:0xf bank_mask:0xf")
    A(f"ds_write_b128 {v(U)}, {v(X,4)}\nds_write_b128 {v(U)}, {v(X+4,4)} offset:1024")
    for op in ("v_permlane16_swap_b32", "v_permlane32_swap_b32"):
        for i in range(4): A(f"v_mov_b32 {v(Z+4+i)}, {v(Z+i)}")
        A("s_nop 0")
        for i in range(4): A(f"{op} {v(Z+i)}, {v(Z+4+i)}")
        for i in range(4): A(f"v_add_f32 {v(Z+i)}, {v(Z+i)}, {v(Z+4+i)}")
    A(f"ds_write_b128 {v(U+1)}, {v(Z,4)} offset:2048")
    A(pa_ld + " ; @pa")
    A("s_waitcnt lgkmcnt(0)\ns_barrier")
    for src in range(4):
        for q in range(4): A(f"ds_read_b128 {v(X + src*16 + q*4, 4)}, {v(U+4+q)} offset:{src*4096}")
    A("s_waitcnt lgkmcnt(8)")
    for i in range(0, 16, 2): A(f"v_pk_add_f32 {v(X+i,2)}, {v(X+i,2)}, {v(X+16+i,2)}")
    A("s_waitcnt lgkmcnt(0)")
    for i in range(0, 16, 2): A(f"v_pk_add_f32 {v(X+32+i,2)}, {v(X+32+i,2)}, {v(X+48+i,2)}")
    for i in range(0, 16, 2): A(f"v_pk_add_f32 {v(X+i,2)}, {v(X+i,2)}, {v(X+32+i,2)}")
    for p in range(8): A(f"v_cvt_pk_bf16_f32 {v(X+16+p)}, {v(X+2*p)}, {v(X+2*p+1)}")
    A("s_nop 1")
    for t in range(2): A(f"{MF32} {v(X+32+t*16,16)}, {v(X+16,4)}, {a(128+t*8,4)}, 0")
    for t in range(2): A(f"{MF32} {v(X+32+t*16,16)}, {v(X+20,4)}, {a(128+t*8+4,4)}, {v(X+32+t*16,16)}")
    stamp(A, cfg, 3)
    A("WAITV pa")
    spin(A, "A", pa_ld, chk, s.T2)
    stamp(A, cfg, 4)
    for n in range(NSLOT):
        for ln in st_c(n): A(ln)
    for t in range(2):
        bb = X + 32 + t * 16
        A(f"v_add_f32 {v(bb+8)}, 0x358637bd, {v(bb+8)}\nv_rcp_f32 {v(bb+8)}, {v(bb+8)}\ns_nop 0")
        for i in range(0, 8, 2): A(f"v_pk_mul_f32 {v(bb+i,2)}, {v(bb+i,2)}, {v(bb+8,2)} op_sel_hi:[1,0]")
        for p in range(4): A(f"v_cvt_pk_bf16_f32 {v(bb+12+p)}, {v(bb+2*p)}, {v(bb+2*p+1)}")
        A(f"buffer_store_dwordx4 {v(bb+12,4)}, {v(U+9)}, s[{s.WS}:{s.WS+3}], s{s.T0 if t == 0 else s.T1} offen sc1 ; @of")
    def addr(n):
        if n < 16: return [f"v_add_u32 {v(R.WC+c)}, {sl(n)}, {v(R.WA+c)}" for c in range(4)] + [f"v_add_u32 {v(R.CC)}, {sl(n)}, {v(R.CA)}"]
        return [f"v_add_u32 {v(R.WC+c)}, {sl(n)}, {v(R.WB+c)}" for c in range(2)] + [f"v_add_u32 {v(R.CC)}, {sl(n)}, {v(R.CA)}"]
    def reads(k):
        t2 = k & 1; fs = R.FR + (k & 1) * 32
        Ls = []
        for i in range(4):
            Ls.append(f"ds_read_b128 {v(fs + 16 + i*4, 4)}, {v(R.CC)} offset:{i*2048 + t2*1024}")
            for rd in range(2): Ls.append(f"ds_read_b64_tr_b16 {v(fs + i*4 + rd*2, 2)}, {v(R.WC+i)} offset:{(32*t2 + 16*rd)*256}")
        return Ls
    for ln in addr(0): A(ln)
    A("WAITV s0\ns_barrier")
    for ln in reads(0): A(ln)
    for k in range(32):
        st, t2 = k >> 1, k & 1
        fs = R.FR + (k & 1) * 32
        tailv = []; vm = []
        if t2 == 1:
            tags = [f"s{st+1}"] if st < 15 else []
            if k == 25: tags.append("pb")
            if k == 7: tags.append("of")
            A(f"WAITV {','.join(tags)} L" if tags else "s_waitcnt lgkmcnt(0)")
            if k == 25: spin(A, "B", pb_ld, chk, s.T0)
            A("s_barrier")
            vm = st_c(st + NSLOT)
        else:
            A("s_waitcnt lgkmcnt(0)")
            if st < 15: tailv = addr(st + 1)
            if st >= 1: vm = st_w(st - 1 + NSLOT)
        if k == 31: vm = vm + st_w(19)
        if k == 20: vm = vm + [pb_ld + " ; @pb"]
        if k == 7: vm = [f"buffer_store_dword {v(R.ONE)}, {v(R.FO)}, s[{s.WS}:{s.WS+3}], 0 offen sc1 ; @sig"] + vm
        mf = []
        for c in range(4):
            for rt in range(4):
                acc = (rt * 4 + c) * 4
                mf.append(f"{MF16} {a(acc,4)}, {v(fs + c*4, 4)}, {v(fs + 16 + rt*4, 4)}, " + ("0" if k == 0 else a(acc, 4)))
        for b in weave2(mf, reads(k + 1) if k < 31 else [], vm, tailv, first=2): A(b)
    stamp(A, cfg, 5)
    A(f"s_lshl_b32 s{s.T0}, s{s.W}, 15\ns_lshl_b32 s{s.T1}, s{s.SL}, 13\ns_add_u32 s{s.T0}, s{s.T0}, s{s.T1}\ns_add_u32 s{s.T0}, s{s.T0}, s{s.PO}\ns_add_u32 s{s.T1}, s{s.T0}, 0x1000")
    for ln in addr(16): A(ln)
    A(f"v_add_u32 {v(T)}, 0x20000, {v(R.LANE16)}")
    A(f"s_cmp_eq_u32 s{s.W}, s{s.SL}\ns_cbranch_scc1 K3_own")
    for f in range(8):
        tb = (f & 3) * 12
        for i in range(8): A(f"v_accvgpr_read_b32 {v(tb+i)}, {a(f*8+i)}")
        for p in range(4): A(f"v_cvt_pk_bf16_f32 {v(tb+8+p)}, {v(tb+2*p)}, {v(tb+2*p+1)}")
        A(f"buffer_store_dwordx4 {v(tb+8,4)}, {v(R.LANE16)}, s[{s.WS}:{s.WS+3}], s{s.T0 if f < 4 else s.T1} offen offset:{(f&3)*1024} sc1 ; @opt")
    A("s_waitcnt vmcnt(8)\ns_branch K3_pub")
    A.label("K3_own")
    for i in range(16): A(f"ds_write_b128 {v(T)}, {a(i*4,4)} offset:{i*1024}")
    A("s_waitcnt vmcnt(0)")
    A.label("K3_pub")
    A("s_barrier")
    def breads(k):
        t4 = k & 3; fs = R.FR + (k & 3) * 16
        Ls = []
        for i in range(2):
            Ls.append(f"ds_read_b128 {v(fs + 8 + i*4, 4)}, {v(R.CC)} offset:{i*4096 + t4*1024}")
            for rd in range(2): Ls.append(f"ds_read_b64_tr_b16 {v(fs + i*4 + rd*2, 2)}, {v(R.WC+i)} offset:{(32*t4 + 8*rd)*128}")
        return Ls
    A("s_waitcnt lgkmcnt(0)")
    for ln in breads(0) + breads(1): A(ln)
    for k in range(17):
        if k == cfg.get("k_flag", 4):
            A(f"s_lshl_b32 s{s.T0}, s{s.SL}, 2\ns_add_u32 s{s.T0}, s{s.T0}, s{s.FO}\ns_cmp_eq_u32 s{s.W}, 0\ns_cselect_b32 s{s.T0}, s{s.T0}, {hex(OOB)}\nv_mov_b32 {v(T+1)}, {hex(OOB)}\nv_writelane_b32 {v(T+1)}, s{s.T0}, 0")
            A("s_waitcnt vmcnt(0)\ns_barrier")
            A(f"buffer_store_dword {v(R.ONE)}, {v(T+1)}, s[{s.WS}:{s.WS+3}], 0 offen sc1")
        if k == 16: break
        fs = R.FR + (k & 3) * 16
        if k + 2 < 16:
            if (k + 2) % 4 == 0:
                for ln in addr(16 + (k + 2) // 4): A(ln)
            for ln in breads(k + 2): A(ln)
        A(f"s_waitcnt lgkmcnt({12 if k + 2 < 16 else (6 if k == 14 else 0)})")
        for c in range(2):
            for rt in range(2):
                acc = R.BACC + (rt * 2 + c) * 4
                A(f"{MF16} {a(acc,4)}, {v(fs + c*4, 4)}, {v(fs + 8 + rt*4, 4)}, " + ("0" if k == 0 else a(acc, 4)))
    A(f"v_and_b32 {v(T)}, 15, {v(L)}\nv_lshlrev_b32 {v(T)}, 11, {v(T)}\nv_lshrrev_b32 {v(T+3)}, 4, {v(L)}\nv_lshl_add_u32 {v(T+2)}, {v(T+3)}, 3, {v(T)}")
    A(f"s_lshl_b32 s{s.T0}, s{s.RT}, 17\ns_and_b32 s{s.T1}, s{s.W}, 1\ns_lshl_b32 s{s.T1}, s{s.T1}, 16\ns_add_u32 s{s.T0}, s{s.T0}, s{s.T1}")
    A(f"s_lshl_b32 s{s.T1}, s{s.CT}, 7\ns_add_u32 s{s.T0}, s{s.T0}, s{s.T1}\ns_lshr_b32 s{s.T1}, s{s.W}, 1\ns_lshl_b32 s{s.T1}, s{s.T1}, 6\ns_add_u32 s{s.T0}, s{s.T0}, s{s.T1}\ns_add_u32 s{s.T1}, s{s.T0}, 0x8000")
    A(f"v_and_b32 {v(R.PA)}, 3, {v(L)}\nv_lshl_add_u32 {v(R.PA)}, {v(R.PA)}, 2, s{s.FO}")
    A(pa_ld)
    for i in range(16): A(f"v_accvgpr_read_b32 {v(i)}, {a(R.BACC+i)}")
    for p in range(8): A(f"v_cvt_pk_bf16_f32 {v(16+p)}, {v(2*p)}, {v(2*p+1)}")
    for rt in range(2):
        for c in range(2):
            A(f"buffer_store_dwordx2 {v(16 + (rt*2+c)*2, 2)}, {v(T+2)}, s[{s.OUT}:{s.OUT+3}], s{s.T0 if rt == 0 else s.T1} offen offset:{1024 + c*32} {cfg.get('ofl', '')}")
    A(f"s_add_u32 s{s.T1}, s{s.D4}, 0x20000\nv_add_u32 {v(T)}, s{s.T1}, {v(R.LANE16)}")
    for c in range(4): A(f"ds_read_b128 {v(48+c*4,4)}, {v(T)} offset:{c*1024}")
    A("s_waitcnt vmcnt(4)")
    spin(A, "P", pa_ld, chk, s.T1)
    stamp(A, cfg, 6)
    A(f"s_lshl_b32 s{s.T0}, s{s.SL}, 15\ns_add_u32 s{s.T0}, s{s.T0}, s{s.PO}\ns_lshl_b32 s{s.T1}, s{s.W}, 11\ns_add_u32 s{s.T0}, s{s.T0}, s{s.T1}")
    for j in range(1, 4):
        A(f"s_add_u32 s{s.T1}, s{s.SL}, {j}\ns_and_b32 s{s.T1}, s{s.T1}, 3\ns_lshl_b32 s{s.T1}, s{s.T1}, 13\ns_add_u32 s{s.T1}, s{s.T1}, s{s.T0}")
        for u in range(2):
            A(f"buffer_load_dwordx4 {v(64 + (j-1)*8 + u*4, 4)}, {v(R.LANE16)}, s[{s.WS}:{s.WS+3}], s{s.T1} offen offset:{u*1024} sc1")
    A(f"s_lshl_b32 s{s.T0}, s{s.RB}, 18\ns_and_b32 s{s.T1}, s{s.SL}, 1\ns_lshl_b32 s{s.T1}, s{s.T1}, 17\ns_add_u32 s{s.T0}, s{s.T0}, s{s.T1}\ns_lshl_b32 s{s.T1}, s{s.W}, 15\ns_add_u32 s{s.T0}, s{s.T0}, s{s.T1}")
    A(f"s_lshl_b32 s{s.T1}, s{s.CB}, 8\ns_add_u32 s{s.T0}, s{s.T0}, s{s.T1}\ns_lshr_b32 s{s.T1}, s{s.SL}, 1\ns_lshl_b32 s{s.T1}, s{s.T1}, 7\ns_add_u32 s{s.T0}, s{s.T0}, s{s.T1}")
    A("s_waitcnt lgkmcnt(0)")
    for j in range(3):
        A(f"s_waitcnt vmcnt({4 - 2*j})")
        for p in range(8):
            r = 64 + j * 8 + p
            A(f"v_lshlrev_b32 {v(40)}, 16, {v(r)}\nv_and_b32 {v(41)}, 0xffff0000, {v(r)}\nv_pk_add_f32 {v(48+2*p,2)}, {v(48+2*p,2)}, {v(40,2)}")
    for p in range(8): A(f"v_cvt_pk_bf16_f32 {v(24+p)}, {v(48+2*p)}, {v(48+2*p+1)}")
    for c in range(4):
        A(f"buffer_store_dwordx2 {v(24+c*2,2)}, {v(T+2)}, s[{s.OUT}:{s.OUT+3}], s{s.T0} offen offset:{c*32} {cfg.get('ofl', '')}")
```
